```python
import torch

def _softmax(x, axis=-1):
    return torch.softmax(x, dim=axis)
def _gelu(x):
    return torch.nn.functional.gelu(x, approximate="tanh")
def _silu(x):
    return torch.nn.functional.silu(x)
def _sigmoid(x):
    return torch.sigmoid(x)
def _layernorm(x, axis=-1, eps=1e-5):
    m = x.mean(dim=axis, keepdim=True)
    v = x.var(dim=axis, keepdim=True, unbiased=False)
    return (x - m) / torch.sqrt(v + eps)
def _scatter_add(tgt, idx, src, axis=0):
    return tgt.clone().index_add_(axis, idx, src)
def _segment_sum(src, seg, n):
    out = torch.zeros((n,) + src.shape[1:], dtype=src.dtype)
    return out.index_add_(0, seg, src)
def _pad(x, pw):
    flat = tuple(v for pair in reversed(pw) for v in pair)
    return torch.nn.functional.pad(x, flat)

kernel_name = 'gated_mix__sliding_local_dilated__dense_activation_squared_relu__prompt'

def setup_inputs():

    _w = (lambda a: (lambda t: t.to(torch.bfloat16) if t.is_floating_point() else t)(torch.as_tensor(a)))
    def _A_setup():
        B, S, D = 1, 2048, 576
        return {
            "x": _w((lambda *s: torch.randn(*s, dtype=torch.bfloat16) * 0.05)(B, S, D)),
            "wqkv": _w((lambda *s: torch.randn(*s, dtype=torch.bfloat16) * 0.8)(D, 3 * D)),
            "wo": _w((lambda *s: torch.randn(*s, dtype=torch.bfloat16) * 0.05)(D, D)),
        }
    _A_in = _A_setup()

    def _B_setup():
        B, S, D, F = 1, 2048, 576, 4608
        return {
            "x": _w((lambda *s: torch.randn(*s, dtype=torch.bfloat16) * 0.05)(B, S, D)),
            "w1": _w((lambda *s: torch.randn(*s, dtype=torch.bfloat16) * 0.1)(D, F)),
            "b1": _w((lambda *s: torch.randn(*s, dtype=torch.bfloat16) * 0.1)(F)),
            "w2": _w((lambda *s: torch.randn(*s, dtype=torch.bfloat16) * 0.1)(F, D)),
            "b2": _w((lambda *s: torch.randn(*s, dtype=torch.bfloat16) * 0.2)(D)),
        }
    _B_in = _B_setup()

    return {
        "A_x": _A_in["x"],
        "A_wqkv": _A_in["wqkv"],
        "A_wo": _A_in["wo"],
        "B_x": _B_in["x"],
        "B_w1": _B_in["w1"],
        "B_b1": _B_in["b1"],
        "B_w2": _B_in["w2"],
        "B_b2": _B_in["b2"],
        "gate_w": _w((lambda *s: torch.randn(*s, dtype=torch.bfloat16) * 0.05)(576) * 16.0),
    }

def reference(A_x, A_wqkv, A_wo, B_x, B_w1, B_b1, B_w2, B_b2, gate_w):
    def _A_ref(x, wqkv, wo):
        B, S, D = x.shape
        H = 32; Dh = D // H
        W, dil = 8, 2
        qkv = (lambda x, *d: x.permute(*d))((x @ wqkv).reshape(B, S, 3, H, Dh), 2, 0, 3, 1, 4)
        q, k, v = qkv[0], qkv[1], qkv[2]
        scale = Dh ** -0.5
        pos = torch.arange(S)
        off = torch.arange(W) * dil
        idx = pos[:, None] - off[None, :]
        mask = idx >= 0
        idx_c = torch.where(mask, idx, 0).reshape(-1)
        kg = k[:, :, idx_c, :].reshape(B, H, S, W, Dh)
        vg = v[:, :, idx_c, :].reshape(B, H, S, W, Dh)
        logits = torch.einsum("bhsd,bhswd->bhsw", q, kg) * scale
        logits = torch.where(mask[None, None, :, :], logits, -1e9)
        attn = _softmax(logits, axis=-1)
        o = torch.einsum("bhsw,bhswd->bhsd", attn, vg)
        return (lambda x, *d: x.permute(*d))(o, 0, 2, 1, 3).reshape(B, S, D) @ wo

    def _B_ref(x, w1, b1, w2, b2):
        h = torch.einsum("bsd,df->bsf", x, w1) + b1
        zero = torch.zeros_like(h)
        r = torch.where(h > zero, h, zero)
        h = r * r
        out = torch.einsum("bsf,fd->bsd", h, w2) + b2
        return out

    x = A_x
    g = _sigmoid((x * gate_w).sum(-1, keepdims=True))
    a = _A_ref(x, A_wqkv, A_wo)
    b = _B_ref(x, B_w1, B_b1, B_w2, B_b2)
    return g * a + (1 - g) * b
```

```python
import re

REG_RE = re.compile(r"^(-?\|?)([vas])(\d+)\|?$")
RNG_RE = re.compile(r"^(-?\|?)([vas])\[(\d+):(\d+)\]\|?$")
TRANS = ("v_exp_f32", "v_log_f32", "v_rcp_f32", "v_rsq_f32", "v_sqrt_f32", "v_sin_f32", "v_cos_f32")


def regs_of(tok):
    tok = tok.strip()
    m = REG_RE.match(tok)
    if m:
        return [(m.group(2), int(m.group(3)))]
    m = RNG_RE.match(tok)
    if m:
        return [(m.group(2), i) for i in range(int(m.group(3)), int(m.group(4)) + 1)]
    if tok == "vcc":
        return [("s", "vcc")]
    if tok == "m0":
        return [("s", "m0")]
    if tok == "exec":
        return [("s", "exec")]
    return []


def vr(n, k=1, t="v"):
    return f"{t}{n}" if k == 1 else f"{t}[{n}:{n + k - 1}]"


class Ins:
    def __init__(self, text, tag=None, cost=None):
        self.text = text
        self.tag = tag
        self.op = text.split()[0] if text else ""
        self.reads, self.writes = set(), set()
        self.srcc = set()
        self.srcab = set()
        self.kind = "other"
        self.deps = []
        self._parse()
        self.cost = cost if cost is not None else self._cost()

    def _parse(self):
        op = self.op
        if op.endswith(":") or op.startswith(".") or op.startswith(";"):
            self.kind = "label" if op.endswith(":") else "dir"
            return
        if op in ("WAITVM", "WAITLGKM", "RESET"):
            self.kind = "pseudo"
            return
        rest = self.text[len(op):]
        toks = [t.strip() for t in rest.split(",")]
        last = toks[-1].split()
        mods = last[1:] if last else []
        if last:
            toks[-1] = last[0]
        self.mods = mods
        R = [regs_of(t) for t in toks]
        flat = lambda L: set(x for l in L for x in l)
        if op.startswith("v_mfma"):
            self.kind = "mfma"
            self.writes = set(R[0]); self.srcab = set(R[1]) | set(R[2]); self.srcc = set(R[3])
            self.reads = self.srcab | self.srcc
            self.passes = 4 if "16x16" in op else 8
        elif op.startswith("ds_read") or op.startswith("ds_bpermute") or op.startswith("ds_swizzle"):
            self.kind = "dsr"; self.writes = set(R[0]); self.reads = flat(R[1:])
        elif op.startswith("ds_write"):
            self.kind = "dsw"; self.reads = flat(R)
        elif op.startswith("buffer_load") or op.startswith("global_load"):
            if "lds" in mods or "_lds_" in op:
                self.kind = "dma"; self.reads = flat(R) | {("s", "m0")}
            else:
                self.kind = "vload"; self.writes = set(R[0]); self.reads = flat(R[1:])
        elif op.startswith("buffer_store") or op.startswith("global_store"):
            self.kind = "vstore"; self.reads = flat(R)
            self.data = set(R[0]) if op.startswith("buffer") else set(R[1])
        elif op.startswith("buffer_atomic") or op.startswith("global_atomic"):
            self.kind = "vstore"; self.reads = flat(R); self.data = set()
            if "sc0" in mods:
                self.kind = "vload"; self.writes = set(R[0])
        elif op in ("buffer_wbl2", "buffer_inv"):
            self.kind = "vstore"; self.data = set()
        elif op.startswith("s_load") or op in ("s_memtime", "s_memrealtime"):
            self.kind = "smem"; self.writes = set(R[0]); self.reads = flat(R[1:])
        elif op.startswith("s_waitcnt"):
            self.kind = "wait"
        elif op == "s_nop":
            self.kind = "nop"; self.n = int(toks[0])
        elif op == "s_barrier":
            self.kind = "barrier"
        elif op.startswith("s_cbranch") or op in ("s_branch", "s_setpc_b64", "s_endpgm", "s_swappc_b64"):
            self.kind = "branch"; self.reads = flat(R)
        elif op.startswith("s_cmp") or op.startswith("s_bitcmp") or op in ("s_setprio", "s_sleep"):
            self.kind = "salu"; self.reads = flat(R)
        elif op.startswith("s_"):
            self.kind = "salu"; self.writes = set(R[0]); self.reads = flat(R[1:])
            if "saveexec" in op:
                self.writes.add(("s", "exec"))
        elif op.startswith("v_"):
            self.kind = "valu"
            self.writes = set(R[0]); self.reads = flat(R[1:])
            if op.startswith("v_permlane") and "swap" in op:
                self.writes = flat(R); self.reads = flat(R)
            if op.startswith("v_fmac") or op.startswith("v_dot2c"):
                self.reads |= set(R[0])
            if op.startswith("v_add_co") or op.startswith("v_sub_co") or op.startswith("v_addc_co"):
                self.writes |= set(R[1])
            if op.startswith("v_dot2"):
                self.srcc = set(R[3]) if len(R) > 3 else set(R[0])
                self.srcab = set(R[1]) | set(R[2])
        else:
            raise ValueError("unknown instruction: " + self.text)

    def _cost(self):
        k = self.kind
        if k in ("dma", "vload"):
            return 2
        if k == "vstore":
            return 2
        if k == "dsw":
            return 2 if "b128" in self.op else 1
        if k == "valu" and self.op.startswith(TRANS):
            return 2
        if k in ("label", "dir"):
            return 0
        return 1

    def states(self):
        if self.kind == "nop":
            return self.n + 1
        if self.kind in ("label", "dir", "pseudo"):
            return 0
        return 1


def I(text, tag=None, cost=None):
    return Ins(text, tag, cost)


def is_v(r):
    return r[0] in ("v", "a")


def need_states(p, c):
    n = 0
    pk, ck = p.kind, c.kind
    vmem = ("dma", "vload", "vstore")
    if pk == "valu":
        vw = {r for r in p.writes if is_v(r)}
        sw = {r for r in p.writes if r[0] == "s"}
        isdot = p.op.startswith("v_dot2")
        if ck == "mfma" and vw & c.reads:
            n = max(n, 3 if isdot else 2)
        if ck == "valu":
            if c.op.startswith("v_permlane") and vw & c.reads:
                n = max(n, 2)
            if c.op.startswith(("v_readlane", "v_readfirstlane")) and vw & c.reads:
                n = max(n, 1)
            if ("row_" in c.text or "quad_perm" in c.text or "wave_" in c.text) and vw & c.reads:
                n = max(n, 2)
            if p.op.startswith(TRANS) and vw & c.reads:
                n = max(n, 1)
            if sw & c.reads:
                n = max(n, 4 if c.op.startswith(("v_readlane", "v_writelane")) else 2)
            if ("s", "exec") in sw:
                n = max(n, 4)
        if isdot:
            if ck == "valu" and c.op == p.op:
                if vw & c.srcab:
                    n = max(n, 3)
            elif vw & (c.reads | c.writes):
                n = max(n, 3)
        if ck in vmem and sw & c.reads:
            n = max(n, 5)
        if ck in ("salu", "branch", "smem") and sw & c.reads:
            n = max(n, 2)
        if ck == "branch" and ("vcc" in c.op) and ("s", "vcc") in sw:
            n = max(n, 5)
    if pk == "mfma":
        big = p.passes == 8
        if ck == "mfma":
            if p.writes & c.srcab:
                n = max(n, 12 if big else 8)
            if p.writes & c.srcc and not (p.writes == c.srcc and p.passes == c.passes):
                n = max(n, 10 if big else 6)
            if p.writes & c.writes and not (p.writes == c.writes and p.passes == c.passes):
                n = max(n, 10 if big else 6)
        elif ck in ("valu", "dsr", "dsw") + vmem:
            if p.writes & (c.reads | c.writes):
                n = max(n, 12 if big else 8)
            if p.srcc & c.writes:
                n = max(n, 7 if big else 3)
    if pk == "salu" and ("s", "m0") in p.writes and ck == "dma":
        n = max(n, 1)
    if pk == "vstore" and ("x4" in p.op or "x3" in p.op) and p.data & c.writes:
        n = max(n, 2)
    if pk == "dsw" and "b128" in p.op and ck == "valu" and (p.reads & c.writes):
        n = max(n, 1)
    return n


class Finalizer:
    def __init__(self, lgkm_age=10):
        self.lgkm_age = lgkm_age

    def run(self, ins):
        out = []
        lg = []
        vm = []
        smem = []
        stats = {"lgkm": 0, "vm": 0, "nop": 0}
        lastw = {}
        waited = set()

        def pos():
            return len(out)

        def emit(x):
            if x.kind not in ("label", "dir", "wait", "nop", "pseudo"):
                dist = 0
                need = 0
                for p in reversed(out[-24:]):
                    r = need_states(p, x) - dist
                    need = max(need, r)
                    dist += p.states()
                    if dist > 14:
                        break
                while need > 0:
                    k = min(need, 16)
                    out.append(Ins(f"s_nop {k - 1}"))
                    stats["nop"] += 1
                    need -= k
            out.append(x)

        def wait(l=None, v=None):
            parts = []
            if v is not None:
                v = min(v, 63)
                if len(vm) > v:
                    parts.append(f"vmcnt({v})")
                    del vm[: len(vm) - v]
                    stats["vm"] += 1
            if l is not None:
                l = min(l, 15)
                if smem:
                    l = 0
                if len(lg) > l or smem:
                    parts.append(f"lgkmcnt({l})")
                    del lg[: len(lg) - l]
                    del smem[:]
                    stats["lgkm"] += 1
            if parts:
                out.append(Ins("s_waitcnt " + " ".join(parts)))

        for x in ins:
            if x.kind == "pseudo":
                a = x.text.split()
                if x.op == "RESET":
                    del lg[:]; del vm[:]; del smem[:]
                elif x.op == "WAITLGKM":
                    wait(l=0)
                elif x.op == "WAITVM":
                    if a[1] == "ALL":
                        wait(v=0)
                    else:
                        tags = set(a[1:])
                        waited |= tags
                        idx = [i for i, (p, _) in enumerate(vm) if p.tag in tags]
                        if idx:
                            wait(v=len(vm) - 1 - idx[-1])
                continue
            if x.kind == "wait":
                m = re.search(r"vmcnt\((\d+)\)", x.text)
                if m:
                    n = int(m.group(1)); del vm[: max(0, len(vm) - n)]
                m = re.search(r"lgkmcnt\((\d+)\)", x.text)
                if m:
                    n = int(m.group(1)); del lg[: max(0, len(lg) - n)]
                    if n == 0:
                        del smem[:]
                out.append(x)
                continue
            assert x.tag is None or x.tag not in waited, f"tag {x.tag} issued after its wait: {x.text}"
            for d in x.deps:
                for r in d.writes & x.reads:
                    assert lastw.get(r) is d, f"bad producer for {r} in {x.text}: want {d.text}, have {lastw.get(r) and lastw[r].text}"
            for r in x.writes:
                lastw[r] = x
            touch = x.reads | x.writes
            lw = vw = None
            idx = [i for i, (p, _) in enumerate(lg) if p.writes & touch]
            if idx:
                i = idx[-1]
                while i + 1 < len(lg) and pos() - lg[i + 1][1] >= self.lgkm_age:
                    i += 1
                lw = len(lg) - 1 - i
            if any(p.writes & touch for p in smem):
                lw = 0
            idx = [i for i, (p, _) in enumerate(vm) if p.writes & touch]
            if idx:
                vw = len(vm) - 1 - idx[-1]
            if lw is not None or vw is not None:
                wait(l=lw, v=vw)
            emit(x)
            if x.kind in ("dsr", "dsw"):
                lg.append((x, pos()))
            elif x.kind in ("dma", "vload", "vstore"):
                vm.append((x, pos()))
                assert len(vm) <= 63 or True
            elif x.kind == "smem":
                smem.append(x)
        self.stats = stats
        return out


def sched(mf, streams, cap=2, flush=True):
    out = []
    heads = [0] * len(streams)
    for g, m in enumerate(mf):
        out.append(m)
        budget = cap
        progress = True
        while progress:
            progress = False
            for si, st in enumerate(streams):
                if heads[si] >= len(st):
                    continue
                e, it = st[heads[si]]
                if e > g:
                    continue
                items = it if isinstance(it, list) else [it]
                c = sum(i.cost for i in items)
                if c <= budget or (budget == cap and c > cap):
                    out.extend(items)
                    budget -= c
                    heads[si] += 1
                    progress = True
                    break
            if budget <= 0:
                for si, st in enumerate(streams):
                    while heads[si] < len(st):
                        e, it = st[heads[si]]
                        items = it if isinstance(it, list) else [it]
                        if e <= g and sum(i.cost for i in items) == 0:
                            out.extend(items); heads[si] += 1
                        else:
                            break
                break
    left = []
    for si, st in enumerate(streams):
        rest = st[heads[si]:]
        if flush:
            for e, it in rest:
                out.extend(it if isinstance(it, list) else [it])
        left.append(rest)
    return out if flush else (out, left)


def text_of(ins):
    return "\n".join(("" if x.kind in ("label", "dir") else "    ") + x.text for x in ins)
```

```python
import sys
from asmlib import *

NAME = "gated_mix__sliding_local_dilated__dense_activation_squared_relu__prompt"
OPT = dict(stflav="nt", stamp=0)
for a in sys.argv[1:]:
    k, v = a.split("=")
    OPT[k] = int(v) if v.lstrip("-").isdigit() else v
STF = OPT["stflav"].replace("plain", "")

WS_G = 0x2400000
WS_STAMP = 0x2500000
WS_SIZE = 0x3000000
MF = "v_mfma_f32_16x16x32_bf16"

SX, SWA, SWB, SSM, SWS, SOUT, SB2 = 28, 32, 36, 40, 44, 48, 52
sW, sMT, sSRC = 56, 57, 58
srd = lambda n: f"s[{n}:{n + 3}]"


class P(list):
    def __call__(self, text, tag=None, cost=None):
        for t in text.split("\n"):
            t = t.strip()
            if t:
                self.append(I(t, tag, cost))


def mk_srd(p, n, ptr, size, bias=0):
    if bias:
        p(f"s_sub_u32 s{n}, s{ptr}, {bias}\ns_subb_u32 s{n + 1}, s{ptr + 1}, 0")
    else:
        p(f"s_mov_b32 s{n}, s{ptr}\ns_mov_b32 s{n + 1}, s{ptr + 1}")
    p(f"s_mov_b32 s{n + 2}, {size + bias}\ns_mov_b32 s{n + 3}, 0x20000")


class Addr:
    def __init__(self, regs, k0=0):
        self.regs, self.k0 = regs, k0

    def at(self, off):
        k = off >> 16
        return f"v{self.regs[k - self.k0]} offset:{off & 0xffff}"


nstamp = [0]


def stamp(p):
    if OPT["stamp"]:
        n = nstamp[0]
        nstamp[0] += 1
        assert n < 8
        p(f"s_memrealtime s[{70 + 4 * n}:{71 + 4 * n}]\ns_memtime s[{72 + 4 * n}:{73 + 4 * n}]")
        p("s_waitcnt lgkmcnt(0)")


def stamp_out(p):
    if OPT["stamp"]:
        p("s_waitcnt vmcnt(0)")
        stamp(p)
        n = nstamp[0]
        p(f"s_lshl_b32 s59, s2, 2\ns_add_u32 s59, s59, s{sW}\ns_lshl_b32 s59, s59, 6\ns_add_u32 s59, s59, {WS_STAMP}")
        p("v_mov_b32 v1, 0")
        for i in range(n):
            p(f"v_mov_b32 v2, s{70 + 4 * i}\nv_mov_b32 v3, s{72 + 4 * i}")
            p(f"buffer_store_dwordx2 v[2:3], v1, {srd(SWS)}, s59 offen offset:{8 * i}")
        nstamp[0] = 1


def phase_b(p, units, hreg, trB, hrd, nfirst=10):
    frags = []
    for ui, u in enumerate(units):
        for qi, k in enumerate(u["ks"]):
            frags.append((ui, qi, k))
    ntile_ks = {}
    for ui, qi, k in frags:
        ntile_ks.setdefault(units[ui]["tile"], []).append(k)

    rdc = {}

    def rd(fi):
        if fi not in rdc:
            ui, qi, (ks, off, hoff) = frags[fi]
            w = 48 + 4 * (fi % 4)
            rdc[fi] = [I(f"ds_read_b64_tr_b16 {vr(w, 2)}, {trB.at(off)}"),
                       I(f"ds_read_b64_tr_b16 {vr(w + 2, 2)}, {trB.at(off + hoff)}")]
        return rdc[fi]

    mf, s_rd, s_dma, s_ep = [], [], [], []
    for x in rd(0) + rd(1):
        p.append(x)
    for x in hrd[:nfirst]:
        p.append(x)
    s_h = [(i, x) for i, x in enumerate(hrd[nfirst:])]
    seen = {}
    for fi, (ui, qi, (ks, off, hoff)) in enumerate(frags):
        t = units[ui]["tile"]
        first = t not in seen
        seen[t] = seen.get(t, 0) + 1
        g0 = len(mf)
        w = 48 + 4 * (fi % 4)
        for b in range(8):
            c = 64 + 32 * (t % 2) + 4 * b
            mf.append(I(f"{MF} {vr(c, 4)}, {vr(w, 4)}, {hreg(ks, b)}, {'0' if first else vr(c, 4)}"))
            mf[-1].deps = rd(fi) + [hrd[ks * 8 + b]]
        nf = fi + 2
        if nf < len(frags):
            if frags[nf][1] == 0:
                nu = units[frags[nf][0]]
                s_rd.append((g0, [I(f"WAITVM {nu['tag']}", cost=1), I("s_barrier")]))
                items = units[ui].get("dma", [])
                span = 8 * len(units[ui]["ks"])
                nb = sum(1 for it in items if it.kind == "dma")
                j = 0
                for it in items:
                    e = g0 + 4 + (span * j) // max(nb, 1)
                    s_dma.append((e + (1 if it.kind == "dma" else 0), it))
                    if it.kind == "dma":
                        j += 1
            r = rd(nf)
            s_rd.append((g0 + 1, r[0]))
            s_rd.append((g0 + 3, r[1]))
        if seen[t] == len(ntile_ks[t]):
            e = len(mf) + 1
            span = 8 * len(ntile_ks[t])
            for pp in range(4):
                c = 64 + 32 * (t % 2) + 8 * pp
                for i in range(4):
                    s_ep.append((e + pp * (span // 5), I(f"v_cvt_pk_bf16_f32 v{32 + 4 * pp + i}, v{c + 2 * i}, v{c + 2 * i + 1}")))
                    s_ep[-1][1].deps = mf[-8:]
                s_ep.append((e + pp * (span // 5) + 5,
                             I(f"buffer_store_dwordx4 {vr(32 + 4 * pp, 4)}, v23, {srd(SWS)}, s61 offen offset:{1024 * pp} {STF}", tag=f"P{t}")))
            s_ep.append((e, I("s_add_u32 s61, s61, 16384")))
    p.extend(sched(mf, [s_rd, s_dma, s_h, s_ep]))


def role_ffn():
    p = P()
    XR = 98304
    p("L_ffn:")
    p(f"""
    v_lshrrev_b32 v24, 3, v0
    v_and_b32 v25, 7, v0
    s_mul_i32 s59, s{sW}, {32 * 1152}
    v_mul_u32_u24 v26, 1152, v24
    v_add_u32 v26, s59, v26
    v_lshrrev_b32 v27, 1, v24
    v_xor_b32 v27, v25, v27
    v_lshlrev_b32 v27, 4, v27
    v_add_u32 v1, v26, v27
    v_xor_b32 v27, 64, v27
    v_add_u32 v2, v26, v27
    v_add_u32 v2, 8192, v2
    v_add_u32 v3, 16384, v1
    v_add_u32 v4, 16384, v2
    s_and_b32 s59, s{sW}, 1
    s_lshl_b32 s59, s59, 2
    v_and_or_b32 v27, v24, 2, s59
    v_xor_b32 v27, v25, v27
    s_mul_i32 s59, s{sW}, {8 * 9216}
    s_add_u32 s59, s59, 2048
    v_mul_u32_u24 v28, 9216, v24
    v_lshl_add_u32 v28, v27, 4, v28
    v_add_u32 v5, s59, v28
    v_subrev_u32 v6, 896, v5
    v_subrev_u32 v7, 1792, v5
    s_mul_i32 s62, s{sMT}, 147456
    s_mul_i32 s63, s{sSRC}, 768
    s_mul_i32 s64, s{sSRC}, {384 * 1152}
    s_lshl_b32 s65, s{sW}, 12
    s_add_u32 s65, s65, {XR}
    s_mul_i32 s66, s{sW}, 6144
    """)
    p("WAITLGKM")
    mk_srd(p, SX, 4, 2048 * 1152)
    mk_srd(p, SWA, 12, 576 * 9216, bias=2048)

    def dma_ring(st, half):
        o = [I(f"s_add_u32 m0, s65, {(st % 4) * 16384}")]
        if st < 9:
            o.append(I(f"s_add_u32 s60, s62, {st * 128}"))
            regs, sr = [1, 2, 3, 4], SX
        else:
            n = st - 9
            o.append(I(f"s_add_u32 s60, s64, {(n % 3) * 147456 + (n // 3) * 128}"))
            regs, sr = [8, 9, 10, 11], SWB
        for q in (range(4) if half is None else (2 * half, 2 * half + 1)):
            o.append(I(f"buffer_load_dwordx4 v{regs[q]}, {srd(sr)}, s60 offen offset:{1024 * q} lds", tag=f"R{st}"))
        return o

    def dma_w1(j):
        o = []
        for h in range(2):
            o.append(I(f"s_add_u32 m0, s66, {(j % 4) * 24576 + h * 3072}"))
            o.append(I(f"s_add_u32 s60, s63, {j * 32 * 9216 + h * 384}"))
            for q in range(3):
                o.append(I(f"buffer_load_dwordx4 v{5 + q}, {srd(SWA)}, s60 offen offset:{1024 * q} lds", tag=f"W{j}"))
        return o

    p.extend(dma_ring(0, None) + dma_w1(0))
    mk_srd(p, SSM, 14, 4608 * 2)
    p(f"""
    v_lshrrev_b32 v27, 4, v0
    v_lshlrev_b32 v27, 3, v27
    s_lshl_b32 s59, s{sW}, 6
    s_add_u32 s59, s59, s63
    """)
    for t in range(6):
        p(f"buffer_load_dwordx2 {vr(28 + 2 * t, 2)}, v27, {srd(SSM)}, s59 offen offset:{(t // 2) * 256 + (t % 2) * 32}")
    p.extend(dma_w1(1) + dma_ring(1, None) + dma_w1(2) + dma_w1(3) + dma_ring(2, None) + dma_ring(3, None))
    mk_srd(p, SWB, 16, 4608 * 1152)
    mk_srd(p, SWS, 26, WS_SIZE)
    p(f"""
    v_and_b32 v27, 6, v24
    v_xor_b32 v27, v25, v27
    v_lshl_add_u32 v8, v27, 4, v26
    v_add_u32 v9, 8192, v8
    v_add_u32 v10, 16384, v8
    v_add_u32 v11, 24576, v8
    v_and_b32 v24, 3, v24
    v_and_b32 v25, 3, v0
    v_lshlrev_b32 v25, 3, v25
    v_lshrrev_b32 v26, 4, v0
    v_bfe_u32 v27, v0, 2, 2
    s_and_b32 s59, s{sW}, 1
    s_lshl_b32 s59, s59, 1
    v_xor_b32 v12, s59, v24
    v_lshl_add_u32 v12, v12, 5, v25
    v_lshl_add_u32 v12, v27, 7, v12
    v_mul_u32_u24 v13, 6144, v26
    v_add_u32 v12, v12, v13
    s_lshr_b32 s59, s{sW}, 1
    s_lshl_b32 s59, s59, 10
    v_add_u32 v12, s59, v12
    v_xor_b32 v13, 32, v12
    v_add_u32 v14, 0x10000, v12
    v_add_u32 v15, 0x10000, v13
    v_xor_b32 v22, s{sW}, v24
    v_lshl_add_u32 v22, v22, 5, v25
    v_lshrrev_b32 v27, 2, v0
    v_lshl_add_u32 v22, v27, 7, v22
    v_add_u32 v22, {XR}, v22
    v_and_b32 v24, 15, v0
    v_lshrrev_b32 v25, 1, v24
    v_xor_b32 v25, v25, v26
    v_lshlrev_b32 v25, 4, v25
    v_lshl_add_u32 v16, v24, 7, v25
    v_add_u32 v16, {XR}, v16
    v_xor_b32 v17, 64, v16
    v_lshlrev_b32 v23, 4, v0
    v_add_u32 v21, 0x10000, v23
    s_lshl_b32 s59, s{sW}, 13
    v_add_u32 v18, s59, v23
    v_add_u32 v19, 0x10000, v18
    s_lshl_b32 s61, s{sMT}, 4
    s_add_u32 s61, s61, s{sSRC}
    s_mul_i32 s61, s61, 36
    s_add_u32 s61, s61, s{sW}
    s_lshl_b32 s61, s61, 12
    """)
    trA = [Addr([12, 14]), Addr([13, 15])]
    xr = [Addr([16]), Addr([17])]
    hw = Addr([18, 19])
    hr = Addr([23, 21])
    trB = Addr([22])
    xf = lambda s, b: vr(32 * s + 4 * b, 4, "a")
    wf = lambda s, t: 64 + 24 * s + 4 * t
    acc = lambda t, b: 64 + 4 * (t * 8 + b)

    def reads(j):
        s = j % 2
        o = []
        for t in range(6):
            off = (j % 4) * 24576 + (t // 2) * 2048
            w = wf(s, t)
            o.append([I(f"ds_read_b64_tr_b16 {vr(w, 2, 'a')}, {trA[t % 2].at(off)}"),
                      I(f"ds_read_b64_tr_b16 {vr(w + 2, 2, 'a')}, {trA[t % 2].at(off + 512)}")])
        xs = [I(f"ds_read_b128 {xf(s, b)}, {xr[j % 2].at(((j // 2) % 4) * 16384 + b * 2048)}") for b in range(8)]
        return o[0] + xs + [y for x in o[1:] for y in x]

    p("WAITVM R0 W0\ns_barrier")
    p.extend(reads(0))
    for t in range(6):
        for i in range(2):
            p(f"v_lshlrev_b32 v{40 + 4 * t + 2 * i}, 16, v{28 + 2 * t + i}")
            p(f"v_and_b32 v{41 + 4 * t + 2 * i}, 0xffff0000, v{28 + 2 * t + i}")
    p("WAITLGKM")
    stamp(p)

    def epi(u, b, slot):
        o = []
        tmp = 32 + 4 * (slot % 4)
        for e in range(2):
            c = acc(2 * u + e, b)
            for i in range(4):
                o.append(I(f"v_mul_f32 v{c + i}, v{c + i}, |v{c + i}|"))
            for i in range(2):
                o.append(I(f"v_cvt_pk_bf16_f32 v{tmp + 2 * e + i}, v{c + 2 * i}, v{c + 2 * i + 1}"))
        for i in range(4):
            o.append(I(f"v_pk_max_i16 v{tmp + i}, v{tmp + i}, 0"))
        o.append(I(f"ds_write_b128 {hw.at(u * 32768 + b * 1024).replace(' offset', f', {vr(tmp, 4)} offset')}"))
        return o

    for j in range(18):
        s = j % 2
        last = j == 17
        order = [(t, b) for t in range(6) for b in range(8)]
        if last:
            order = [(2 * u + e, b) for u in range(3) for b in range(8) for e in range(2)]
        mf = [I(f"{MF} {vr(acc(t, b), 4)}, {vr(wf(s, t), 4, 'a')}, {xf(s, b)}, {vr(40 + 4 * t if j == 0 else acc(t, b), 4)}") for t, b in order]
        s_rd, s_dma, s_ep = [], [], []
        tags = f"W{j + 1} R{(j + 1) // 2}" if not last else "none"
        s_rd.append((0, [I(f"WAITVM {tags}", cost=1), I("s_barrier")]))
        if not last:
            for i, x in enumerate(reads(j + 1)):
                s_rd.append((2 + 2 * i, x))
        d = []
        if j + 4 < 18:
            d += dma_w1(j + 4)
        if j >= 1:
            st = (j - 1) // 2 + 4
            d += dma_ring(st, None if last else (j - 1) % 2)
        k = 0
        for it in d:
            s_dma.append((1 + 6 * k + (2 if it.kind == "dma" else 0), it))
            if it.kind == "dma":
                k += 1
        if last:
            n = 0
            for u in range(3):
                for b in range(8):
                    for x in epi(u, b, n):
                        s_ep.append((16 * u + 2 * b + 5, x))
                    n += 1
        p.extend(sched(mf, [s_rd, s_dma, s_ep]))
        p("WAITLGKM")
    stamp(p)
    p("WAITVM R9\ns_barrier")

    def hreg(ks, b):
        n = ks * 8 + b
        return vr(4 * n, 4, "a") if n < 64 else vr(128 + 4 * (n - 64), 4)

    hrd = [I(f"ds_read_b128 {hreg(n // 8, n % 8)}, {hr.at(n * 1024)}") for n in range(96)]
    units = []
    for n in range(27):
        st = 9 + n
        u = dict(tile=n // 3, tag=f"R{st}",
                 ks=[(4 * (n % 3) + q, (st % 4) * 16384 + q * 4096, 2048) for q in range(4)])
        if n >= 1 and n + 3 < 27:
            u["dma"] = dma_ring(st + 3, None)
        units.append(u)
    phase_b(p, units, hreg, trB, hrd)
    stamp(p)
    stamp_out(p)
    p("s_endpgm")
    return p


def role_att():
    p = P()
    WSL, XR, XSL, GT, GG = 28672, 114688, 20480, 155648, 162304
    KR, QR, VR, OR = 0, 41472, 82944, 0
    WO = [126720, 37376, 57856, 82944, 103424]
    p("L_att:")
    p(f"""
    s_sub_u32 s67, s{sSRC}, 12
    v_lshrrev_b32 v24, 3, v0
    v_and_b32 v25, 7, v0
    v_lshrrev_b32 v27, 1, v24
    v_xor_b32 v27, v25, v27
    v_lshlrev_b32 v27, 4, v27
    v_mul_u32_u24 v26, 2304, v24
    s_mul_i32 s62, s{sMT}, 147456
    s_add_u32 s62, s62, 4096
    s_mul_i32 s63, s{sW}, 5
    """)
    for q in range(5):
        p(f"""
        s_add_u32 s59, s63, {q}
        s_and_b32 s60, s59, 7
        s_mul_i32 s60, s60, {16 * 1152}
        s_lshr_b32 s64, s59, 3
        s_mul_i32 s64, s64, 1152
        s_add_u32 s60, s60, s64
        s_sub_u32 s64, s59, 32
        s_mul_i32 s64, s64, 1152
        s_cmp_ge_u32 s59, 16
        s_cselect_b32 s60, s64, s60
        s_add_u32 s60, s60, s62
        s_sub_u32 s60, s60, {1024 * (q % 4)}
        s_cmp_eq_u32 s{sMT}, 0
        s_cselect_b32 s64, 16, 18
        s_cmp_ge_u32 s59, s64
        s_cselect_b32 s60, 0x80000000, s60
        s_and_b32 s64, s59, 1
        s_lshl_b32 s64, s64, 6
        v_xor_b32 v28, s64, v27
        v_add3_u32 v{1 + q}, v26, v28, s60
        """)
    p(f"""
    s_and_b32 s59, s{sW}, 1
    s_lshl_b32 s59, s59, 2
    v_and_or_b32 v27, v24, 2, s59
    v_xor_b32 v27, v25, v27
    s_mul_i32 s59, s{sW}, {8 * 3456}
    s_add_u32 s59, s59, 2048
    v_mul_u32_u24 v28, 3456, v24
    v_add_u32 v28, s59, v28
    v_lshl_add_u32 v6, v27, 4, v28
    v_subrev_u32 v7, 896, v6
    v_subrev_u32 v8, 1792, v6
    v_lshrrev_b32 v29, 1, v27
    v_mul_u32_u24 v30, 1152, v29
    v_and_b32 v27, 1, v27
    v_lshl_add_u32 v30, v27, 4, v30
    v_add_u32 v30, v30, v28
    v_subrev_u32 v30, {2048 - 256}, v30
    v_cmp_eq_u32 vcc, 3, v29
    v_mov_b32 v31, 0x80000000
    v_cndmask_b32 v9, v30, v31, vcc
    s_mul_i32 s64, s67, 288
    s_mul_i32 s65, s{sW}, 5120
    s_mul_i32 s66, s{sW}, 7168
    """)
    p("WAITLGKM")
    mk_srd(p, SX, 4, 2048 * 1152, bias=4096)
    mk_srd(p, SWA, 6, 576 * 3456, bias=2048)

    def dma5(base, regs, sr, soff, tag):
        o = [I(f"s_add_u32 m0, s65, {base}"), I(soff)]
        for q in range(4):
            o.append(I(f"buffer_load_dwordx4 v{regs[q]}, {srd(sr)}, s60 offen offset:{1024 * q} lds", tag=tag))
        o.append(I(f"s_add_u32 m0, s65, {base + 4096}"))
        o.append(I(f"buffer_load_dwordx4 v{regs[4]}, {srd(sr)}, s60 offen lds", tag=tag))
        return o

    dma_x = lambda J: dma5(XR + (J % 2) * XSL, [1, 2, 3, 4, 5], SX, f"s_mov_b32 s60, {J * 128}", f"R{J}")
    dma_wo = lambda t: dma5(WO[t % 5], [15, 16, 17, 18, 19], SWB, f"s_add_u32 s60, s68, {t * 128}", f"O{t}")

    def dma_w(j):
        tg = f"W{j}"
        o = [I(f"s_add_u32 m0, s66, {(j % 4) * WSL}"), I(f"s_add_u32 s60, s64, {j * 32 * 3456}")]
        for q, r in enumerate([6, 7, 7, 8]):
            o.append(I(f"buffer_load_dwordx4 v{r}, {srd(SWA)}, s60 offen offset:{1024 * q} lds", tag=tg))
        o.append(I(f"s_add_u32 m0, s66, {(j % 4) * WSL + 4096}"))
        o.append(I(f"s_add_u32 s59, s64, {j * 32 * 3456 + 2304}"))
        o.append(I(f"buffer_load_dwordx4 v9, {srd(SWA)}, s60 offen offset:2048 lds", tag=tg))
        o.append(I(f"buffer_load_dwordx4 v7, {srd(SWA)}, s59 offen offset:1024 lds", tag=tg))
        o.append(I(f"buffer_load_dwordx4 v6, {srd(SWA)}, s59 offen lds", tag=tg))
        return o

    mk_srd(p, SSM, 20, 576 * 2)
    p(f"""
    s_lshl_b32 s59, s{sW}, 6
    v_add_u32 v32, s59, v0
    v_lshlrev_b32 v33, 1, v32
    """)
    for i in range(3):
        p(f"buffer_load_ushort v{34 + 2 * i}, v33, {srd(SSM)}, 0 offen offset:{512 * i}")
    p.extend(dma_x(0) + dma_w(0) + dma_w(1) + dma_x(1) + dma_w(2) + dma_w(3))
    mk_srd(p, SWB, 8, 576 * 1152)
    mk_srd(p, SWS, 26, WS_SIZE)
    for q in range(5):
        p(f"""
        s_add_u32 s59, s63, {q}
        s_lshl_b32 s60, s59, 3
        v_add_u32 v26, s60, v24
        v_lshrrev_b32 v27, 4, v26
        v_lshl_add_u32 v27, v27, 1, v26
        v_subrev_u32 v28, 128, v26
        v_lshrrev_b32 v28, 1, v28
        v_mul_u32_u24 v28, 18, v28
        v_and_b32 v29, 1, v26
        v_add3_u32 v28, v28, v29, 16
        v_cmp_gt_u32 vcc, 128, v26
        v_cndmask_b32 v27, v28, v27, vcc
        v_mul_u32_u24 v27, 1152, v27
        s_and_b32 s60, s59, 1
        s_lshl_b32 s60, s60, 2
        v_and_or_b32 v28, v24, 2, s60
        v_xor_b32 v28, v25, v28
        v_lshl_add_u32 v27, v28, 4, v27
        s_cmp_ge_u32 s59, 18
        s_mov_b32 s60, {-1024 * (q % 4)}
        s_cselect_b32 s60, 0x80000000, s60
        v_add_u32 v{15 + q}, s60, v27
        """)
    p(f"""
    s_mul_i32 s68, s67, {144 * 1152}
    v_and_b32 v26, 3, v32
    v_lshlrev_b32 v26, 3, v26
    v_bfe_u32 v27, v32, 2, 1
    v_lshl_add_u32 v26, v27, 9, v26
    v_bfe_u32 v27, v32, 3, 4
    v_lshl_add_u32 v26, v27, 5, v26
    v_lshrrev_b32 v27, 7, v32
    v_lshl_add_u32 v26, v27, 10, v26
    v_add_u32 v33, {GT}, v26
    v_and_b32 v24, 3, v24
    v_and_b32 v25, 3, v0
    v_lshlrev_b32 v25, 3, v25
    v_lshrrev_b32 v26, 4, v0
    v_bfe_u32 v27, v0, 2, 2
    v_xor_b32 v28, s{sW}, v24
    v_lshl_add_u32 v28, v28, 5, v25
    v_lshl_add_u32 v28, v27, 7, v28
    v_mul_u32_u24 v10, 7168, v26
    v_add_u32 v10, v10, v28
    v_add_u32 v11, 0x10000, v10
    v_lshl_add_u32 v20, v26, 10, v28
    v_add_u32 v21, 0x10000, v20
    v_add_u32 v22, 0x20000, v20
    v_add_u32 v12, 6144, v10
    v_lshlrev_b32 v29, 5, v26
    v_lshl_add_u32 v29, v27, 3, v29
    v_add_u32 v29, {GT}, v29
    s_cmp_eq_u32 s{sW}, 3
    s_cselect_b64 vcc, -1, 0
    s_mov_b32 s62, {WSL}
    s_mov_b32 s69, {-3 * WSL}
    s_cselect_b32 s62, 128, s62
    s_cselect_b32 s69, 640, s69
    v_cndmask_b32 v12, v12, v29, vcc
    v_and_b32 v24, 15, v0
    v_lshrrev_b32 v25, 1, v24
    v_xor_b32 v25, v25, v26
    v_lshlrev_b32 v25, 4, v25
    v_lshl_add_u32 v13, v24, 7, v25
    v_add_u32 v13, {XR}, v13
    v_xor_b32 v14, 64, v13
    v_lshlrev_b32 v23, 4, v0
    s_lshl_b32 s61, s{sMT}, 4
    s_add_u32 s61, s61, s{sSRC}
    s_mul_i32 s61, s61, 36
    s_add_u32 s61, s61, s{sW}
    s_lshl_b32 s61, s61, 12
    """)
    for i in range(3):
        p(f"v_lshl_or_b32 v{34 + 2 * i}, v{34 + 2 * i}, 16, v{34 + 2 * i}\nv_mov_b32 v{35 + 2 * i}, v{34 + 2 * i}")
        p(f"ds_write_b64 v33, {vr(34 + 2 * i, 2)} offset:{2048 * i}")
    trA = Addr([10, 11])
    xr = [Addr([13]), Addr([14])]
    xf = lambda s, b: vr(36 * s + 4 * b, 4, "a")
    wf = lambda s, t: 72 + 28 * s + 4 * t
    nb = [8, 8, 9, 9, 9, 9, 9]
    accbase = [48, 80, 112, 148, 184, 220]
    acc = lambda t, b: vr(accbase[t] + 4 * b, 4) if t < 6 else vr(128 + 4 * b, 4, "a")

    def reads(j):
        s = j % 2
        o = []
        for t in range(7):
            w = wf(s, t)
            if t < 6:
                off = (j % 4) * WSL + t * 1024
                a0, a1 = trA.at(off), trA.at(off + 512)
            else:
                a0, a1 = "v12", "v12 offset:512"
            o.append([I(f"ds_read_b64_tr_b16 {vr(w, 2, 'a')}, {a0}"), I(f"ds_read_b64_tr_b16 {vr(w + 2, 2, 'a')}, {a1}")])
        o[6].append(I(f"v_add_u32 v12, s{69 if j % 4 == 3 else 62}, v12"))
        xs = [I(f"ds_read_b128 {xf(s, b)}, {xr[j % 2].at(((j // 2) % 2) * XSL + b * 2048)}") for b in range(9)]
        return o[0] + xs + [y for x in o[1:] for y in x]

    p("WAITVM R0 W0\nWAITLGKM\ns_barrier")
    p.extend(reads(0))
    p("WAITLGKM")
    stamp(p)

    ep_addr = P()
    ep_addr(f"""
    v_mul_u32_u24 v27, 576, v26
    s_mul_i32 s59, s{sW}, {8 * 288}
    v_add_u32 v27, s59, v27
    v_lshl_add_u32 v28, v24, 2, v27
    v_add_u32 v29, 20736, v28
    v_add_u32 v30, 9216, v28
    v_add_u32 v31, {9216 + 20736}, v28
    v_add_u32 v32, {QR}, v28
    v_add_u32 v33, {QR + 20736}, v28
    v_add_u32 v34, {QR + 9216}, v28
    v_add_u32 v35, {QR + 9216 + 20736}, v28
    v_lshrrev_b32 v25, 3, v24
    v_mul_u32_u24 v25, {20736 - 32}, v25
    v_add_u32 v36, v28, v25
    v_add_u32 v37, 9216, v36
    s_mul_i32 s59, s{sW}, {16 * 152}
    s_add_u32 s59, s59, {VR}
    v_mul_u32_u24 v38, 152, v24
    v_add_u32 v38, s59, v38
    v_lshl_add_u32 v38, v26, 3, v38
    v_lshrrev_b32 v25, 1, v26
    v_mul_u32_u24 v25, {21888 - 16}, v25
    v_add_u32 v39, v38, v25
    """)

    def epi(t, b, n):
        c = accbase[t] + 4 * b
        tmp = 40 + 2 * (n % 4)
        o = [I(f"v_cvt_pk_bf16_f32 v{tmp}, v{c}, v{c + 1}"), I(f"v_cvt_pk_bf16_f32 v{tmp + 1}, v{c + 2}, v{c + 3}")]
        e, q = b // 4, b % 4
        if t < 4:
            if b < 8:
                a = (32 if t < 2 else 28) + 2 * (t % 2) + e
                o.append(I(f"ds_write2_b32 v{a}, v{tmp}, v{tmp + 1} offset0:{16 * q + 8} offset1:{16 * q + 80}"))
            else:
                o.append(I(f"ds_write2_b32 v{36 + t % 2}, v{tmp}, v{tmp + 1} offset0:0 offset1:72"))
        else:
            if b < 8:
                o.append(I(f"ds_write_b64 v38, {vr(tmp, 2)} offset:{e * 21888 + (t % 2) * 9728 + 32 * q + 16}"))
            else:
                o.append(I(f"ds_write_b64 v39, {vr(tmp, 2)} offset:{(t % 2) * 9728}"))
        return o

    for j in range(18):
        s = j % 2
        last = j == 17
        mf, ends = [], []
        for t in range(7):
            for b in range(nb[t]):
                a_, b_ = vr(wf(s, t), 4, "a"), xf(s, b)
                if t in (4, 5):
                    a_, b_ = b_, a_
                mf.append(I(f"{MF} {acc(t, b)}, {a_}, {b_}, {'0' if j == 0 else acc(t, b)}"))
                ends.append((t, b))
        s_rd, s_dma, s_ep = [], [], []
        tags = f"W{j + 1} R{(j + 1) // 2}" if not last else "none"
        s_rd.append((0, [I(f"WAITVM {tags}", cost=1), I("s_barrier")]))
        if not last:
            for i, x in enumerate(reads(j + 1)):
                s_rd.append((2 + 2 * i, x))
        d = []
        if j % 2 == 1 and (j - 1) // 2 + 2 < 9:
            d += dma_x((j - 1) // 2 + 2)
        if j + 4 < 18:
            d += dma_w(j + 4)
        if last:
            d += dma_wo(0)
        k = 0
        nd = sum(1 for it in d if it.kind == "dma")
        for it in d:
            s_dma.append((1 + (56 * k) // max(nd, 1) + (2 if it.kind == "dma" else 0), it))
            if it.kind == "dma":
                k += 1
        if j == 16:
            s_ep += [(4, x) for x in ep_addr]
        if last:
            for n, (t, b) in enumerate(ends):
                if t < 6:
                    s_ep += [(n + 4, x) for x in epi(t, b, n)]
        p.extend(sched(mf, [s_rd, s_dma, s_ep]))
        if not last:
            p("WAITLGKM")
    stamp(p)
    p(f"s_cmp_eq_u32 s{sW}, 2\ns_cbranch_scc1 L_v8\ns_cmp_eq_u32 s{sW}, 3\ns_cbranch_scc1 L_gate")
    p(f"""
    s_cmp_eq_u32 s{sW}, 0
    s_mov_b32 s59, {KR + 56 * 288}
    s_cselect_b32 s59, {QR + 64 * 288}, s59
    v_add_u32 v28, s59, v28
    v_add_u32 v29, s59, v29
    v_add_u32 v36, s59, v36
    """)
    for b in range(9):
        c = 48 + 4 * b
        for i in range(4):
            p(f"v_accvgpr_read_b32 v{c + i}, a{128 + 4 * b + i}")
        p(f"v_cvt_pk_bf16_f32 v{c}, v{c}, v{c + 1}\nv_cvt_pk_bf16_f32 v{c + 1}, v{c + 2}, v{c + 3}")
        if b < 8:
            p(f"ds_write2_b32 v{28 + b // 4}, v{c}, v{c + 1} offset0:{16 * (b % 4) + 8} offset1:{16 * (b % 4) + 80}")
        else:
            p(f"ds_write2_b32 v36, v{c}, v{c + 1} offset0:0 offset1:72")
    p("s_branch L_join\nL_v8:\ns_nop 7")
    p(f"""
    v_mul_u32_u24 v28, {4 * 152}, v26
    v_lshl_add_u32 v28, v24, 1, v28
    v_add_u32 v28, {VR + 128 * 152}, v28
    v_lshrrev_b32 v25, 3, v24
    v_mul_u32_u24 v25, {21888 - 16}, v25
    v_add_u32 v29, v28, v25
    """)
    for b in range(9):
        c = 48 + 4 * b
        for i in range(4):
            p(f"v_accvgpr_read_b32 v{c + i}, a{128 + 4 * b + i}")
        p(f"v_cvt_pk_bf16_f32 v{c}, v{c}, v{c + 1}\nv_cvt_pk_bf16_f32 v{c + 1}, v{c + 2}, v{c + 3}")
        off = (b // 4) * 21888 + 32 * (b % 4) + 16 if b < 8 else 0
        for i in range(4):
            p(f"ds_write_b16{'_d16_hi' if i % 2 else ''} v{28 if b < 8 else 29}, v{c + i // 2} offset:{off + 152 * i}")
    p("s_branch L_join\nL_gate:\ns_nop 7")
    p(f"v_lshlrev_b32 v28, 3, v24\nv_add_u32 v28, {GG}, v28")
    for b in range(8):
        p(f"v_accvgpr_read_b32 v{48 + b}, a{128 + 4 * b}")
    for b in range(8):
        p(f"v_mul_f32 v{48 + b}, 0xbfb8aa3b, v{48 + b}")
    for b in range(8):
        p(f"v_exp_f32 v{48 + b}, v{48 + b}")
    for b in range(8):
        p(f"v_add_f32 v{48 + b}, 1.0, v{48 + b}")
    for b in range(8):
        p(f"v_rcp_f32 v{48 + b}, v{48 + b}")
    p("s_nop 0")
    for b in range(8):
        p(f"ds_write_b32 v28, v{48 + b} offset:{128 * (b % 4) + 4 * (b // 4)}")
    p("L_join:")
    p(f"""
    v_and_b32 v25, 1, v26
    v_lshrrev_b32 v27, 5, v0
    s_lshl_b32 s59, s{sW}, 1
    v_add_u32 v27, s59, v27
    v_mul_u32_u24 v28, 20736, v25
    v_mul_u32_u24 v29, {9 * 288}, v27
    v_lshlrev_b32 v30, 4, v24
    v_add3_u32 v28, v28, v29, v30
    v_mul_u32_u24 v29, 21888, v25
    v_mul_u32_u24 v30, {18 * 152}, v27
    v_add_u32 v29, v29, v30
    v_lshl_add_u32 v29, v24, 3, v29
    v_add_u32 v29, {VR}, v29
    v_lshrrev_b32 v30, 1, v24
    v_mul_u32_u24 v30, 4640, v30
    v_and_b32 v31, 1, v24
    v_lshl_add_u32 v31, v31, 3, v25
    v_mul_u32_u24 v31, 288, v31
    v_add_u32 v31, v30, v31
    v_lshl_add_u32 v30, v27, 5, v31
    v_lshl_add_u32 v31, v27, 2, v31
    s_lshl_b32 s59, s{sMT}, 6
    s_sub_u32 s59, s59, 8
    v_lshl_add_u32 v80, v24, 2, s59
    v_cvt_f32_i32 v80, v80
    v_mul_f32 v80, 0x71800000, v80
    """)
    import struct
    f2u = lambda x: struct.unpack("<I", struct.pack("<f", x))[0]
    for i in range(1, 8):
        p(f"v_add_f32 v{80 + i}, {hex(f2u(i * 2.0 ** 100))}, v80")
    for i in range(1, 8):
        p(f"v_min_f32 v{80 + i}, 0, v{80 + i}")
    p(f"""
    v_mul_u32_u24 v13, 288, v24
    v_lshl_add_u32 v14, v25, 4, v13
    v_lshl_add_u32 v13, v26, 4, v13
    """)
    p("s_waitcnt lgkmcnt(0)\ns_barrier")
    p(f"""
    v_and_b32 v32, 31, v0
    s_lshl_b32 s59, s{sW}, 5
    v_add_lshl_u32 v32, v32, s59, 2
    v_add_u32 v33, {GG}, v32
    ds_read_b32 v33, v33
    """)
    S = lambda qi, wi: 48 + 8 * qi + wi

    def kq_rd(dc):
        kb = 88 + 16 * (dc % 3)
        return [I(f"ds_read_b128 {vr(kb + 4 * z, 4)}, v28 offset:{KR + dc * 288 + 16 * z}") for z in range(3)] + \
               [I(f"ds_read_b128 {vr(kb + 12, 4)}, v28 offset:{QR + dc * 288 + 32}")]

    def v_rd(f):
        vb = 154 + 6 * (f % 4)
        return [I(f"ds_read_b64 {vr(vb + 2 * j, 2)}, v29 offset:{f * 152 + 8 * j}") for j in range(3)]

    p.extend(kq_rd(0) + kq_rd(1))
    p(f"s_lshl_b32 s59, s{sMT}, 9\ns_add_u32 s59, s59, {WS_G}")
    p(f"buffer_store_dword v33, v32, {srd(SWS)}, s59 offen")
    for dc in range(9):
        kb = 88 + 16 * (dc % 3)
        nx = kq_rd(dc + 2) if dc + 2 < 9 else []
        n = 0
        for wi in range(7, -1, -1):
            for qi in range(4):
                idx = 8 + qi - wi
                c = f"v{S(qi, wi)}" if dc else (f"v{80 + idx}" if idx < 8 else "0")
                p(f"v_dot2_f32_bf16 v{S(qi, wi)}, v{kb + 12 + qi}, v{kb + idx}, {c}")
                n += 1
                if n % 6 == 0 and nx:
                    p.append(nx.pop(0))
    p("s_barrier")
    p.extend(dma_wo(1) + dma_wo(2))
    p.extend(v_rd(0) + v_rd(1) + v_rd(2))
    CSC = (18 ** -0.5) * 1.4426950408889634
    p(f"s_mov_b32 s62, {hex(f2u(CSC))}")
    T = lambda qi: 232 + qi
    for qi in range(4):
        p(f"v_max3_f32 v{T(qi)}, v{S(qi, 0)}, v{S(qi, 1)}, v{S(qi, 2)}")
    for qi in range(4):
        p(f"v_max3_f32 v{T(qi)}, v{T(qi)}, v{S(qi, 3)}, v{S(qi, 4)}")
    for qi in range(4):
        p(f"v_max3_f32 v{T(qi)}, v{T(qi)}, v{S(qi, 5)}, v{S(qi, 6)}")
    for qi in range(4):
        p(f"v_max_f32 v{T(qi)}, v{T(qi)}, v{S(qi, 7)}")
    for qi in range(4):
        p(f"v_mul_f32 v{T(qi)}, s62, v{T(qi)}")
    for qi in range(4):
        for wi in range(8):
            p(f"v_fma_f32 v{S(qi, wi)}, v{S(qi, wi)}, s62, -v{T(qi)}")
    for qi in range(4):
        for wi in range(8):
            p(f"v_exp_f32 v{S(qi, wi)}, v{S(qi, wi)}")
    for wi in range(1, 8):
        for qi in range(4):
            p(f"v_add_f32 v{T(qi)}, v{S(qi, 0) if wi == 1 else T(qi)}, v{S(qi, wi)}")
    for qi in range(4):
        p(f"v_rcp_f32 v{T(qi)}, v{T(qi)}")
    for qi in range(4):
        for wi in range(8):
            p(f"v_mul_f32 v{S(qi, wi)}, v{S(qi, wi)}, v{T(qi)}")
    PP = {}
    n = 136
    for qi in range(4):
        for j in range(6):
            w0, w1 = 8 + qi - 2 * j, 8 + qi - 2 * j - 1
            ok0, ok1 = 0 <= w0 < 8, 0 <= w1 < 8
            if ok0 or ok1:
                PP[qi, j] = n
                p(f"v_cvt_pk_bf16_f32 v{n}, {'v%d' % S(qi, w0) if ok0 else '0'}, {'v%d' % S(qi, w1) if ok1 else '0'}")
                n += 1
    assert n == 154
    po = lambda qi, d: 196 + 8 * qi + d if d < 8 else 228 + qi
    pend = []
    for f in range(18):
        vb = 154 + 6 * (f % 4)
        ot = lambda qi: 178 + 8 * ((f // 2) % 2) + 2 * qi + f % 2
        nx = v_rd(f + 3) if f + 3 < 18 else []
        started = set()
        n = 0
        for j in range(6):
            for qi in range(4):
                if (qi, j) in PP:
                    p(f"v_dot2_f32_bf16 v{ot(qi)}, v{PP[qi, j]}, v{vb + j}, {'v%d' % ot(qi) if qi in started else '0'}")
                    started.add(qi)
                    n += 1
                    if n % 5 == 0 and nx:
                        p.append(nx.pop(0))
                    if n >= 4 and pend:
                        p.append(pend.pop(0))
        if f % 2 == 1:
            d = f // 2
            pend = [I(f"v_cvt_pk_bf16_f32 v{po(qi, d)}, v{ot(qi) - 1}, v{ot(qi)}") for qi in range(4)]
            if d in (3, 7):
                pend += [I(f"ds_write_b128 v30, {vr(po(qi, d - 3), 4)} offset:{OR + qi * 576 + 16 * (d // 4)}") for qi in range(4)]
            if d == 8:
                pend += [I(f"ds_write_b32 v31, v{po(qi, 8)} offset:{OR + qi * 576 + 256}") for qi in range(4)]
    p.extend(pend)
    stamp(p)
    p("WAITVM O0\nWAITLGKM\ns_barrier")
    p.extend(dma_wo(3))
    oreg = lambda ks, b: vr(4 * (ks * 8 + b), 4, "a")
    ord_ = [I(f"ds_read_b128 {oreg(ks, b)}, v{13 if ks < 4 else 14} offset:{OR + b * 4640 + 64 * ks}") for ks in range(5) for b in range(8)]
    units = []
    for t in range(9):
        u = dict(tile=t, tag=f"O{t}", ks=[(q, WO[t % 5] + q * 4096, 512) for q in range(5)])
        if t + 4 < 9:
            u["dma"] = dma_wo(t + 4)
        units.append(u)
    phase_b(p, units, oreg, Addr([20, 21, 22]), ord_)
    stamp(p)
    stamp_out(p)
    p("s_endpgm")
    return p


def k1_head():
    p = P()
    p("s_cmp_ge_u32 s2, 256\ns_cbranch_scc1 L_exit")
    p("s_load_dwordx16 s[4:19], s[0:1], 0\ns_load_dwordx8 s[20:27], s[0:1], 64")
    if OPT["stamp"]:
        p("s_memrealtime s[70:71]\ns_memtime s[72:73]")
        nstamp[0] = 1
    p(f"""
    v_lshrrev_b32 v1, 6, v0
    v_and_b32 v0, 63, v0
    v_readfirstlane_b32 s{sW}, v1
    s_bfe_u32 s59, s2, 0x10002
    s_lshl_b32 s59, s59, 3
    s_bfe_u32 s{sMT}, s2, 0x30003
    s_add_u32 s{sMT}, s{sMT}, s59
    s_and_b32 s59, s2, 3
    s_lshr_b32 s60, s2, 6
    s_mul_i32 s{sSRC}, s59, 3
    s_add_u32 s{sSRC}, s{sSRC}, s60
    s_sub_u32 s{sSRC}, s{sSRC}, 1
    s_cmp_lg_u32 s60, 0
    s_cbranch_scc1 L_ffn
    s_add_u32 s{sSRC}, s59, 12
    """)
    return p


def k2():
    p = P()
    p("s_cmp_ge_u32 s2, 576\ns_cbranch_scc1 L_exit2")
    p("s_load_dwordx2 s[18:19], s[0:1], 56\ns_load_dwordx8 s[20:27], s[0:1], 64")
    p(f"""
    v_lshrrev_b32 v1, 6, v0
    v_and_b32 v0, 63, v0
    v_readfirstlane_b32 s{sW}, v1
    s_mul_hi_u32 s59, s2, {(2 ** 32 + 8) // 9}
    s_mul_i32 s60, s59, 9
    s_sub_u32 s60, s2, s60
    s_lshl_b32 s60, s60, 2
    s_add_u32 s60, s60, s{sW}
    s_lshr_b32 s{sMT}, s59, 2
    s_and_b32 s62, s59, 3
    s_mul_i32 s63, s{sMT}, {16 * 36}
    s_add_u32 s63, s63, s60
    s_lshl_b32 s63, s63, 12
    s_lshl_b32 s64, s62, 10
    s_add_u32 s63, s63, s64
    v_and_b32 v2, 15, v0
    v_lshrrev_b32 v3, 4, v0
    v_and_b32 v4, 1, v3
    v_lshrrev_b32 v5, 1, v3
    v_mul_u32_u24 v6, {36 * 4096}, v5
    v_lshl_add_u32 v6, v4, 9, v6
    v_lshl_add_u32 v6, v2, 4, v6
    """)
    p("WAITLGKM")
    mk_srd(p, SWS, 26, WS_SIZE)
    for sg in range(8):
        for h in range(2):
            p(f"buffer_load_dwordx4 {vr(32 + 8 * sg + 4 * h, 4)}, v6, {srd(SWS)}, s63 offen offset:{256 * h}")
        if sg < 7:
            p(f"s_add_u32 s63, s63, {2 * 36 * 4096}")
    mk_srd(p, SB2, 18, 1152)
    mk_srd(p, SOUT, 22, 2048 * 1152)
    p(f"""
    v_lshl_add_u32 v7, v4, 4, v2
    s_lshl_b32 s64, s59, 5
    v_add_u32 v7, s64, v7
    v_lshlrev_b32 v8, 2, v7
    s_mov_b32 s65, {WS_G}
    buffer_load_dword v9, v8, {srd(SWS)}, s65 offen
    v_lshlrev_b32 v10, 4, v5
    s_lshl_b32 s66, s60, 5
    buffer_load_dwordx4 v[12:15], v10, {srd(SB2)}, s66 offen
    v_mul_u32_u24 v7, 1152, v7
    v_add_u32 v7, v7, v10
    v_lshlrev_b32 v11, 3, v4
    v_sub_u32 v11, v2, v11
    v_and_b32 v20, 1, v11
    v_lshlrev_b32 v20, 4, v20
    v_mov_b32 v21, 0x3f80
    v_lshlrev_b32 v20, v20, v21
    v_lshrrev_b32 v11, 1, v11
    """)
    for i in range(4):
        p(f"v_cmp_eq_u32 vcc, {i}, v11\nv_cndmask_b32 v{16 + i}, 0, v20, vcc")
    for sg in range(8):
        for h in range(2):
            c = (96 if sg < 6 else 104) + 4 * h
            p(f"{MF} {vr(c, 4)}, v[16:19], {vr(32 + 8 * sg + 4 * h, 4)}, {'0' if sg in (0, 6) else vr(c, 4)}")
    for i in range(4):
        p(f"v_lshlrev_b32 v{24 + 2 * i}, 16, v{12 + i}\nv_and_b32 v{25 + 2 * i}, 0xffff0000, v{12 + i}")
    p("v_sub_f32 v22, 1.0, v9")
    for i in range(8):
        p(f"v_add_f32 v{24 + i}, v{24 + i}, v{96 + i}")
    for i in range(8):
        p(f"v_mul_f32 v{24 + i}, v{24 + i}, v22")
    for i in range(8):
        p(f"v_fma_f32 v{24 + i}, v{104 + i}, v9, v{24 + i}")
    for i in range(4):
        p(f"v_cvt_pk_bf16_f32 v{12 + i}, v{24 + 2 * i}, v{25 + 2 * i}")
    p(f"buffer_store_dwordx4 v[12:15], v7, {srd(SOUT)}, s66 offen")
    p("L_exit2:\ns_endpgm")
    return p


def desc(name, nv, acc):
    return f""".amdhsa_kernel {name}
  .amdhsa_next_free_vgpr {nv}
  .amdhsa_next_free_sgpr 102
  .amdhsa_accum_offset {acc}
  .amdhsa_group_segment_fixed_size 0
  .amdhsa_kernarg_size 96
  .amdhsa_user_sgpr_count 2
  .amdhsa_user_sgpr_kernarg_segment_ptr 1
  .amdhsa_system_sgpr_workgroup_id_x 1
.end_amdhsa_kernel"""


def main():
    fin = Finalizer()
    head = k1_head()
    att = fin.run(head + role_att())
    sys.stderr.write(f"att: {len(att)} ins {fin.stats}\n")
    ffn = fin.run(head + role_ffn())
    nh = next(i for i, x in enumerate(ffn) if x.text == "L_ffn:")
    ffn = ffn[nh:]
    sys.stderr.write(f"ffn: {len(ffn)} ins {fin.stats}\n")
    red = fin.run(k2())
    ref = open(f"cdna_kernels/{NAME}.s.ref").read().split("\n")
    hdr = [l for l in ref if l.startswith(";") and "@launch" not in l and not l.startswith("; Override") and not l.startswith("; grid=")]
    o = hdr + [f"; @launch kernel={NAME}_kernel grid=(256,1,1) block=(256,1,1) lds=163840",
               "; @launch kernel=red_kernel grid=(576,1,1) block=(256,1,1) lds=0",
               '.amdgcn_target "amdgcn-amd-amdhsa--gfx950"', ".text",
               f".globl {NAME}_kernel", ".p2align 8", f".type {NAME}_kernel,@function", f"{NAME}_kernel:",
               text_of(att), ".p2align 6", text_of(ffn), "L_exit:", "    s_endpgm",
               ".globl red_kernel", ".p2align 8", ".type red_kernel,@function", "red_kernel:", text_of(red),
               '.section .rodata,"a"', ".p2align 6", desc(f"{NAME}_kernel", 512, 256), ".p2align 6", desc("red_kernel", 112, 112)]
    print("\n".join(o))


main()
```

```python
import re

REG_RE = re.compile(r"^(-?\|?)([vas])(\d+)\|?$")
RNG_RE = re.compile(r"^(-?\|?)([vas])\[(\d+):(\d+)\]\|?$")
TRANS = ("v_exp_f32", "v_log_f32", "v_rcp_f32", "v_rsq_f32", "v_sqrt_f32", "v_sin_f32", "v_cos_f32")


def regs_of(tok):
    tok = tok.strip()
    m = REG_RE.match(tok)
    if m:
        return [(m.group(2), int(m.group(3)))]
    m = RNG_RE.match(tok)
    if m:
        return [(m.group(2), i) for i in range(int(m.group(3)), int(m.group(4)) + 1)]
    if tok in ("vcc", "vcc_lo", "vcc_hi"):
        return [("s", "vcc")]
    if tok == "m0":
        return [("s", "m0")]
    if tok == "exec":
        return [("s", "exec")]
    return []


def vr(n, k=1, t="v"):
    return f"{t}{n}" if k == 1 else f"{t}[{n}:{n + k - 1}]"


class Ins:
    def __init__(self, text, tag=None, cost=None):
        self.text = text
        self.tag = tag
        self.op = text.split()[0] if text else ""
        self.reads, self.writes = set(), set()
        self.srcc = set()
        self.srcab = set()
        self.kind = "other"
        self.deps = []
        self._parse()
        self.cost = cost if cost is not None else self._cost()

    def _parse(self):
        op = self.op
        if op.endswith(":") or op.startswith(".") or op.startswith(";"):
            self.kind = "label" if op.endswith(":") else "dir"
            return
        if op in ("WAITVM", "WAITLGKM", "RESET"):
            self.kind = "pseudo"
            return
        rest = self.text[len(op):]
        toks = [t.strip() for t in rest.split(",")]
        last = toks[-1].split()
        mods = last[1:] if last else []
        if last:
            toks[-1] = last[0]
        self.mods = mods
        R = [regs_of(t) for t in toks]
        flat = lambda L: set(x for l in L for x in l)
        if op.startswith("v_mfma"):
            self.kind = "mfma"
            self.writes = set(R[0]); self.srcab = set(R[1]) | set(R[2]); self.srcc = set(R[3])
            self.reads = self.srcab | self.srcc
            self.passes = 4 if "16x16" in op else 8
        elif op.startswith("ds_read") or op.startswith("ds_bpermute") or op.startswith("ds_swizzle"):
            self.kind = "dsr"; self.writes = set(R[0]); self.reads = flat(R[1:])
        elif op.startswith("ds_write"):
            self.kind = "dsw"; self.reads = flat(R)
        elif op.startswith("buffer_load") or op.startswith("global_load"):
            if "lds" in mods or "_lds_" in op:
                self.kind = "dma"; self.reads = flat(R) | {("s", "m0")}
            else:
                self.kind = "vload"; self.writes = set(R[0]); self.reads = flat(R[1:])
        elif op.startswith("buffer_store") or op.startswith("global_store"):
            self.kind = "vstore"; self.reads = flat(R)
            self.data = set(R[0]) if op.startswith("buffer") else set(R[1])
        elif op.startswith("buffer_atomic") or op.startswith("global_atomic"):
            self.kind = "vstore"; self.reads = flat(R); self.data = set()
            if "sc0" in mods:
                self.kind = "vload"; self.writes = set(R[0])
        elif op in ("buffer_wbl2", "buffer_inv"):
            self.kind = "vstore"; self.data = set()
        elif op.startswith("s_load") or op in ("s_memtime", "s_memrealtime"):
            self.kind = "smem"; self.writes = set(R[0]); self.reads = flat(R[1:])
        elif op.startswith("s_waitcnt"):
            self.kind = "wait"
        elif op == "s_nop":
            self.kind = "nop"; self.n = int(toks[0])
        elif op == "s_barrier":
            self.kind = "barrier"
        elif op.startswith("s_cbranch") or op in ("s_branch", "s_setpc_b64", "s_endpgm", "s_swappc_b64"):
            self.kind = "branch"; self.reads = flat(R)
        elif op.startswith("s_cmp") or op.startswith("s_bitcmp") or op in ("s_setprio", "s_sleep"):
            self.kind = "salu"; self.reads = flat(R)
        elif op.startswith("s_"):
            self.kind = "salu"; self.writes = set(R[0]); self.reads = flat(R[1:])
            if "saveexec" in op:
                self.writes.add(("s", "exec"))
        elif op.startswith("v_"):
            self.kind = "valu"
            self.writes = set(R[0]); self.reads = flat(R[1:])
            if op.startswith("v_permlane") and "swap" in op:
                self.writes = flat(R); self.reads = flat(R)
            if op.startswith("v_fmac") or op.startswith("v_dot2c"):
                self.reads |= set(R[0])
            if op.startswith("v_add_co") or op.startswith("v_sub_co") or op.startswith("v_addc_co"):
                self.writes |= set(R[1])
            if op.startswith("v_dot2"):
                self.srcc = set(R[3]) if len(R) > 3 else set(R[0])
                self.srcab = set(R[1]) | set(R[2])
        else:
            raise ValueError("unknown instruction: " + self.text)

    def _cost(self):
        k = self.kind
        if k in ("dma", "vload"):
            return 2
        if k == "vstore":
            return 2
        if k == "dsw":
            return 2 if "b128" in self.op else 1
        if k == "valu" and self.op.startswith(TRANS):
            return 2
        if k in ("label", "dir"):
            return 0
        return 1

    def states(self):
        if self.kind == "nop":
            return self.n + 1
        if self.kind in ("label", "dir", "pseudo"):
            return 0
        return 1


def I(text, tag=None, cost=None):
    return Ins(text, tag, cost)


def is_v(r):
    return r[0] in ("v", "a")


def need_states(p, c):
    n = 0
    pk, ck = p.kind, c.kind
    vmem = ("dma", "vload", "vstore")
    if pk == "valu":
        vw = {r for r in p.writes if is_v(r)}
        sw = {r for r in p.writes if r[0] == "s"}
        isdot = p.op.startswith("v_dot2")
        if ck == "mfma" and vw & c.reads:
            n = max(n, 3 if isdot else 2)
        if ck == "valu":
            if c.op.startswith("v_permlane") and vw & c.reads:
                n = max(n, 2)
            if c.op.startswith(("v_readlane", "v_readfirstlane")) and vw & c.reads:
                n = max(n, 1)
            if ("row_" in c.text or "quad_perm" in c.text or "wave_" in c.text) and vw & c.reads:
                n = max(n, 2)
            if p.op.startswith(TRANS) and vw & c.reads:
                n = max(n, 1)
            if sw & c.reads:
                n = max(n, 4 if c.op.startswith(("v_readlane", "v_writelane")) else 2)
            if ("s", "exec") in sw:
                n = max(n, 4)
        if isdot:
            if ck == "valu" and c.op == p.op:
                if vw & c.srcab:
                    n = max(n, 3)
            elif vw & (c.reads | c.writes):
                n = max(n, 3)
        if ck in vmem and sw & c.reads:
            n = max(n, 5)
        if ck in ("salu", "branch", "smem") and sw & c.reads:
            n = max(n, 2)
        if ck == "branch" and ("vcc" in c.op) and ("s", "vcc") in sw:
            n = max(n, 5)
    if pk == "mfma":
        big = p.passes == 8
        if ck == "mfma":
            if p.writes & c.srcab:
                n = max(n, 12 if big else 8)
            if p.writes & c.srcc and not (p.writes == c.srcc and p.passes == c.passes):
                n = max(n, 10 if big else 6)
            if p.writes & c.writes and not (p.writes == c.writes and p.passes == c.passes):
                n = max(n, 10 if big else 6)
        elif ck in ("valu", "dsr", "dsw") + vmem:
            if p.writes & (c.reads | c.writes):
                n = max(n, 12 if big else 8)
            if p.srcc & c.writes:
                n = max(n, 7 if big else 3)
    if pk == "salu" and ("s", "m0") in p.writes and ck == "dma":
        n = max(n, 1)
    if pk == "vstore" and ("x4" in p.op or "x3" in p.op) and p.data & c.writes:
        n = max(n, 2)
    if pk == "dsw" and "b128" in p.op and ck == "valu" and (p.reads & c.writes):
        n = max(n, 1)
    return n


class Finalizer:
    def __init__(self, lgkm_age=10):
        self.lgkm_age = lgkm_age

    def run(self, ins):
        out = []
        lg = []
        vm = []
        smem = []
        stats = {"lgkm": 0, "vm": 0, "nop": 0}
        lastw = {}
        waited = set()

        def pos():
            return len(out)

        def emit(x):
            if x.kind not in ("label", "dir", "wait", "nop", "pseudo"):
                dist = 0
                need = 0
                for p in reversed(out[-24:]):
                    r = need_states(p, x) - dist
                    need = max(need, r)
                    dist += p.states()
                    if dist > 14:
                        break
                while need > 0:
                    k = min(need, 16)
                    out.append(Ins(f"s_nop {k - 1}"))
                    stats["nop"] += 1
                    need -= k
            out.append(x)

        def wait(l=None, v=None):
            parts = []
            if v is not None:
                v = min(v, 63)
                if len(vm) > v:
                    parts.append(f"vmcnt({v})")
                    del vm[: len(vm) - v]
                    stats["vm"] += 1
            if l is not None:
                l = min(l, 15)
                if smem:
                    l = 0
                if len(lg) > l or smem:
                    parts.append(f"lgkmcnt({l})")
                    del lg[: len(lg) - l]
                    del smem[:]
                    stats["lgkm"] += 1
            if parts:
                out.append(Ins("s_waitcnt " + " ".join(parts)))

        for x in ins:
            if x.kind == "pseudo":
                a = x.text.split()
                if x.op == "RESET":
                    del lg[:]; del vm[:]; del smem[:]
                elif x.op == "WAITLGKM":
                    wait(l=0)
                elif x.op == "WAITVM":
                    if a[1] == "ALL":
                        wait(v=0)
                    else:
                        tags = set(a[1:])
                        waited |= tags
                        idx = [i for i, (p, _) in enumerate(vm) if p.tag in tags]
                        if idx:
                            wait(v=len(vm) - 1 - idx[-1])
                continue
            if x.kind == "wait":
                m = re.search(r"vmcnt\((\d+)\)", x.text)
                if m:
                    n = int(m.group(1)); del vm[: max(0, len(vm) - n)]
                m = re.search(r"lgkmcnt\((\d+)\)", x.text)
                if m:
                    n = int(m.group(1)); del lg[: max(0, len(lg) - n)]
                    if n == 0:
                        del smem[:]
                out.append(x)
                continue
            assert x.tag is None or x.tag not in waited, f"tag {x.tag} issued after its wait: {x.text}"
            for d in x.deps:
                for r in d.writes & x.reads:
                    assert lastw.get(r) is d, f"bad producer for {r} in {x.text}: want {d.text}, have {lastw.get(r) and lastw[r].text}"
            for r in x.writes:
                lastw[r] = x
            touch = x.reads | x.writes
            lw = vw = None
            idx = [i for i, (p, _) in enumerate(lg) if p.writes & touch]
            if idx:
                i = idx[-1]
                while i + 1 < len(lg) and pos() - lg[i + 1][1] >= self.lgkm_age:
                    i += 1
                lw = len(lg) - 1 - i
            if any(p.writes & touch for p in smem):
                lw = 0
            idx = [i for i, (p, _) in enumerate(vm) if p.writes & touch]
            if idx:
                vw = len(vm) - 1 - idx[-1]
            if lw is not None or vw is not None:
                wait(l=lw, v=vw)
            emit(x)
            if x.kind in ("dsr", "dsw"):
                lg.append((x, pos()))
            elif x.kind in ("dma", "vload", "vstore"):
                vm.append((x, pos()))
                assert len(vm) <= 63 or True
            elif x.kind == "smem":
                smem.append(x)
        self.stats = stats
        return out


def sched(mf, streams, cap=2, flush=True):
    out = []
    heads = [0] * len(streams)
    for g, m in enumerate(mf):
        out.append(m)
        budget = cap
        progress = True
        while progress:
            progress = False
            for si, st in enumerate(streams):
                if heads[si] >= len(st):
                    continue
                e, it = st[heads[si]]
                if e > g:
                    continue
                items = it if isinstance(it, list) else [it]
                c = sum(i.cost for i in items)
                if c <= budget or (budget == cap and c > cap):
                    out.extend(items)
                    budget -= c
                    heads[si] += 1
                    progress = True
                    break
            if budget <= 0:
                for si, st in enumerate(streams):
                    while heads[si] < len(st):
                        e, it = st[heads[si]]
                        items = it if isinstance(it, list) else [it]
                        if e <= g and sum(i.cost for i in items) == 0:
                            out.extend(items); heads[si] += 1
                        else:
                            break
                break
    left = []
    for si, st in enumerate(streams):
        rest = st[heads[si]:]
        if flush:
            for e, it in rest:
                out.extend(it if isinstance(it, list) else [it])
        left.append(rest)
    return out if flush else (out, left)


def text_of(ins):
    return "\n".join(("" if x.kind in ("label", "dir") else "    ") + x.text for x in ins)


import subprocess
_size_cache = {}


def inst_sizes(ins):
    for x in ins:
        if x.kind == "salu" and "L_" in x.text:
            _size_cache[x.text] = 8
    todo = sorted({x.text for x in ins if x.kind not in ("label", "dir", "branch") and x.text not in _size_cache})
    if todo:
        r = subprocess.run(["llvm-mc", "-triple=amdgcn-amd-amdhsa", "-mcpu=gfx950", "-show-encoding"],
                           input="\n".join(todo) + "\n", capture_output=True, text=True)
        assert r.returncode == 0, r.stderr
        enc = [l for l in r.stdout.split("\n") if "encoding:" in l]
        assert len(enc) == len(todo)
        for t, l in zip(todo, enc):
            _size_cache[t] = l.split("encoding:")[1].count("0x")
    return [0 if x.kind in ("label", "dir") else 4 if x.kind == "branch" else _size_cache[x.text] for x in ins]


NOPROMOTE = ("v_readfirstlane", "v_dot2c", "v_permlane", "v_nop", "v_accvgpr", "v_fmac")


def promotable(x, sz):
    return x.kind == "valu" and sz == 4 and not x.op.startswith(NOPROMOTE) and not x.op.endswith("_e64")


def layout(ins, start=0, pad_prefix=None, pad_stride=4, pad_ret=None, align=True):
    sz = inst_sizes(ins)
    out, osz = [], []
    off = start
    npad = 0
    st = {"promo": 0, "nop": 0}
    cand = None
    for i, (x, s) in enumerate(zip(ins, sz)):
        if s and pad_prefix and off % 4096 == 0:
            out.append(Ins(f"{pad_prefix}{npad}:")); osz.append(0)
            out.append(Ins(f"s_cbranch_execz @PAD{npad + pad_stride}")); osz.append(4)
            npad += 1
            off += 4
            cand = None
        if s == 8 and off % 32 == 28 and (align or (off + 4) % 4096 == 0):
            if cand is not None:
                y = out[cand]
                z = Ins(y.op + "_e64" + y.text[len(y.op):], y.tag, y.cost)
                out[cand] = z; osz[cand] = 8
                st["promo"] += 1
            else:
                out.append(Ins("s_nop 0")); osz.append(4)
                st["nop"] += 1
            off += 4
            cand = None
            if pad_prefix and off % 4096 == 0:
                out.append(Ins(f"{pad_prefix}{npad}:")); osz.append(0)
                out.append(Ins(f"s_cbranch_execz @PAD{npad + pad_stride}")); osz.append(4)
                npad += 1
                off += 4
        if off % 32 == 0:
            cand = None
        out.append(x); osz.append(s)
        if promotable(x, s):
            cand = len(out) - 1
        off += s
    res = []
    for x in out:
        if "@PAD" in x.text:
            k = int(x.text.split("@PAD")[1])
            res.append(Ins(f"s_cbranch_execz {pad_prefix + str(k) if k < npad else pad_ret}"))
        else:
            res.append(x)
    return res, npad, off - start, st
```

```python
import sys
from asmlib import *

NAME = "gated_mix__sliding_local_dilated__dense_activation_squared_relu__prompt"
OPT = dict(stflav="sc1", stamp=0, warm=1, touch=1, align=1, slack=3, pro=2, cap=12, proa=1, skew=256, ctouch=1, endwait=0, sleep=0, outflav='plain')
for a in sys.argv[1:]:
    k, v = a.split("=")
    OPT[k] = int(v) if v.lstrip("-").isdigit() else v
STF = OPT["stflav"].replace("plain", "").replace("+", " ")

SRCS = 147456 + OPT["skew"]
WS_G = 0x2460000
WS_FL = 0x24a0000
WS_STAMP = 0x2500000
WS_SIZE = 0x3000000
MF = "v_mfma_f32_16x16x32_bf16"

SX, SWA, SWB, SSM, SWS, SOUT, SB2 = 28, 32, 36, 40, 44, 48, 52
SDBG = 4
sW, sMT, sSRC = 56, 57, 58
sCH = 70
sFL, sRD, sSPIN = 79, 80, 81
vL16, vPST, vFW, vFR, vPOLL, vCON, vFD = 23, 24, 25, 26, 27, 28, 29
srd = lambda n: f"s[{n}:{n + 3}]"


class P(list):
    def __call__(self, text, tag=None, cost=None):
        for t in text.split("\n"):
            t = t.strip()
            if t:
                self.append(I(t, tag, cost))


def mk_srd(p, n, ptr, size, bias=0):
    if bias:
        p(f"s_sub_u32 s{n}, s{ptr}, {bias}\ns_subb_u32 s{n + 1}, s{ptr + 1}, 0")
    else:
        p(f"s_mov_b32 s{n}, s{ptr}\ns_mov_b32 s{n + 1}, s{ptr + 1}")
    p(f"s_mov_b32 s{n + 2}, {size + bias}\ns_mov_b32 s{n + 3}, 0x20000")


class Addr:
    def __init__(self, regs, k0=0):
        self.regs, self.k0 = regs, k0

    def at(self, off):
        k = off >> 16
        return f"v{self.regs[k - self.k0]} offset:{off & 0xffff}"


nstamp = [0]
stnames = {}
cur = {"role": None, "vst": None}


def stamp_ins(name, lvl=1):
    if not (OPT["stamp"] and (OPT["stamp"] >= lvl or name == "end")):
        return []
    n = nstamp[0]
    nstamp[0] += 1
    assert n < 32
    stnames.setdefault(cur["role"], []).append(name)
    v = cur["vst"]
    return [I("s_memrealtime s[86:87]"), I("s_memtime s[88:89]"), I("s_waitcnt lgkmcnt(0)"),
            I(f"v_writelane_b32 v{v}, s86, {2 * n}"), I(f"v_writelane_b32 v{v}, s88, {2 * n + 1}")]


def stamp(p, name, lvl=1):
    p.extend(stamp_ins(name, lvl))


def stamp_begin(p, role, v):
    cur["role"], cur["vst"] = role, v
    nstamp[0] = 1
    stnames[role] = ["start"]
    if OPT["stamp"]:
        p(f"v_mov_b32 v{v}, 0\ns_waitcnt lgkmcnt(0)\nv_writelane_b32 v{v}, s86, 0\nv_writelane_b32 v{v}, s88, 1")


def stamp_out(p):
    if OPT["stamp"]:
        p("s_waitcnt vmcnt(0)")
        stamp(p, "end")
        p(f"s_lshl_b32 s59, s2, 2\ns_add_u32 s59, s59, s{sW}\ns_lshl_b32 s59, s59, 8\ns_add_u32 s59, s59, {WS_STAMP}")
        p(f"v_lshlrev_b32 v1, 2, v0\nv_writelane_b32 v{cur['vst']}, s{sSPIN}, 63")
        p(f"buffer_store_dword v{cur['vst']}, v1, {srd(SWS)}, s59 offen")


stubs = {}


def poll_load(dbg=False, tag="POLL"):
    if dbg:
        return I(f"buffer_load_dword v{vPOLL}, off, {srd(SDBG)}, s3 sc1", tag=None)
    return I(f"buffer_load_dword v{vPOLL}, v{vFR}, {srd(SWS)}, s{sFL} offen sc1", tag=None)


def poll_check(role, thr, mask, dbg=False):
    st = stubs.setdefault(role, P())
    n = sum(1 for x in st if x.kind == "label")
    lab = f"L_{role}_spin{n}"
    st(f"{lab}:")
    if OPT["sleep"]:
        st(f"s_sleep {OPT['sleep']}")
    st.append(poll_load(dbg))
    st(f"""
    s_sub_u32 s{sSPIN}, s{sSPIN}, 1
    s_cmp_lt_i32 s{sSPIN}, 0
    s_cbranch_scc1 {lab}r
    s_waitcnt vmcnt(0)
    v_cmp_gt_u32 vcc, {thr}, v{vPOLL}
    s_nop 1
    s_and_b32 s85, vcc_lo, {mask}
    s_cbranch_scc1 {lab}
    s_branch {lab}r
    """)
    return [I(f"v_cmp_gt_u32 vcc, {thr}, v{vPOLL}"),
            [I(f"s_and_b32 s85, vcc_lo, {mask}"), I(f"s_cbranch_scc1 {lab}"), I(f"{lab}r:")]]


def flag_store(val):
    return [I(f"v_mov_b32 v{vFD}, {val}"), I(f"buffer_store_dword v{vFD}, v{vFW}, {srd(SWS)}, s69 offen sc1")]


def handoff_setup(base_sgpr):
    p = P()
    p(f"s_and_b32 s59, s{sMT}, 7\ns_lshl_b32 s59, s59, 7")
    for t in range(9):
        p(f"s_add_u32 s{sCH + t}, s59, s{base_sgpr}")
        if t < 8:
            p("s_add_u32 s59, s59, 128\ns_cmp_eq_u32 s59, 1152\ns_cselect_b32 s59, 0, s59")
    p(f"""
    s_mul_i32 s{sRD}, s{sMT}, {16 * SRCS}
    s_lshl_b32 s59, s{sW}, 12
    s_add_u32 s{sRD}, s{sRD}, s59
    s_mul_i32 s59, s{sSRC}, {SRCS}
    s_add_u32 s61, s{sRD}, s59
    s_lshl_b32 s59, s{sSRC}, 8
    s_add_u32 s{sRD}, s{sRD}, s59
    s_lshl_b32 s{sFL}, s{sMT}, 2
    s_add_u32 s{sFL}, s{sFL}, s{sW}
    s_lshl_b32 s{sFL}, s{sFL}, 8
    s_add_u32 s{sFL}, s{sFL}, {WS_FL}
    s_mov_b32 s{sSPIN}, 0x10000
    s_lshl_b32 s3, s{sMT}, 2
    """)
    return p


def handoff_vregs():
    p = P()
    p(f"""
    s_lshl_b32 s69, s{sSRC}, 2
    s_add_u32 s69, s69, s{sFL}
    v_bfe_u32 v{vPST}, v0, 2, 2
    v_lshlrev_b32 v{vPST}, 8, v{vPST}
    v_lshrrev_b32 v{vCON}, 4, v0
    v_lshl_add_u32 v{vPST}, v{vCON}, 6, v{vPST}
    v_and_b32 v{vFR}, 3, v0
    v_lshl_add_u32 v{vPST}, v{vFR}, 4, v{vPST}
    v_and_b32 v{vFR}, 15, v0
    v_mul_u32_u24 v{vCON}, {SRCS}, v{vCON}
    v_lshl_add_u32 v{vCON}, v{vFR}, 4, v{vCON}
    v_lshlrev_b32 v{vFR}, 2, v{vFR}
    v_min_u32 v{vFW}, 1, v0
    v_lshlrev_b32 v{vFW}, 31, v{vFW}
    """)
    return p


def flag_init(tmp):
    a = P()
    a(f"""
    s_lshl_b32 s85, s{sW}, 6
    v_add_u32 v{tmp}, s85, v0
    v_lshrrev_b32 v{tmp + 1}, 2, v{tmp}
    v_min_u32 v{tmp + 1}, 1, v{tmp + 1}
    v_lshlrev_b32 v{tmp + 1}, 31, v{tmp + 1}
    v_lshl_add_u32 v{tmp + 1}, v0, 8, v{tmp + 1}
    v_min_u32 v{tmp}, 1, v{tmp}
    v_lshlrev_b32 v{tmp}, 31, v{tmp}
    v_mov_b32 v{tmp + 2}, 0
    v_mov_b32 v{tmp + 3}, 1
    s_lshl_b32 s85, s{sSRC}, 2
    s_add_u32 s85, s85, s{sFL}
    """)
    a(f"buffer_store_dword v{tmp + 2}, v{tmp + 1}, {srd(SWS)}, s85 offen sc1", tag="FI")
    b = I(f"buffer_atomic_add v{tmp + 3}, v{tmp}, {srd(SDBG)}, s3 offen")
    return a, b


def touch(vreg, dummy, sr, base, off):
    a = I(f"s_add_u32 s60, s{base}, {off}")
    x = I(f"buffer_load_dword v{dummy}, v{vreg}, {srd(sr)}, s60 offen")
    x.writes = set()
    return [a, x] if OPT["touch"] else []


def x_touch_addr(p, reg, tmp, bias):
    p(f"""
    s_lshr_b32 s59, s2, 6
    s_lshl_b32 s59, s59, 2
    s_add_u32 s59, s59, s{sW}
    s_mul_i32 s59, s59, {8 * 1152}
    v_and_b32 v{tmp}, 7, v0
    v_mul_u32_u24 v{reg}, 1152, v{tmp}
    v_bfe_u32 v{tmp}, v0, 3, 2
    v_lshl_add_u32 v{reg}, v{tmp}, 7, v{reg}
    v_add_u32 v{reg}, s59, v{reg}
    """)


def code_touch(p, role, nwaves_log2, dummy):
    if OPT["ctouch"]:
        p(f"""
        s_getpc_b64 s[82:83]
        L_{role}_pc:
        s_add_u32 s82, s82, L_{role}_body-L_{role}_pc
        s_addc_u32 s83, s83, 0
        s_and_b32 s59, s{sMT}, 7
        s_lshl_b32 s59, s59, 2
        s_add_u32 s59, s59, s{sW}
        s_lshl_b32 s59, s59, 7
        v_min_u32 v{dummy}, 8, v0
        v_lshl_add_u32 v{dummy}, v{dummy}, 12, s59
        """)
        x = I(f"global_load_dword v{dummy}, v{dummy}, s[82:83]")
        x.writes = set()
        p.append(x)


def warm(p, role, npads):
    if OPT["warm"]:
        p("s_mov_b64 exec, 0")
        for w in range(3):
            p(f"s_cmp_eq_u32 s{sW}, {w}\ns_cbranch_scc1 L_{role}_pad{w}")
        p(f"s_branch L_{role}_pad3\nL_{role}_ret:\ns_mov_b64 exec, -1")


def flat(items):
    o = []
    for it in items:
        o.extend(it if isinstance(it, list) else [it])
    return o


def phase_b(p, units, hreg, trB, hrd, st_gap, hooks, nfirst=10):
    frags = []
    for ui, u in enumerate(units):
        for qi, k in enumerate(u["ks"]):
            frags.append((ui, qi, k))
    ntile_ks = {}
    for ui, qi, k in frags:
        ntile_ks.setdefault(units[ui]["tile"], []).append(k)
    rdc = {}

    def rd(fi):
        if fi not in rdc:
            ui, qi, (ks, off, hoff) = frags[fi]
            w = 48 + 4 * (fi % 4)
            rdc[fi] = [I(f"ds_read_b64_tr_b16 {vr(w, 2)}, {trB.at(off)}"),
                       I(f"ds_read_b64_tr_b16 {vr(w + 2, 2)}, {trB.at(off + hoff)}")]
        return rdc[fi]

    mf, s_rd, s_dma, s_ep = [], [], [], []
    p.extend(rd(0) + rd(1) + hrd[:nfirst])
    s_h = [(i, x) for i, x in enumerate(hrd[nfirst:])]
    seen = {}
    for fi, (ui, qi, (ks, off, hoff)) in enumerate(frags):
        u = units[ui]
        t = u["tile"]
        first = t not in seen
        seen[t] = seen.get(t, 0) + 1
        g0 = len(mf)
        w = 48 + 4 * (fi % 4)
        for b in range(8):
            c = 64 + 32 * (t % 2) + 4 * b
            mf.append(I(f"{MF} {vr(c, 4)}, {vr(w, 4)}, {hreg(ks, b)}, {'0' if first else vr(c, 4)}"))
            mf[-1].deps = rd(fi) + [hrd[ks * 8 + b]]
        nf = fi + 2
        if qi == len(u["ks"]) - 2:
            tags = u.get("wtags", [])
            if nf < len(frags):
                s_rd.append((g0, [I("WAITVM " + " ".join([units[ui + 1]["tag"]] + tags), cost=1), I("s_barrier")]))
            elif tags:
                s_rd.append((g0, I("WAITVM " + " ".join(tags), cost=1)))
            e = g0 + 2
            for it in u.get("pre", []):
                s_dma.append((e, it))
            e = g0 + 4
            for it in u.get("dma", []) + u.get("post", []):
                vm = any(x.kind in ("dma", "vload", "vstore") for x in flat([it]))
                s_dma.append((e + (1 if vm else 0), it))
                if vm:
                    e += u["dgap"]
        if nf < len(frags):
            r = rd(nf)
            s_rd.append((g0 + 1, r[0]))
            s_rd.append((g0 + 3, r[1]))
        if seen[t] == len(ntile_ks[t]):
            if t < 8 and OPT["stamp"] >= 2:
                s_rd.append((len(mf) - 1, stamp_ins(f"t{t}", 2)))
            e = len(mf) + 1
            for pp in range(4):
                c = 64 + 32 * (t % 2) + 8 * pp
                for i in range(4):
                    s_ep.append((e + pp * st_gap, I(f"v_cvt_pk_bf16_f32 v{32 + 4 * pp + i}, v{c + 2 * i}, v{c + 2 * i + 1}")))
                    s_ep[-1][1].deps = mf[-8:]
                s_ep.append((e + pp * st_gap + 5,
                             I(f"buffer_store_dwordx4 {vr(32 + 4 * pp, 4)}, v{vPST}, {srd(SWS)}, s61 offen offset:{1024 * pp} {STF}", tag=f"P{t}")))
            if t < 8:
                s_ep.append((e, I("s_add_u32 s61, s61, 16384")))
    p.extend(sched(mf, [s_rd, s_dma, s_h, s_ep, hooks]))


FR = lambda r, i: 128 + 12 * r + 4 * i


def f_loads(r):
    o = []
    for i in range(3):
        o += [I(f"s_add_u32 s60, s{sRD}, {r * 16384 + 4 * i * SRCS}"),
              I(f"buffer_load_dwordx4 {vr(FR(r, i), 4)}, v{vCON}, {srd(SWS)}, s60 offen sc1")]
    return o


def a_load(r):
    return [I(f"s_add_u32 s60, s{sRD}, {r * 16384 + 12 * SRCS}"),
            I(f"buffer_load_dwordx4 {vr(4 * r, 4, 'a')}, v{vCON}, {srd(SWS)}, s60 offen sc1")]


def end_phase(p, role, nin, pre):
    DF = lambda q: 96 + 4 * q
    DA = lambda q: 236 + 4 * q
    p.append(poll_load())
    p.extend(pre)
    mk_srd(p, SB2, 18, 1152)
    mk_srd(p, SOUT, 22, 2048 * 1152)
    p(f"""
    v_and_b32 v1, 1, v0
    v_lshlrev_b32 v1, 4, v1
    v_mov_b32 v2, 0x3f80
    v_lshlrev_b32 v1, v1, v2
    v_bfe_u32 v2, v0, 1, 3
    """)
    for i in range(8):
        p(f"v_cmp_eq_u32 s[{8 + 2 * (i % 4)}:{9 + 2 * (i % 4)}], {i}, v2")
        if i % 4 == 3:
            for k in range(4):
                p(f"v_cndmask_b32 v{48 + i - 3 + k}, 0, v1, s[{8 + 2 * k}:{9 + 2 * k}]")
    p(f"""
    s_lshr_b32 s59, s{sSRC}, 2
    s_lshl_b32 s59, s59, 5
    s_and_b32 s60, s{sSRC}, 3
    s_lshl_b32 s60, s60, 2
    s_add_u32 s59, s59, s60
    v_bfe_u32 v3, v0, 4, 1
    v_and_b32 v4, 3, v0
    v_lshl_add_u32 v3, v3, 4, v4
    v_add_u32 v3, s59, v3
    v_lshlrev_b32 v4, 2, v3
    v_mul_u32_u24 v63, 1152, v3
    s_mul_i32 s62, s{sMT}, 147456
    s_lshl_b32 s63, s{sMT}, 4
    s_add_u32 s63, s63, s{sW}
    s_lshl_b32 s63, s63, 9
    s_add_u32 s63, s63, {WS_G}
    s_and_b32 s59, s{sMT}, 7
    v_lshrrev_b32 v5, 5, v0
    v_add_u32 v6, s59, v5
    v_bfe_u32 v7, v0, 2, 2
    v_lshlrev_b32 v7, 3, v7
    s_lshl_b32 s59, s{sW}, 5
    v_add_u32 v7, s59, v7
    """)
    for q in range(5):
        p(f"""
        v_add_u32 v8, {2 * q}, v6
        v_subrev_u32 v9, 9, v8
        v_min_u32 v8, v8, v9
        v_lshl_add_u32 v{58 + q}, v8, 7, v7
        """)
    p("v_lshl_add_u32 v62, v5, 31, v62")
    stamp(p, "e_setup")
    p("WAITVM P8")
    p.extend(flag_store(9))
    stamp(p, "e_flag")
    for q in range(5):
        p(f"buffer_load_dwordx2 {vr(116 + 2 * q, 2)}, v{58 + q}, {srd(SB2)}, 0 offen")
    for q in range(5):
        p(f"v_add_u32 v{58 + q}, v63, v{58 + q}")

    def mf_f(r):
        q = r // 2
        for i in range(3):
            p(f"{MF} {vr(DF(q), 4)}, {vr(48 + 4 * (r % 2), 4)}, {vr(FR(r, i), 4)}, {'0' if i == 0 and r % 2 == 0 else vr(DF(q), 4)}")

    def mf_a(r):
        q = r // 2
        p(f"{MF} {vr(DA(q), 4)}, {vr(48 + 4 * (r % 2), 4)}, {vr(4 * r, 4, 'a')}, {'0' if r % 2 == 0 else vr(DA(q), 4)}")

    def fin(q):
        t = 8 + 4 * (q % 2)
        for i in range(2):
            p(f"v_lshlrev_b32 v{t + 2 * i}, 16, v{116 + 2 * q + i}\nv_and_b32 v{t + 2 * i + 1}, 0xffff0000, v{116 + 2 * q + i}")
        for i in range(4):
            p(f"v_add_f32 v{t + i}, v{t + i}, v{DF(q) + i}")
        for i in range(4):
            p(f"v_mul_f32 v{t + i}, v{t + i}, v57")
        for i in range(4):
            p(f"v_fma_f32 v{t + i}, v{DA(q) + i}, v56, v{t + i}")
        p(f"v_cvt_pk_bf16_f32 v{16 + 2 * (q % 2)}, v{t}, v{t + 1}\nv_cvt_pk_bf16_f32 v{17 + 2 * (q % 2)}, v{t + 2}, v{t + 3}")
        p(f"buffer_store_dwordx2 {vr(16 + 2 * (q % 2), 2)}, v{58 + q}, {srd(SOUT)}, s62 offen {OPT['outflav'].replace('plain', '')}")

    p.extend(flat(poll_check(role, 7, 0x0fff)))
    for r in range(nin, 7):
        p.extend(f_loads(r))
    p.extend(flat(poll_check(role, 6, 0xf000)))
    stamp(p, "e_c76")
    p(f"buffer_load_dword v56, v4, {srd(SWS)}, s63 offen sc1")
    for r in range(6):
        p.extend(a_load(r))
    p.append(poll_load())
    for r in range(nin):
        mf_f(r)
    p.extend(flat(poll_check(role, 8, 0xffff)))
    stamp(p, "e_c8")
    p.extend(f_loads(7) + a_load(7) + a_load(6))
    p.append(poll_load())
    p("v_sub_f32 v57, 1.0, v56")
    for r in range(nin, 7):
        mf_f(r)
    for r in range(6):
        mf_a(r)
    fin(0)
    p.extend(flat(poll_check(role, 9, 0xffff)))
    stamp(p, "e_c9")
    p.extend(f_loads(8) + a_load(8))
    mf_f(7); mf_a(6); mf_a(7)
    fin(1); fin(2); fin(3)
    mf_f(8); mf_a(8)
    fin(4)
    stamp_out(p)
    if OPT["endwait"]:
        p("s_waitcnt vmcnt(0)")
    p("s_endpgm")
    p.extend(stubs[role])


def pace(groups, first_step, nsteps, cap, ngap):
    res = []
    gi = 0
    for j in range(first_step, first_step + nsteps):
        d, n = [], 0
        while gi < len(groups) and groups[gi][0] <= j:
            k = sum(1 for x in groups[gi][1] if x.kind in ("dma", "vload", "vstore"))
            if n + k > cap and n > 0 and j < first_step + nsteps - 1:
                break
            d += groups[gi][1]; n += k; gi += 1
        k, o = 0, []
        for it in d:
            vm = it.kind in ("dma", "vload", "vstore")
            o.append((1 + (ngap * k) // max(n, 1) + (2 if vm else 0), it))
            k += vm
        res.append(o)
    assert gi == len(groups)
    return res


def role_ffn():
    p = P()
    XR = 98304
    p("L_ffn:")
    code_touch(p, "ffn", 5, 29)
    p(f"""
    v_lshrrev_b32 v24, 3, v0
    v_and_b32 v25, 7, v0
    s_mul_i32 s59, s{sW}, {32 * 1152}
    v_mul_u32_u24 v26, 1152, v24
    v_add_u32 v26, s59, v26
    v_lshrrev_b32 v27, 1, v24
    v_xor_b32 v27, v25, v27
    v_lshlrev_b32 v27, 4, v27
    v_add_u32 v1, v26, v27
    v_xor_b32 v27, 64, v27
    v_add_u32 v2, v26, v27
    v_add_u32 v2, 8192, v2
    v_add_u32 v3, 16384, v1
    v_add_u32 v4, 16384, v2
    s_and_b32 s59, s{sW}, 1
    s_lshl_b32 s59, s59, 2
    v_and_or_b32 v27, v24, 2, s59
    v_xor_b32 v27, v25, v27
    s_mul_i32 s59, s{sW}, {8 * 9216}
    s_add_u32 s59, s59, 2048
    v_mul_u32_u24 v28, 9216, v24
    v_lshl_add_u32 v28, v27, 4, v28
    v_add_u32 v5, s59, v28
    v_subrev_u32 v6, 896, v5
    v_subrev_u32 v7, 1792, v5
    s_mul_i32 s62, s{sMT}, 147456
    s_mul_i32 s63, s{sSRC}, 768
    s_mul_i32 s64, s{sSRC}, {384 * 1152}
    s_lshl_b32 s65, s{sW}, 12
    s_add_u32 s65, s65, {XR}
    s_mul_i32 s66, s{sW}, 6144
    """)
    p("WAITLGKM")
    stamp_begin(p, "ffn", 20)
    stamp(p, "karg", 2)
    mk_srd(p, SX, 4, 2048 * 1152)
    mk_srd(p, SWA, 12, 576 * 9216, bias=2048)

    def dma_ring(st, half):
        o = [I(f"s_add_u32 m0, s65, {(st % 4) * 16384}")]
        if st < 9:
            o.append(I(f"s_add_u32 s60, s62, {st * 128}"))
            regs, sr = [1, 2, 3, 4], SX
        else:
            n = st - 9
            o.append(I(f"s_add_u32 s60, s{sCH + n // 3}, {(n % 3) * 147456}"))
            regs, sr = [8, 9, 10, 11], SWB
        for q in (range(4) if half is None else (2 * half, 2 * half + 1)):
            o.append(I(f"buffer_load_dwordx4 v{regs[q]}, {srd(sr)}, s60 offen offset:{1024 * q} lds", tag=f"R{st}"))
        return o

    def dma_w1(j):
        o = []
        for h in range(2):
            o.append(I(f"s_add_u32 m0, s66, {(j % 4) * 24576 + h * 3072}"))
            o.append(I(f"s_add_u32 s60, s63, {j * 32 * 9216 + h * 384}"))
            for q in range(3):
                o.append(I(f"buffer_load_dwordx4 v{5 + q}, {srd(SWA)}, s60 offen offset:{1024 * q} lds", tag=f"W{j}"))
        return o

    p.extend(dma_ring(0, None) + dma_w1(0))
    stamp(p, "d0", 2)
    mk_srd(p, SSM, 14, 4608 * 2)
    p(f"""
    v_lshrrev_b32 v27, 4, v0
    v_lshlrev_b32 v27, 3, v27
    s_lshl_b32 s59, s{sW}, 6
    s_add_u32 s59, s59, s63
    """)
    for t in range(6):
        p(f"buffer_load_dwordx2 {vr(244 + 2 * t, 2)}, v27, {srd(SSM)}, s59 offen offset:{(t // 2) * 256 + (t % 2) * 32}")
    p.extend(dma_w1(1))
    p(f"""
    s_and_b32 s59, s{sMT}, 7
    s_lshl_b32 s59, s59, 2
    s_add_u32 s59, s59, s{sW}
    s_mul_i32 s59, s59, 9216
    s_add_u32 s59, s59, 2048
    v_and_b32 v27, 3, v24
    v_mul_u32_u24 v30, {32 * 9216}, v27
    v_min_u32 v27, 5, v25
    v_lshl_add_u32 v30, v27, 7, v30
    v_add_u32 v30, s59, v30
    """)
    x_touch_addr(p, 31, 27, 0)
    tw = lambda j: touch(30, 29, SWA, 63, j * 32 * 9216)
    tx = lambda J: touch(31, 29, SX, 62, J * 128)
    stamp(p, "d1", 2)
    p.extend(tw(2) + tx(1))
    stamp(p, "tch", 2)
    groups = [(0, dma_ring(1, None)), (0, dma_w1(2))]
    for j in range(3, 18):
        if j < 17:
            groups.append((j - 4, dma_ring((j + 1) // 2, (j + 1) % 2)))
        groups.append((j - 4, dma_w1(j)))
        if j == 3:
            groups.append((0, tw(6)))
        if j == 5:
            groups.append((0, tx(5)))
        if j in (7, 11):
            groups.append((0, tw(j + 3)))
    groups += [(2 * (st - 4) + 1, dma_ring(st, None)) for st in range(9, 13)]
    for g in groups[:OPT["pro"]]:
        p.extend(g[1])
    groups = groups[OPT["pro"]:]
    stamp(p, "pro", 2)
    mk_srd(p, SWB, 16, 4608 * 1152)
    mk_srd(p, SWS, 26, WS_SIZE)
    p(f"""
    v_and_b32 v27, 6, v24
    v_xor_b32 v27, v25, v27
    v_lshl_add_u32 v8, v27, 4, v26
    v_add_u32 v9, 8192, v8
    v_add_u32 v10, 16384, v8
    v_add_u32 v11, 24576, v8
    v_and_b32 v24, 3, v24
    v_and_b32 v25, 3, v0
    v_lshlrev_b32 v25, 3, v25
    v_lshrrev_b32 v26, 4, v0
    v_bfe_u32 v27, v0, 2, 2
    s_and_b32 s59, s{sW}, 1
    s_lshl_b32 s59, s59, 1
    v_xor_b32 v12, s59, v24
    v_lshl_add_u32 v12, v12, 5, v25
    v_lshl_add_u32 v12, v27, 7, v12
    v_mul_u32_u24 v13, 6144, v26
    v_add_u32 v12, v12, v13
    s_lshr_b32 s59, s{sW}, 1
    s_lshl_b32 s59, s59, 10
    v_add_u32 v12, s59, v12
    v_xor_b32 v13, 32, v12
    v_add_u32 v14, 0x10000, v12
    v_add_u32 v15, 0x10000, v13
    v_xor_b32 v22, s{sW}, v24
    v_lshl_add_u32 v22, v22, 5, v25
    v_lshrrev_b32 v27, 2, v0
    v_lshl_add_u32 v22, v27, 7, v22
    v_add_u32 v22, {XR}, v22
    v_and_b32 v24, 15, v0
    v_lshrrev_b32 v25, 1, v24
    v_xor_b32 v25, v25, v26
    v_lshlrev_b32 v25, 4, v25
    v_lshl_add_u32 v16, v24, 7, v25
    v_add_u32 v16, {XR}, v16
    v_xor_b32 v17, 64, v16
    v_lshlrev_b32 v23, 4, v0
    v_add_u32 v21, 0x10000, v23
    s_lshl_b32 s59, s{sW}, 13
    v_add_u32 v18, s59, v23
    v_add_u32 v19, 0x10000, v18
    s_mul_i32 s67, s{sW}, 3072
    """)
    mk_srd(p, SDBG, 24, 256)
    p.extend(handoff_setup(64))
    stamp(p, "setup", 2)
    warm(p, "ffn", 0)
    stamp(p, "warm", 2)
    p("s_branch L_ffn_body\nL_ffn_body:")
    trA = [Addr([12, 14]), Addr([13, 15])]
    xr = [Addr([16]), Addr([17])]
    hw = Addr([18, 19])
    hr = Addr([23, 21])
    trB = Addr([22])
    xf = lambda s, b: vr(32 * s + 4 * b, 4, "a")
    wf = lambda s, t: 64 + 24 * s + 4 * t
    acc = lambda t, b: 64 + 4 * (t * 8 + b)

    def reads(j):
        s = j % 2
        o = []
        for t in range(6):
            off = (j % 4) * 24576 + (t // 2) * 2048
            w = wf(s, t)
            o.append([I(f"ds_read_b64_tr_b16 {vr(w, 2, 'a')}, {trA[t % 2].at(off)}"),
                      I(f"ds_read_b64_tr_b16 {vr(w + 2, 2, 'a')}, {trA[t % 2].at(off + 512)}")])
        xs = [I(f"ds_read_b128 {xf(s, b)}, {xr[j % 2].at(((j // 2) % 4) * 16384 + b * 2048)}") for b in range(8)]
        return o[0] + xs + [y for x in o[1:] for y in x]

    p("WAITVM R0 W0")
    stamp(p, "land", 2)
    p("s_barrier")
    p.extend(reads(0))
    for t in range(6):
        for i in range(2):
            p(f"v_lshlrev_b32 v{40 + 4 * t + 2 * i}, 16, v{244 + 2 * t + i}")
            p(f"v_and_b32 v{41 + 4 * t + 2 * i}, 0xffff0000, v{244 + 2 * t + i}")
    p("WAITLGKM")
    stamp(p, "A0")

    def epi(u, b, slot):
        o = []
        tmp = 32 + 4 * (slot % 4)
        for e in range(2):
            c = acc(2 * u + e, b)
            for i in range(4):
                o.append(I(f"v_mul_f32 v{c + i}, v{c + i}, |v{c + i}|"))
            for i in range(2):
                o.append(I(f"v_cvt_pk_bf16_f32 v{tmp + 2 * e + i}, v{c + 2 * i}, v{c + 2 * i + 1}"))
        for i in range(4):
            o.append(I(f"v_pk_max_i16 v{tmp + i}, v{tmp + i}, 0"))
        o.append(I(f"ds_write_b128 {hw.at(u * 32768 + b * 1024).replace(' offset', f', {vr(tmp, 4)} offset')}"))
        return o

    paced = pace(groups, 0, 18, OPT["cap"], 44)
    fi_a, fi_b = flag_init(32)
    for j in range(18):
        s = j % 2
        last = j == 17
        order = [(t, b) for t in range(6) for b in range(8)]
        if last:
            order = [(2 * u + e, b) for u in range(3) for b in range(8) for e in range(2)]
        mf = [I(f"{MF} {vr(acc(t, b), 4)}, {vr(wf(s, t), 4, 'a')}, {xf(s, b)}, {vr(40 + 4 * t if j == 0 else acc(t, b), 4)}") for t, b in order]
        s_rd, s_ep = [], []
        tags = f"W{j + 1} R{(j + 1) // 2}" if not last else "none"
        if j == 7:
            tags += " FI"
            s_ep.append((6, fi_b))
        s_rd.append((0, [I(f"WAITVM {tags}", cost=1), I("s_barrier")]))
        if not last:
            for i, x in enumerate(reads(j + 1)):
                s_rd.append((2 + 2 * i, x))
        if j == 4:
            s_ep += [(4, x) for x in fi_a]
        if j == 5:
            s_ep += [(4, x) for x in handoff_vregs()]
        if last:
            n = 0
            for u in range(3):
                for b in range(8):
                    for x in epi(u, b, n):
                        s_ep.append((16 * u + 2 * b + 5, x))
                    n += 1
        p.extend(sched(mf, [s_rd, paced[j], s_ep]))
        p("WAITLGKM")
        if j in (1, 3, 8, 16):
            stamp(p, f"A{j + 1}", 2)
    stamp(p, "Aend")
    p("WAITVM R9\ns_barrier")

    def hreg(ks, b):
        n = ks * 8 + b
        return vr(4 * n, 4, "a") if n < 64 else vr(128 + 4 * (n - 64), 4)

    hrd = [I(f"ds_read_b128 {hreg(n // 8, n % 8)}, {hr.at(n * 1024)}") for n in range(96)]
    SL = OPT["slack"]
    nin = 9 - SL
    units, hooks = [], []
    for n in range(27):
        st, t = 9 + n, n // 3
        u = dict(tile=t, tag=f"R{st}", dgap=8,
                 ks=[(4 * (n % 3) + q, (st % 4) * 16384 + q * 4096, 2048) for q in range(4)])
        if n >= 1 and n + 3 < 27:
            u["dma"] = dma_ring(st + 3, None)
        if n % 3 == 2 and t >= 1:
            u["wtags"] = [f"P{t - 1}"]
            u["pre"] = flag_store(t)
            if t == SL - 1 or t >= SL:
                x = poll_load(dbg=t < SL)
                x.tag = f"Q{t}"
                hooks.append((96 * t + 36, x))
                u["wtags"].append(x.tag)
            if t == SL - 1:
                u["pre"] += poll_check("ffn", 16, 1, dbg=True)
            if t >= SL:
                r = t - SL
                u["pre"] += poll_check("ffn", r + 1, 0x0fff)
                u["dgap"] = 4
                u["post"] = [I(f"s_add_u32 m0, s67, {r * 12288}")]
                for i in range(3):
                    u["post"] += [I(f"s_add_u32 s60, s{sRD}, {r * 16384 + 4 * i * SRCS - 1024 * i}"),
                                  I(f"buffer_load_dwordx4 v{vCON}, {srd(SWS)}, s60 offen offset:{1024 * i} sc1 lds", tag="FD")]
        units.append(u)
    phase_b(p, units, hreg, trB, hrd, 8, hooks)
    stamp(p, "Bend")
    pre = P()
    pre(f"v_add_u32 v30, s67, v{vL16}\nv_add_u32 v31, 0x10000, v30\nWAITVM FD")
    for r in range(nin):
        for i in range(3):
            pre(f"ds_read_b128 {vr(FR(r, i), 4)}, {Addr([30, 31]).at(r * 12288 + i * 1024)}")
    end_phase(p, "ffn", nin, pre)
    return p


def role_att():
    p = P()
    WSL, XR, XSL, GT, GG = 28672, 114688, 20480, 155648, 162304
    KR, QR, VR, OR = 0, 41472, 82944, 0
    WO = [126720, 37376, 57856, 82944, 103424]
    p("L_att:")
    code_touch(p, "att", 5, 46)
    p(f"""
    s_sub_u32 s67, s{sSRC}, 12
    v_lshrrev_b32 v24, 3, v0
    v_and_b32 v25, 7, v0
    v_lshrrev_b32 v27, 1, v24
    v_xor_b32 v27, v25, v27
    v_lshlrev_b32 v27, 4, v27
    v_mul_u32_u24 v26, 2304, v24
    s_mul_i32 s62, s{sMT}, 147456
    s_add_u32 s62, s62, 4096
    s_mul_i32 s63, s{sW}, 5
    """)
    for q in range(5):
        p(f"""
        s_add_u32 s59, s63, {q}
        s_and_b32 s60, s59, 7
        s_mul_i32 s60, s60, {16 * 1152}
        s_lshr_b32 s64, s59, 3
        s_mul_i32 s64, s64, 1152
        s_add_u32 s60, s60, s64
        s_sub_u32 s64, s59, 32
        s_mul_i32 s64, s64, 1152
        s_cmp_ge_u32 s59, 16
        s_cselect_b32 s60, s64, s60
        s_add_u32 s60, s60, s62
        s_sub_u32 s60, s60, {1024 * (q % 4)}
        s_cmp_eq_u32 s{sMT}, 0
        s_cselect_b32 s64, 16, 18
        s_cmp_ge_u32 s59, s64
        s_cselect_b32 s60, 0x80000000, s60
        s_and_b32 s64, s59, 1
        s_lshl_b32 s64, s64, 6
        v_xor_b32 v28, s64, v27
        v_add3_u32 v{1 + q}, v26, v28, s60
        """)
    p(f"""
    s_and_b32 s59, s{sW}, 1
    s_lshl_b32 s59, s59, 2
    v_and_or_b32 v27, v24, 2, s59
    v_xor_b32 v27, v25, v27
    s_mul_i32 s59, s{sW}, {8 * 3456}
    s_add_u32 s59, s59, 2048
    v_mul_u32_u24 v28, 3456, v24
    v_add_u32 v28, s59, v28
    v_lshl_add_u32 v6, v27, 4, v28
    v_subrev_u32 v7, 896, v6
    v_subrev_u32 v8, 1792, v6
    v_lshrrev_b32 v29, 1, v27
    v_mul_u32_u24 v30, 1152, v29
    v_and_b32 v27, 1, v27
    v_lshl_add_u32 v30, v27, 4, v30
    v_add_u32 v30, v30, v28
    v_subrev_u32 v30, {2048 - 256}, v30
    v_cmp_eq_u32 vcc, 3, v29
    v_mov_b32 v31, 0x80000000
    v_cndmask_b32 v9, v30, v31, vcc
    s_mul_i32 s64, s67, 288
    s_mul_i32 s65, s{sW}, 5120
    s_mul_i32 s66, s{sW}, 7168
    """)
    p("WAITLGKM")
    stamp_begin(p, "att", 47)
    stamp(p, "karg", 2)
    mk_srd(p, SX, 4, 2048 * 1152, bias=4096)
    mk_srd(p, SWA, 6, 576 * 3456, bias=2048)

    def dma5(base, regs, sr, soff, tag):
        o = [I(f"s_add_u32 m0, s65, {base}"), I(soff)]
        for q in range(4):
            o.append(I(f"buffer_load_dwordx4 v{regs[q]}, {srd(sr)}, s60 offen offset:{1024 * q} lds", tag=tag))
        o.append(I(f"s_add_u32 m0, s65, {base + 4096}"))
        o.append(I(f"buffer_load_dwordx4 v{regs[4]}, {srd(sr)}, s60 offen lds", tag=tag))
        return o

    dma_x = lambda J: dma5(XR + (J % 2) * XSL, [1, 2, 3, 4, 5], SX, f"s_mov_b32 s60, {J * 128}", f"R{J}")
    dma_wo = lambda t: dma5(WO[t % 5], [15, 16, 17, 18, 19], SWB, f"s_mov_b32 s60, s{sCH + t}", f"O{t}")

    def dma_w(j):
        tg = f"W{j}"
        o = [I(f"s_add_u32 m0, s66, {(j % 4) * WSL}"), I(f"s_add_u32 s60, s64, {j * 32 * 3456}")]
        for q, r in enumerate([6, 7, 7, 8]):
            o.append(I(f"buffer_load_dwordx4 v{r}, {srd(SWA)}, s60 offen offset:{1024 * q} lds", tag=tg))
        o.append(I(f"s_add_u32 m0, s66, {(j % 4) * WSL + 4096}"))
        o.append(I(f"s_add_u32 s59, s64, {j * 32 * 3456 + 2304}"))
        o.append(I(f"buffer_load_dwordx4 v9, {srd(SWA)}, s60 offen offset:2048 lds", tag=tg))
        o.append(I(f"buffer_load_dwordx4 v7, {srd(SWA)}, s59 offen offset:1024 lds", tag=tg))
        o.append(I(f"buffer_load_dwordx4 v6, {srd(SWA)}, s59 offen lds", tag=tg))
        return o

    mk_srd(p, SSM, 20, 576 * 2)
    p(f"""
    s_lshl_b32 s59, s{sW}, 6
    v_add_u32 v32, s59, v0
    v_lshlrev_b32 v33, 1, v32
    """)
    for i in range(3):
        p(f"buffer_load_ushort v{34 + 2 * i}, v33, {srd(SSM)}, 0 offen offset:{512 * i}")
    p.extend(dma_x(0) + dma_w(0) + dma_w(1))
    p(f"""
    s_and_b32 s59, s{sMT}, 7
    s_lshl_b32 s59, s59, 2
    s_add_u32 s59, s59, s{sW}
    s_mul_i32 s59, s59, 3456
    s_add_u32 s59, s59, 2048
    v_lshrrev_b32 v27, 4, v0
    v_mul_u32_u24 v44, {32 * 3456}, v27
    v_bfe_u32 v27, v0, 2, 2
    v_min_u32 v27, 2, v27
    v_mul_u32_u24 v27, 1152, v27
    v_add3_u32 v44, v44, v27, s59
    v_and_b32 v27, 3, v0
    v_min_u32 v27, 2, v27
    v_lshl_add_u32 v44, v27, 7, v44
    """)
    x_touch_addr(p, 45, 27, 0)
    p("s_mov_b32 s16, s62")
    tw = lambda j: touch(44, 46, SWA, 64, j * 32 * 3456)
    tx = lambda J: touch(45, 46, SX, 16, J * 128)
    p.extend(tw(2) + tx(1))
    groups = [(0, dma_x(1)), (0, dma_w(2)), (0, dma_w(3)), (0, tw(6)), (0, dma_w(4))]
    for j in range(5, 18):
        if j % 2 == 1:
            groups.append((j - 4, dma_x((j - 1) // 2)))
        groups.append((j - 4, dma_w(j)))
        if j == 5:
            groups.append((0, tx(5)))
        if j in (7, 11):
            groups.append((0, tw(j + 3)))
    groups.append((17, dma_wo(0)))
    for g in groups[:OPT["proa"]]:
        p.extend(g[1])
    groups = groups[OPT["proa"]:]
    mk_srd(p, SWB, 8, 576 * 1152)
    mk_srd(p, SWS, 26, WS_SIZE)
    for q in range(5):
        p(f"""
        s_add_u32 s59, s63, {q}
        s_lshl_b32 s60, s59, 3
        v_add_u32 v26, s60, v24
        v_lshrrev_b32 v27, 4, v26
        v_lshl_add_u32 v27, v27, 1, v26
        v_subrev_u32 v28, 128, v26
        v_lshrrev_b32 v28, 1, v28
        v_mul_u32_u24 v28, 18, v28
        v_and_b32 v29, 1, v26
        v_add3_u32 v28, v28, v29, 16
        v_cmp_gt_u32 vcc, 128, v26
        v_cndmask_b32 v27, v28, v27, vcc
        v_mul_u32_u24 v27, 1152, v27
        s_and_b32 s60, s59, 1
        s_lshl_b32 s60, s60, 2
        v_and_or_b32 v28, v24, 2, s60
        v_xor_b32 v28, v25, v28
        v_lshl_add_u32 v27, v28, 4, v27
        s_cmp_ge_u32 s59, 18
        s_mov_b32 s60, {-1024 * (q % 4)}
        s_cselect_b32 s60, 0x80000000, s60
        v_add_u32 v{15 + q}, s60, v27
        """)
    p(f"""
    s_mul_i32 s68, s67, {144 * 1152}
    v_and_b32 v26, 3, v32
    v_lshlrev_b32 v26, 3, v26
    v_bfe_u32 v27, v32, 2, 1
    v_lshl_add_u32 v26, v27, 9, v26
    v_bfe_u32 v27, v32, 3, 4
    v_lshl_add_u32 v26, v27, 5, v26
    v_lshrrev_b32 v27, 7, v32
    v_lshl_add_u32 v26, v27, 10, v26
    v_add_u32 v33, {GT}, v26
    v_and_b32 v24, 3, v24
    v_and_b32 v25, 3, v0
    v_lshlrev_b32 v25, 3, v25
    v_lshrrev_b32 v26, 4, v0
    v_bfe_u32 v27, v0, 2, 2
    v_xor_b32 v28, s{sW}, v24
    v_lshl_add_u32 v28, v28, 5, v25
    v_lshl_add_u32 v28, v27, 7, v28
    v_mul_u32_u24 v10, 7168, v26
    v_add_u32 v10, v10, v28
    v_add_u32 v11, 0x10000, v10
    v_lshl_add_u32 v20, v26, 10, v28
    v_add_u32 v21, 0x10000, v20
    v_add_u32 v22, 0x20000, v20
    v_add_u32 v12, 6144, v10
    v_lshlrev_b32 v29, 5, v26
    v_lshl_add_u32 v29, v27, 3, v29
    v_add_u32 v29, {GT}, v29
    s_cmp_eq_u32 s{sW}, 3
    s_cselect_b64 vcc, -1, 0
    s_mov_b32 s62, {WSL}
    s_mov_b32 s69, {-3 * WSL}
    s_cselect_b32 s62, 128, s62
    s_cselect_b32 s69, 640, s69
    v_cndmask_b32 v12, v12, v29, vcc
    v_and_b32 v24, 15, v0
    v_lshrrev_b32 v25, 1, v24
    v_xor_b32 v25, v25, v26
    v_lshlrev_b32 v25, 4, v25
    v_lshl_add_u32 v13, v24, 7, v25
    v_add_u32 v13, {XR}, v13
    v_xor_b32 v14, 64, v13
    v_lshlrev_b32 v23, 4, v0
    """)
    mk_srd(p, SDBG, 24, 256)
    p.extend(handoff_setup(68))
    stamp(p, "setup", 2)
    warm(p, "att", 0)
    stamp(p, "warm", 2)
    p("s_branch L_att_body\nL_att_body:")
    for i in range(3):
        p(f"v_lshl_or_b32 v{34 + 2 * i}, v{34 + 2 * i}, 16, v{34 + 2 * i}\nv_mov_b32 v{35 + 2 * i}, v{34 + 2 * i}")
        p(f"ds_write_b64 v33, {vr(34 + 2 * i, 2)} offset:{2048 * i}")
    trA = Addr([10, 11])
    xr = [Addr([13]), Addr([14])]
    xf = lambda s, b: vr(36 * s + 4 * b, 4, "a")
    wf = lambda s, t: 72 + 28 * s + 4 * t
    nb = [8, 8, 9, 9, 9, 9, 9]
    accbase = [48, 80, 112, 148, 184, 220]
    acc = lambda t, b: vr(accbase[t] + 4 * b, 4) if t < 6 else vr(128 + 4 * b, 4, "a")

    def reads(j):
        s = j % 2
        o = []
        for t in range(7):
            w = wf(s, t)
            if t < 6:
                off = (j % 4) * WSL + t * 1024
                a0, a1 = trA.at(off), trA.at(off + 512)
            else:
                a0, a1 = "v12", "v12 offset:512"
            o.append([I(f"ds_read_b64_tr_b16 {vr(w, 2, 'a')}, {a0}"), I(f"ds_read_b64_tr_b16 {vr(w + 2, 2, 'a')}, {a1}")])
        o[6].append(I(f"v_add_u32 v12, s{69 if j % 4 == 3 else 62}, v12"))
        xs = [I(f"ds_read_b128 {xf(s, b)}, {xr[j % 2].at(((j // 2) % 2) * XSL + b * 2048)}") for b in range(9)]
        return o[0] + xs + [y for x in o[1:] for y in x]

    p("WAITVM R0 W0\nWAITLGKM\ns_barrier")
    p.extend(reads(0))
    p("WAITLGKM")
    stamp(p, "A0")

    ep_addr = P()
    ep_addr(f"""
    v_mul_u32_u24 v27, 576, v26
    s_mul_i32 s59, s{sW}, {8 * 288}
    v_add_u32 v27, s59, v27
    v_lshl_add_u32 v28, v24, 2, v27
    v_add_u32 v29, 20736, v28
    v_add_u32 v30, 9216, v28
    v_add_u32 v31, {9216 + 20736}, v28
    v_add_u32 v32, {QR}, v28
    v_add_u32 v33, {QR + 20736}, v28
    v_add_u32 v34, {QR + 9216}, v28
    v_add_u32 v35, {QR + 9216 + 20736}, v28
    v_lshrrev_b32 v25, 3, v24
    v_mul_u32_u24 v25, {20736 - 32}, v25
    v_add_u32 v36, v28, v25
    v_add_u32 v37, 9216, v36
    s_mul_i32 s59, s{sW}, {16 * 152}
    s_add_u32 s59, s59, {VR}
    v_mul_u32_u24 v38, 152, v24
    v_add_u32 v38, s59, v38
    v_lshl_add_u32 v38, v26, 3, v38
    v_lshrrev_b32 v25, 1, v26
    v_mul_u32_u24 v25, {21888 - 16}, v25
    v_add_u32 v39, v38, v25
    """)

    def epi(t, b, n):
        c = accbase[t] + 4 * b
        tmp = 40 + 2 * (n % 3)
        o = [I(f"v_cvt_pk_bf16_f32 v{tmp}, v{c}, v{c + 1}"), I(f"v_cvt_pk_bf16_f32 v{tmp + 1}, v{c + 2}, v{c + 3}")]
        e, q = b // 4, b % 4
        if t < 4:
            if b < 8:
                a = (32 if t < 2 else 28) + 2 * (t % 2) + e
                o.append(I(f"ds_write2_b32 v{a}, v{tmp}, v{tmp + 1} offset0:{16 * q + 8} offset1:{16 * q + 80}"))
            else:
                o.append(I(f"ds_write2_b32 v{36 + t % 2}, v{tmp}, v{tmp + 1} offset0:0 offset1:72"))
        else:
            if b < 8:
                o.append(I(f"ds_write_b64 v38, {vr(tmp, 2)} offset:{e * 21888 + (t % 2) * 9728 + 32 * q + 16}"))
            else:
                o.append(I(f"ds_write_b64 v39, {vr(tmp, 2)} offset:{(t % 2) * 9728}"))
        return o

    paced = pace(groups, 0, 18, 15, 56)
    fi_a, fi_b = flag_init(40)
    for j in range(18):
        s = j % 2
        last = j == 17
        mf, ends = [], []
        for t in range(7):
            for b in range(nb[t]):
                a_, b_ = vr(wf(s, t), 4, "a"), xf(s, b)
                if t in (4, 5):
                    a_, b_ = b_, a_
                mf.append(I(f"{MF} {acc(t, b)}, {a_}, {b_}, {'0' if j == 0 else acc(t, b)}"))
                ends.append((t, b))
        s_rd, s_dma, s_ep = [], [], []
        tags = f"W{j + 1} R{(j + 1) // 2}" if not last else "none"
        if j == 7:
            tags += " FI"
            s_ep.append((6, fi_b))
        s_rd.append((0, [I(f"WAITVM {tags}", cost=1), I("s_barrier")]))
        if not last:
            for i, x in enumerate(reads(j + 1)):
                s_rd.append((2 + 2 * i, x))
        s_dma = paced[j]
        if j == 4:
            s_ep += [(4, x) for x in fi_a]
        if j == 16:
            s_ep += [(4, x) for x in ep_addr]
        if last:
            for n, (t, b) in enumerate(ends):
                if t < 6:
                    s_ep += [(n + 4, x) for x in epi(t, b, n)]
        p.extend(sched(mf, [s_rd, s_dma, s_ep]))
        if not last:
            p("WAITLGKM")
        if j in (3, 8, 16):
            stamp(p, f"A{j + 1}", 2)
    stamp(p, "Aend")
    p(f"s_cmp_eq_u32 s{sW}, 2\ns_cbranch_scc1 L_v8\ns_cmp_eq_u32 s{sW}, 3\ns_cbranch_scc1 L_gate")
    p(f"""
    s_cmp_eq_u32 s{sW}, 0
    s_mov_b32 s59, {KR + 56 * 288}
    s_cselect_b32 s59, {QR + 64 * 288}, s59
    v_add_u32 v28, s59, v28
    v_add_u32 v29, s59, v29
    v_add_u32 v36, s59, v36
    """)
    for b in range(9):
        c = 48 + 4 * b
        for i in range(4):
            p(f"v_accvgpr_read_b32 v{c + i}, a{128 + 4 * b + i}")
        p(f"v_cvt_pk_bf16_f32 v{c}, v{c}, v{c + 1}\nv_cvt_pk_bf16_f32 v{c + 1}, v{c + 2}, v{c + 3}")
        if b < 8:
            p(f"ds_write2_b32 v{28 + b // 4}, v{c}, v{c + 1} offset0:{16 * (b % 4) + 8} offset1:{16 * (b % 4) + 80}")
        else:
            p(f"ds_write2_b32 v36, v{c}, v{c + 1} offset0:0 offset1:72")
    p("s_branch L_join\nL_v8:\ns_nop 7")
    p(f"""
    v_mul_u32_u24 v28, {4 * 152}, v26
    v_lshl_add_u32 v28, v24, 1, v28
    v_add_u32 v28, {VR + 128 * 152}, v28
    v_lshrrev_b32 v25, 3, v24
    v_mul_u32_u24 v25, {21888 - 16}, v25
    v_add_u32 v29, v28, v25
    """)
    for b in range(9):
        c = 48 + 4 * b
        for i in range(4):
            p(f"v_accvgpr_read_b32 v{c + i}, a{128 + 4 * b + i}")
        p(f"v_cvt_pk_bf16_f32 v{c}, v{c}, v{c + 1}\nv_cvt_pk_bf16_f32 v{c + 1}, v{c + 2}, v{c + 3}")
        off = (b // 4) * 21888 + 32 * (b % 4) + 16 if b < 8 else 0
        for i in range(4):
            p(f"ds_write_b16{'_d16_hi' if i % 2 else ''} v{28 if b < 8 else 29}, v{c + i // 2} offset:{off + 152 * i}")
    p("s_branch L_join\nL_gate:\ns_nop 7")
    p(f"v_lshlrev_b32 v28, 3, v24\nv_add_u32 v28, {GG}, v28")
    for b in range(8):
        p(f"v_accvgpr_read_b32 v{48 + b}, a{128 + 4 * b}")
    for b in range(8):
        p(f"v_mul_f32 v{48 + b}, 0xbfb8aa3b, v{48 + b}")
    for b in range(8):
        p(f"v_exp_f32 v{48 + b}, v{48 + b}")
    for b in range(8):
        p(f"v_add_f32 v{48 + b}, 1.0, v{48 + b}")
    for b in range(8):
        p(f"v_rcp_f32 v{48 + b}, v{48 + b}")
    p("s_nop 0")
    for b in range(8):
        p(f"ds_write_b32 v28, v{48 + b} offset:{128 * (b % 4) + 4 * (b // 4)}")
    p("L_join:")
    p(f"""
    v_and_b32 v25, 1, v26
    v_lshrrev_b32 v27, 5, v0
    s_lshl_b32 s59, s{sW}, 1
    v_add_u32 v27, s59, v27
    v_mul_u32_u24 v28, 20736, v25
    v_mul_u32_u24 v29, {9 * 288}, v27
    v_lshlrev_b32 v30, 4, v24
    v_add3_u32 v28, v28, v29, v30
    v_mul_u32_u24 v29, 21888, v25
    v_mul_u32_u24 v30, {18 * 152}, v27
    v_add_u32 v29, v29, v30
    v_lshl_add_u32 v29, v24, 3, v29
    v_add_u32 v29, {VR}, v29
    v_lshrrev_b32 v30, 1, v24
    v_mul_u32_u24 v30, 4640, v30
    v_and_b32 v31, 1, v24
    v_lshl_add_u32 v31, v31, 3, v25
    v_mul_u32_u24 v31, 288, v31
    v_add_u32 v31, v30, v31
    v_lshl_add_u32 v30, v27, 5, v31
    v_lshl_add_u32 v31, v27, 2, v31
    s_lshl_b32 s59, s{sMT}, 6
    s_sub_u32 s59, s59, 8
    v_lshl_add_u32 v80, v24, 2, s59
    v_cvt_f32_i32 v80, v80
    v_mul_f32 v80, 0x71800000, v80
    """)
    import struct
    f2u = lambda x: struct.unpack("<I", struct.pack("<f", x))[0]
    for i in range(1, 8):
        p(f"v_add_f32 v{80 + i}, {hex(f2u(i * 2.0 ** 100))}, v80")
    for i in range(1, 8):
        p(f"v_min_f32 v{80 + i}, 0, v{80 + i}")
    p(f"""
    v_mul_u32_u24 v13, 288, v24
    v_lshl_add_u32 v14, v25, 4, v13
    v_lshl_add_u32 v13, v26, 4, v13
    """)
    p("s_waitcnt lgkmcnt(0)\ns_barrier")
    stamp(p, "join", 2)
    p(f"""
    v_lshlrev_b32 v32, 3, v0
    v_add_u32 v33, {GG}, v32
    ds_read_b64 v[34:35], v33
    """)
    p.append(poll_load(dbg=True))
    S = lambda qi, wi: 48 + 8 * qi + wi

    def kq_rd(dc):
        kb = 88 + 16 * (dc % 3)
        return [I(f"ds_read_b128 {vr(kb + 4 * z, 4)}, v28 offset:{KR + dc * 288 + 16 * z}") for z in range(3)] + \
               [I(f"ds_read_b128 {vr(kb + 12, 4)}, v28 offset:{QR + dc * 288 + 32}")]

    def v_rd(f):
        vb = 154 + 6 * (f % 4)
        return [I(f"ds_read_b64 {vr(vb + 2 * j, 2)}, v29 offset:{f * 152 + 8 * j}") for j in range(3)]

    p.extend(kq_rd(0) + kq_rd(1))
    p(f"s_lshl_b32 s59, s{sMT}, 2\ns_add_u32 s59, s59, s67\ns_lshl_b32 s59, s59, 2\ns_add_u32 s59, s59, s{sW}")
    p(f"s_lshl_b32 s59, s59, 9\ns_add_u32 s59, s59, {WS_G}")
    p(f"buffer_store_dwordx2 v[34:35], v32, {srd(SWS)}, s59 offen sc1")
    for dc in range(9):
        kb = 88 + 16 * (dc % 3)
        nx = kq_rd(dc + 2) if dc + 2 < 9 else []
        n = 0
        for wi in range(7, -1, -1):
            for qi in range(4):
                idx = 8 + qi - wi
                c = f"v{S(qi, wi)}" if dc else (f"v{80 + idx}" if idx < 8 else "0")
                p(f"v_dot2_f32_bf16 v{S(qi, wi)}, v{kb + 12 + qi}, v{kb + idx}, {c}")
                n += 1
                if n % 6 == 0 and nx:
                    p.append(nx.pop(0))
    stamp(p, "qk", 2)
    p("s_barrier")
    p.extend(flat(poll_check("att", 16, 1, dbg=True)))
    stamp(p, "dbg", 2)
    p.extend(dma_wo(1) + dma_wo(2))
    stamp(p, "wo12", 2)
    p.extend(v_rd(0) + v_rd(1) + v_rd(2))
    CSC = (18 ** -0.5) * 1.4426950408889634
    p(f"s_mov_b32 s62, {hex(f2u(CSC))}")
    T = lambda qi: 232 + qi
    for qi in range(4):
        p(f"v_max3_f32 v{T(qi)}, v{S(qi, 0)}, v{S(qi, 1)}, v{S(qi, 2)}")
    for qi in range(4):
        p(f"v_max3_f32 v{T(qi)}, v{T(qi)}, v{S(qi, 3)}, v{S(qi, 4)}")
    for qi in range(4):
        p(f"v_max3_f32 v{T(qi)}, v{T(qi)}, v{S(qi, 5)}, v{S(qi, 6)}")
    for qi in range(4):
        p(f"v_max_f32 v{T(qi)}, v{T(qi)}, v{S(qi, 7)}")
    for qi in range(4):
        p(f"v_mul_f32 v{T(qi)}, s62, v{T(qi)}")
    for qi in range(4):
        for wi in range(8):
            p(f"v_fma_f32 v{S(qi, wi)}, v{S(qi, wi)}, s62, -v{T(qi)}")
    for qi in range(4):
        for wi in range(8):
            p(f"v_exp_f32 v{S(qi, wi)}, v{S(qi, wi)}")
    for wi in range(1, 8):
        for qi in range(4):
            p(f"v_add_f32 v{T(qi)}, v{S(qi, 0) if wi == 1 else T(qi)}, v{S(qi, wi)}")
    for qi in range(4):
        p(f"v_rcp_f32 v{T(qi)}, v{T(qi)}")
    for qi in range(4):
        for wi in range(8):
            p(f"v_mul_f32 v{S(qi, wi)}, v{S(qi, wi)}, v{T(qi)}")
    PP = {}
    n = 136
    for qi in range(4):
        for j in range(6):
            w0, w1 = 8 + qi - 2 * j, 8 + qi - 2 * j - 1
            ok0, ok1 = 0 <= w0 < 8, 0 <= w1 < 8
            if ok0 or ok1:
                PP[qi, j] = n
                p(f"v_cvt_pk_bf16_f32 v{n}, {'v%d' % S(qi, w0) if ok0 else '0'}, {'v%d' % S(qi, w1) if ok1 else '0'}")
                n += 1
    assert n == 154
    stamp(p, "smax", 2)
    po = lambda qi, d: 196 + 8 * qi + d if d < 8 else 228 + qi
    pend = []
    for f in range(18):
        vb = 154 + 6 * (f % 4)
        ot = lambda qi: 178 + 8 * ((f // 2) % 2) + 2 * qi + f % 2
        nx = v_rd(f + 3) if f + 3 < 18 else []
        started = set()
        n = 0
        for j in range(6):
            for qi in range(4):
                if (qi, j) in PP:
                    p(f"v_dot2_f32_bf16 v{ot(qi)}, v{PP[qi, j]}, v{vb + j}, {'v%d' % ot(qi) if qi in started else '0'}")
                    started.add(qi)
                    n += 1
                    if n % 5 == 0 and nx:
                        p.append(nx.pop(0))
                    if n >= 4 and pend:
                        p.append(pend.pop(0))
        if f % 2 == 1:
            d = f // 2
            pend = [I(f"v_cvt_pk_bf16_f32 v{po(qi, d)}, v{ot(qi) - 1}, v{ot(qi)}") for qi in range(4)]
            if d in (3, 7):
                pend += [I(f"ds_write_b128 v30, {vr(po(qi, d - 3), 4)} offset:{OR + qi * 576 + 16 * (d // 4)}") for qi in range(4)]
            if d == 8:
                pend += [I(f"ds_write_b32 v31, v{po(qi, 8)} offset:{OR + qi * 576 + 256}") for qi in range(4)]
    p.extend(pend)
    stamp(p, "core")
    if OPT["stamp"]:
        p("s_waitcnt lgkmcnt(0)\nv_mov_b32 v30, v47")
        cur["vst"] = 30
    p("WAITVM O0\nWAITLGKM\ns_barrier")
    p.extend(dma_wo(3))
    oreg = lambda ks, b: vr(4 * (ks * 8 + b), 4, "a")
    ord_ = [I(f"ds_read_b128 {oreg(ks, b)}, v{13 if ks < 4 else 14} offset:{OR + b * 4640 + 64 * ks}") for ks in range(5) for b in range(8)]
    units = []
    hooks = [(20, x) for x in handoff_vregs()]
    rounds = {2: [0, 1], 4: [2, 3], 6: [4], 8: [5]}
    nin = 6
    for t in range(9):
        u = dict(tile=t, tag=f"O{t}", dgap=8, ks=[(q, WO[t % 5] + q * 4096, 512) for q in range(5)])
        if t + 4 < 9:
            u["dma"] = dma_wo(t + 4)
        if t >= 2:
            u["wtags"] = [f"P{t - 2}"]
            u["pre"] = flag_store(t - 1)
        if t in rounds:
            x = poll_load()
            x.tag = f"Q{t}"
            hooks.append((40 * t - 12, x))
            u["wtags"].append(x.tag)
            u["pre"] += poll_check("att", rounds[t][-1] + 1, 0x0fff)
            u["post"] = [y for r in rounds[t] for y in f_loads(r)]
            u["dgap"] = 3
        units.append(u)
    phase_b(p, units, oreg, Addr([20, 21, 22]), ord_, 6, hooks)
    stamp(p, "Bend")
    pre = P()
    pre("WAITVM P7")
    pre.extend(flag_store(8))
    end_phase(p, "att", nin, pre)
    return p


def k1_head():
    p = P()
    p("s_cmp_ge_u32 s2, 256\ns_cbranch_scc1 L_exit")
    p("s_load_dwordx16 s[4:19], s[0:1], 0\ns_load_dwordx8 s[20:27], s[0:1], 64")
    if OPT["stamp"]:
        p("s_memrealtime s[86:87]\ns_memtime s[88:89]")
    p(f"""
    v_lshrrev_b32 v1, 6, v0
    v_and_b32 v0, 63, v0
    v_readfirstlane_b32 s{sW}, v1
    s_bfe_u32 s59, s2, 0x10002
    s_lshl_b32 s59, s59, 3
    s_bfe_u32 s{sMT}, s2, 0x30003
    s_add_u32 s{sMT}, s{sMT}, s59
    s_and_b32 s59, s2, 3
    s_lshr_b32 s60, s2, 6
    s_mul_i32 s{sSRC}, s59, 3
    s_add_u32 s{sSRC}, s{sSRC}, s60
    s_sub_u32 s{sSRC}, s{sSRC}, 1
    s_cmp_lg_u32 s60, 0
    s_cbranch_scc1 L_ffn
    s_add_u32 s{sSRC}, s59, 12
    """)
    return p


def desc(name, nv, acc):
    return f""".amdhsa_kernel {name}
  .amdhsa_next_free_vgpr {nv}
  .amdhsa_next_free_sgpr 102
  .amdhsa_accum_offset {acc}
  .amdhsa_group_segment_fixed_size 0
  .amdhsa_kernarg_size 96
  .amdhsa_user_sgpr_count 2
  .amdhsa_user_sgpr_kernarg_segment_ptr 1
  .amdhsa_system_sgpr_workgroup_id_x 1
.end_amdhsa_kernel"""


def main():
    fin = Finalizer()
    head = k1_head()
    parts = {}
    for role, fn in (("att", role_att), ("ffn", role_ffn)):
        code = fin.run(head + fn())
        i0 = next(i for i, x in enumerate(code) if x.text == f"L_{role}:")
        i1 = next(i for i, x in enumerate(code) if x.text == f"L_{role}_body:")
        body, npad, nb, st = layout(code[i1:], 0, f"L_{role}_pad" if OPT["warm"] else None, 4, f"L_{role}_ret", OPT["align"])
        parts[role] = (code[:i0], code[i0:i1], body)
        sys.stderr.write(f"{role}: {len(code)} ins {fin.stats} body {nb} B pads {npad} {st} prologue {sum(inst_sizes(code[:i1]))} B\n")
    ref = open(f"cdna_kernels/{NAME}.s.ref").read().split("\n")
    hdr = [l for l in ref if l.startswith(";") and "@launch" not in l]
    if OPT["stamp"]:
        hdr += [f"; stamps {r} " + " ".join(n) for r, n in stnames.items()]
    o = hdr + ["; @launch grid=(256,1,1) block=(256,1,1) lds=163840",
               '.amdgcn_target "amdgcn-amd-amdhsa--gfx950"', ".text",
               f".globl {NAME}_kernel", ".p2align 12", ".p2align 8", f".type {NAME}_kernel,@function", f"{NAME}_kernel:",
               text_of(parts["att"][0]), text_of(parts["att"][1]), text_of(parts["ffn"][1]), "L_exit:", "    s_endpgm",
               ".p2align 12", text_of(parts["ffn"][2]), ".p2align 12", text_of(parts["att"][2]), ".p2align 12",
               '.section .rodata,"a"', ".p2align 6", desc(f"{NAME}_kernel", 512, 256)]
    print("\n".join(o))


main()
```

```python
import re

REG_RE = re.compile(r"^(-?\|?)([vas])(\d+)\|?$")
RNG_RE = re.compile(r"^(-?\|?)([vas])\[(\d+):(\d+)\]\|?$")
TRANS = ("v_exp_f32", "v_log_f32", "v_rcp_f32", "v_rsq_f32", "v_sqrt_f32", "v_sin_f32", "v_cos_f32")


def regs_of(tok):
    tok = tok.strip()
    m = REG_RE.match(tok)
    if m:
        return [(m.group(2), int(m.group(3)))]
    m = RNG_RE.match(tok)
    if m:
        return [(m.group(2), i) for i in range(int(m.group(3)), int(m.group(4)) + 1)]
    if tok in ("vcc", "vcc_lo", "vcc_hi"):
        return [("s", "vcc")]
    if tok == "m0":
        return [("s", "m0")]
    if tok == "exec":
        return [("s", "exec")]
    return []


def vr(n, k=1, t="v"):
    return f"{t}{n}" if k == 1 else f"{t}[{n}:{n + k - 1}]"


class Ins:
    def __init__(self, text, tag=None, cost=None):
        self.text = text
        self.tag = tag
        self.op = text.split()[0] if text else ""
        self.reads, self.writes = set(), set()
        self.srcc = set()
        self.srcab = set()
        self.kind = "other"
        self.deps = []
        self._parse()
        self.cost = cost if cost is not None else self._cost()

    def _parse(self):
        op = self.op
        if op.endswith(":") or op.startswith(".") or op.startswith(";"):
            self.kind = "label" if op.endswith(":") else "dir"
            return
        if op in ("WAITVM", "WAITLGKM", "RESET"):
            self.kind = "pseudo"
            return
        rest = re.sub(r"\s\w+:\[[^\]]*\]", "", self.text[len(op):])
        toks = [t.strip() for t in rest.split(",")]
        last = toks[-1].split()
        mods = last[1:] if last else []
        if last:
            toks[-1] = last[0]
        self.mods = mods
        R = [regs_of(t) for t in toks]
        flat = lambda L: set(x for l in L for x in l)
        if op.startswith("v_mfma"):
            self.kind = "mfma"
            self.writes = set(R[0]); self.srcab = set(R[1]) | set(R[2]); self.srcc = set(R[3])
            self.reads = self.srcab | self.srcc
            self.passes = 2 if "4x4x4" in op else 4 if "16x16" in op else 8
        elif op.startswith("ds_read") or op.startswith("ds_bpermute") or op.startswith("ds_swizzle"):
            self.kind = "dsr"; self.writes = set(R[0]); self.reads = flat(R[1:])
        elif op.startswith("ds_write"):
            self.kind = "dsw"; self.reads = flat(R)
        elif op.startswith("buffer_load") or op.startswith("global_load"):
            if "lds" in mods or "_lds_" in op:
                self.kind = "dma"; self.reads = flat(R) | {("s", "m0")}
            else:
                self.kind = "vload"; self.writes = set(R[0]); self.reads = flat(R[1:])
        elif op.startswith("buffer_store") or op.startswith("global_store"):
            self.kind = "vstore"; self.reads = flat(R)
            self.data = set(R[0]) if op.startswith("buffer") else set(R[1])
        elif op.startswith("buffer_atomic") or op.startswith("global_atomic"):
            self.kind = "vstore"; self.reads = flat(R); self.data = set()
            if "sc0" in mods:
                self.kind = "vload"; self.writes = set(R[0])
        elif op in ("buffer_wbl2", "buffer_inv"):
            self.kind = "vstore"; self.data = set()
        elif op.startswith("s_load") or op in ("s_memtime", "s_memrealtime"):
            self.kind = "smem"; self.writes = set(R[0]); self.reads = flat(R[1:])
        elif op.startswith("s_atomic"):
            self.kind = "salu"; self.reads = flat(R)
        elif op.startswith("s_waitcnt"):
            self.kind = "wait"
        elif op == "s_nop":
            self.kind = "nop"; self.n = int(toks[0])
        elif op == "s_barrier":
            self.kind = "barrier"
        elif op.startswith("s_cbranch") or op in ("s_branch", "s_setpc_b64", "s_endpgm", "s_swappc_b64"):
            self.kind = "branch"; self.reads = flat(R)
        elif op.startswith("s_cmp") or op.startswith("s_bitcmp") or op in ("s_setprio", "s_sleep"):
            self.kind = "salu"; self.reads = flat(R)
        elif op.startswith("s_"):
            self.kind = "salu"; self.writes = set(R[0]); self.reads = flat(R[1:])
            if "saveexec" in op:
                self.writes.add(("s", "exec"))
        elif op.startswith("v_"):
            self.kind = "valu"
            self.writes = set(R[0]); self.reads = flat(R[1:])
            if op.startswith("v_permlane") and "swap" in op:
                self.writes = flat(R); self.reads = flat(R)
            if op.startswith("v_fmac") or op.startswith("v_dot2c"):
                self.reads |= set(R[0])
            if op.startswith("v_add_co") or op.startswith("v_sub_co") or op.startswith("v_addc_co"):
                self.writes |= set(R[1])
            if op.startswith("v_dot2"):
                self.srcc = set(R[3]) if len(R) > 3 else set(R[0])
                self.srcab = set(R[1]) | set(R[2])
        else:
            raise ValueError("unknown instruction: " + self.text)

    def _cost(self):
        k = self.kind
        if k in ("dma", "vload"):
            return 2
        if k == "vstore":
            return 2
        if k == "dsw":
            return 2 if "b128" in self.op else 1
        if k == "valu" and self.op.startswith(TRANS):
            return 2
        if k in ("label", "dir"):
            return 0
        return 1

    def states(self):
        if self.kind == "nop":
            return self.n + 1
        if self.kind in ("label", "dir", "pseudo"):
            return 0
        return 1


def I(text, tag=None, cost=None):
    return Ins(text, tag, cost)


def is_v(r):
    return r[0] in ("v", "a")


def need_states(p, c):
    n = 0
    pk, ck = p.kind, c.kind
    vmem = ("dma", "vload", "vstore")
    if pk == "valu":
        vw = {r for r in p.writes if is_v(r)}
        sw = {r for r in p.writes if r[0] == "s"}
        isdot = p.op.startswith("v_dot2")
        if ck == "mfma" and vw & c.reads:
            n = max(n, 3 if isdot else 2)
        if ck == "valu":
            if c.op.startswith("v_permlane") and vw & c.reads:
                n = max(n, 2)
            if c.op.startswith(("v_readlane", "v_readfirstlane")) and vw & c.reads:
                n = max(n, 1)
            if ("row_" in c.text or "quad_perm" in c.text or "wave_" in c.text) and vw & c.reads:
                n = max(n, 2)
            if p.op.startswith(TRANS) and vw & c.reads:
                n = max(n, 1)
            if sw & c.reads:
                n = max(n, 4 if c.op.startswith(("v_readlane", "v_writelane")) else 2)
            if ("s", "exec") in sw:
                n = max(n, 4)
        if isdot:
            if ck == "valu" and c.op == p.op:
                if vw & c.srcab:
                    n = max(n, 3)
            elif vw & (c.reads | c.writes):
                n = max(n, 3)
        if ck in vmem and sw & c.reads:
            n = max(n, 5)
        if ck in ("salu", "branch", "smem") and sw & c.reads:
            n = max(n, 2)
        if ck == "branch" and ("vcc" in c.op) and ("s", "vcc") in sw:
            n = max(n, 5)
    if pk == "mfma":
        rd_, ov_, war_, same_ = {2: (5, 4, 1, 2), 4: (8, 6, 3, 0), 8: (12, 10, 7, 0)}[p.passes]
        if ck == "mfma":
            if p.writes & c.srcab:
                n = max(n, rd_)
            if p.writes & c.srcc:
                n = max(n, same_ if (p.writes == c.srcc and p.passes == c.passes) else ov_)
            if p.writes & c.writes:
                n = max(n, same_ if (p.writes == c.writes and p.passes == c.passes) else ov_)
        elif ck in ("valu", "dsr", "dsw") + vmem:
            if p.writes & (c.reads | c.writes):
                n = max(n, rd_)
            if p.srcc & c.writes:
                n = max(n, war_)
    if pk == "salu" and ("s", "m0") in p.writes and ck == "dma":
        n = max(n, 1)
    if pk == "vstore" and ("x4" in p.op or "x3" in p.op) and p.data & c.writes:
        n = max(n, 2)
    if pk == "dsw" and "b128" in p.op and ck == "valu" and (p.reads & c.writes):
        n = max(n, 1)
    return n


class Finalizer:
    def __init__(self, lgkm_age=10):
        self.lgkm_age = lgkm_age
        self.keep = 2

    def run(self, ins):
        out = []
        lg = []
        vm = []
        smem = []
        stats = {"lgkm": 0, "vm": 0, "nop": 0}
        lastw = {}
        waited = set()

        def pos():
            return len(out)

        def emit(x):
            if x.kind not in ("label", "dir", "wait", "nop", "pseudo"):
                dist = 0
                need = 0
                for p in reversed(out[-24:]):
                    r = need_states(p, x) - dist
                    need = max(need, r)
                    dist += p.states()
                    if dist > 14:
                        break
                while need > 0:
                    k = min(need, 16)
                    out.append(Ins(f"s_nop {k - 1}"))
                    stats["nop"] += 1
                    need -= k
            out.append(x)

        def wait(l=None, v=None):
            parts = []
            if v is not None:
                v = min(v, 63)
                if len(vm) > v:
                    parts.append(f"vmcnt({v})")
                    del vm[: len(vm) - v]
                    stats["vm"] += 1
            if l is not None:
                l = min(l, 15)
                if smem:
                    l = 0
                if len(lg) > l or smem:
                    parts.append(f"lgkmcnt({l})")
                    del lg[: len(lg) - l]
                    del smem[:]
                    stats["lgkm"] += 1
            if parts:
                out.append(Ins("s_waitcnt " + " ".join(parts)))

        for x in ins:
            if x.kind == "pseudo":
                a = x.text.split()
                if x.op == "RESET":
                    del lg[:]; del vm[:]; del smem[:]
                elif x.op == "WAITLGKM":
                    wait(l=0)
                elif x.op == "WAITVM":
                    if a[1] == "ALL":
                        wait(v=0)
                    else:
                        tags = set(a[1:])
                        waited |= tags
                        idx = [i for i, (p, _) in enumerate(vm) if p.tag in tags]
                        if idx:
                            wait(v=len(vm) - 1 - idx[-1])
                continue
            if x.kind == "wait":
                m = re.search(r"vmcnt\((\d+)\)", x.text)
                if m:
                    n = int(m.group(1)); del vm[: max(0, len(vm) - n)]
                m = re.search(r"lgkmcnt\((\d+)\)", x.text)
                if m:
                    n = int(m.group(1)); del lg[: max(0, len(lg) - n)]
                    if n == 0:
                        del smem[:]
                out.append(x)
                continue
            assert x.tag is None or x.tag not in waited, f"tag {x.tag} issued after its wait: {x.text}"
            for d in x.deps:
                for r in d.writes & x.reads:
                    assert lastw.get(r) is d, f"bad producer for {r} in {x.text}: want {d.text}, have {lastw.get(r) and lastw[r].text}"
            for r in x.writes:
                lastw[r] = x
            touch = x.reads | x.writes
            lw = vw = None
            idx = [i for i, (p, _) in enumerate(lg) if p.writes & touch]
            if idx:
                i = idx[-1]
                while i + 1 < len(lg) - self.keep and pos() - lg[i + 1][1] >= self.lgkm_age:
                    i += 1
                lw = len(lg) - 1 - i
            if any(p.writes & touch for p in smem):
                lw = 0
            idx = [i for i, (p, _) in enumerate(vm) if p.writes & touch]
            if idx:
                vw = len(vm) - 1 - idx[-1]
            if lw is not None or vw is not None:
                wait(l=lw, v=vw)
            emit(x)
            if x.kind in ("dsr", "dsw"):
                lg.append((x, pos()))
            elif x.kind in ("dma", "vload", "vstore"):
                vm.append((x, pos()))
                assert len(vm) <= 63 or True
            elif x.kind == "smem":
                smem.append(x)
        self.stats = stats
        return out


def sched(mf, streams, cap=2, flush=True):
    out = []
    heads = [0] * len(streams)
    for g, m in enumerate(mf):
        out.append(m)
        budget = cap
        progress = True
        while progress:
            progress = False
            for si, st in enumerate(streams):
                if heads[si] >= len(st):
                    continue
                e, it = st[heads[si]]
                if e > g:
                    continue
                items = it if isinstance(it, list) else [it]
                c = sum(i.cost for i in items)
                if c <= budget or (budget == cap and c > cap):
                    out.extend(items)
                    budget -= c
                    heads[si] += 1
                    progress = True
                    break
            if budget <= 0:
                for si, st in enumerate(streams):
                    while heads[si] < len(st):
                        e, it = st[heads[si]]
                        items = it if isinstance(it, list) else [it]
                        if e <= g and sum(i.cost for i in items) == 0:
                            out.extend(items); heads[si] += 1
                        else:
                            break
                break
    left = []
    for si, st in enumerate(streams):
        rest = st[heads[si]:]
        if flush:
            for e, it in rest:
                out.extend(it if isinstance(it, list) else [it])
        left.append(rest)
    return out if flush else (out, left)


def text_of(ins):
    return "\n".join(("" if x.kind in ("label", "dir") else "    ") + x.text for x in ins)


import subprocess
_size_cache = {}


def inst_sizes(ins):
    for x in ins:
        if x.kind == "salu" and "L_" in x.text:
            _size_cache[x.text] = 8
    todo = sorted({x.text for x in ins if x.kind not in ("label", "dir", "branch") and x.text not in _size_cache})
    if todo:
        r = subprocess.run(["llvm-mc", "-triple=amdgcn-amd-amdhsa", "-mcpu=gfx950", "-show-encoding"],
                           input="\n".join(todo) + "\n", capture_output=True, text=True)
        assert r.returncode == 0, r.stderr
        enc = [l for l in r.stdout.split("\n") if "encoding:" in l]
        assert len(enc) == len(todo)
        for t, l in zip(todo, enc):
            _size_cache[t] = l.split("encoding:")[1].count("0x")
    return [0 if x.kind in ("label", "dir") else 4 if x.kind == "branch" else _size_cache[x.text] for x in ins]


NOPROMOTE = ("v_readfirstlane", "v_dot2c", "v_permlane", "v_nop", "v_accvgpr", "v_fmac")


def promotable(x, sz):
    return x.kind == "valu" and sz == 4 and not x.op.startswith(NOPROMOTE) and not x.op.endswith("_e64")


def layout(ins, start=0, pad_prefix=None, pad_stride=4, pad_ret=None, align=True):
    sz = inst_sizes(ins)
    out, osz = [], []
    off = start
    npad = 0
    st = {"promo": 0, "nop": 0}
    cand = None
    for i, (x, s) in enumerate(zip(ins, sz)):
        if s and pad_prefix and off % 4096 == 0:
            out.append(Ins(f"{pad_prefix}{npad}:")); osz.append(0)
            out.append(Ins(f"s_cbranch_execz @PAD{npad + pad_stride}")); osz.append(4)
            npad += 1
            off += 4
            cand = None
        if s == 8 and off % 32 == 28 and (align or (off + 4) % 4096 == 0):
            if cand is not None:
                y = out[cand]
                z = Ins(y.op + "_e64" + y.text[len(y.op):], y.tag, y.cost)
                out[cand] = z; osz[cand] = 8
                st["promo"] += 1
            else:
                out.append(Ins("s_nop 0")); osz.append(4)
                st["nop"] += 1
            off += 4
            cand = None
            if pad_prefix and off % 4096 == 0:
                out.append(Ins(f"{pad_prefix}{npad}:")); osz.append(0)
                out.append(Ins(f"s_cbranch_execz @PAD{npad + pad_stride}")); osz.append(4)
                npad += 1
                off += 4
        if off % 32 == 0:
            cand = None
        out.append(x); osz.append(s)
        if promotable(x, s):
            cand = len(out) - 1
        off += s
    res = []
    for x in out:
        if "@PAD" in x.text:
            k = int(x.text.split("@PAD")[1])
            res.append(Ins(f"s_cbranch_execz {pad_prefix + str(k) if k < npad else pad_ret}"))
        else:
            res.append(x)
    return res, npad, off - start, st
```

```python
import sys
import struct
from asmlib import *

NAME = "gated_mix__sliding_local_dilated__dense_activation_squared_relu__prompt"
OPT = dict(stamp=0, warm=1, touch=0, align=1, ctouch=1, tfirst=2, slack=9, look=6, sig=3, pdist=44,
           bg0=12, bg1=0, cap=11, capa=13, npro=10, nproa=8, tdist=4, sleep=0, ar="-1,0,2,3", stg=8, stga=6, verbose=0, dflav='', bgn=0, bgv=24, rotg=3, w1pre=0, nost=0, stflav='sc1', nochk=0, nosig=0, age=10, ct2=1, vsig=0)
for a in sys.argv[1:]:
    k, v = a.split("=")
    assert k in OPT, k
    OPT[k] = int(v) if v.lstrip("-").isdigit() else v

SRCS = 147456 + 256
WS_G = 0x2460000
WS_STAMP = 0x2500000
WS_FL = 0x2600000
FSM, FST = 4352, 256
WS_SIZE = 0x3000000
MF = "v_mfma_f32_16x16x32_bf16"
MF4 = "v_mfma_f32_4x4x4_16b_bf16"
OOB = "0x80000000"

SX, SWA, SWB, SSM, SWS, SOUT, SB2 = 28, 32, 36, 40, 44, 48, 52
SDBG = 4
sW, sMT, sSRC = 56, 57, 58
sCH = 70
sFL, sRD, sSPIN, sMASK = 79, 80, 81, 84
sG, sWB = 90, 91
vL16, vPST, vFW, vPOLL2, vPOLL, vCON, vFD = 23, 24, 25, 26, 27, 28, 29
srd = lambda n: f"s[{n}:{n + 3}]"
f2u = lambda x: struct.unpack("<I", struct.pack("<f", x))[0]
VM = ("dma", "vload", "vstore")


class P(list):
    def __call__(self, text, tag=None, cost=None):
        for t in text.split("\n"):
            t = t.strip()
            if t:
                self.append(I(t, tag, cost))
        return self


def flat(items):
    o = []
    for it in items:
        o.extend(it if isinstance(it, list) else [it])
    return o


def srd_const(p, n, size):
    p(f"s_mov_b32 s{n + 2}, {size}\ns_mov_b32 s{n + 3}, 0x20000")


def srd_ptr(p, n, ptr, bias=0):
    if bias:
        p(f"s_sub_u32 s{n}, s{ptr}, {bias}\ns_subb_u32 s{n + 1}, s{ptr + 1}, 0")
    else:
        p(f"s_mov_b64 s[{n}:{n + 1}], s[{ptr}:{ptr + 1}]")


class Addr:
    def __init__(self, regs):
        self.regs = regs

    def at(self, off):
        return f"v{self.regs[off >> 16]} offset:{off & 0xffff}"

    def wr(self, off, data):
        return f"v{self.regs[off >> 16]}, {data} offset:{off & 0xffff}"


nstamp = [0]
stnames = {}
cur = {"role": None, "vst": None}


def stamp_ins(name, lvl=1):
    if not (OPT["stamp"] and (OPT["stamp"] >= lvl or name == "end")):
        return []
    n = nstamp[0]
    nstamp[0] += 1
    assert n < 31
    stnames.setdefault(cur["role"], []).append(name)
    v = cur["vst"]
    return [I("s_memrealtime s[86:87]"), I("s_memtime s[88:89]"), I("s_waitcnt lgkmcnt(0)"),
            I(f"v_writelane_b32 v{v}, s86, {2 * n}"), I(f"v_writelane_b32 v{v}, s88, {2 * n + 1}")]


def stamp(p, name, lvl=1):
    p.extend(stamp_ins(name, lvl))


def stamp_begin(p, role, v):
    cur["role"], cur["vst"] = role, v
    nstamp[0] = 1
    stnames[role] = ["start"]
    if OPT["stamp"]:
        p(f"v_mov_b32 v{v}, 0\ns_waitcnt lgkmcnt(0)\nv_writelane_b32 v{v}, s86, 0\nv_writelane_b32 v{v}, s88, 1")


def stamp_out(p):
    if OPT["stamp"]:
        p("s_waitcnt vmcnt(0)")
        stamp(p, "end")
        p(f"s_lshl_b32 s59, s2, 2\ns_add_u32 s59, s59, s{sW}\ns_lshl_b32 s59, s59, 8\ns_add_u32 s59, s59, {WS_STAMP}")
        p(f"v_lshlrev_b32 v1, 2, v0\nv_writelane_b32 v{cur['vst']}, s{sSPIN}, 63")
        p(f"buffer_store_dword v{cur['vst']}, v1, {srd(SWS)}, s59 offen")


stubs = {}
sCNT, sDB, sINC, sP0, sP1 = 92, 94, 96, 97, 98
sNEED = {"F": 99, "A": 100, "FA": 101, "init": sMASK}


nskip = [0]


def wave0(items):
    nskip[0] += 1
    return [I(f"s_cbranch_vccz L_skip{nskip[0]}")] + items + [I(f"L_skip{nskip[0]}:")]


def poll_load(t, reg=sP0, bare=False):
    if t == "init" and not bare:
        x = I(f"s_load_dword s{reg}, s[{sDB}:{sDB + 1}], 0x0")
        x.kind = "salu"
        return [[x]]
    base, off = (sDB, 0) if t == "init" else (sCNT, t * FST)
    o = [I(f"s_mov_b32 s{reg}, 0"), I(f"s_atomic_add s{reg}, s[{base}:{base + 1}], {hex(off)} glc")]
    return [o if bare else wave0(o)]


def poll_check(role, t, what, reg=sP0):
    st = stubs.setdefault(role, P())
    n = sum(1 for x in st if x.kind == "label")
    lab = f"L_{role}_spin{n}"
    st(f"{lab}:")
    if OPT["sleep"]:
        st(f"s_sleep {OPT['sleep']}")
    st.extend(flat(poll_load(t, reg, True)))
    st(f"""
    s_sub_u32 s{sSPIN}, s{sSPIN}, 1
    s_waitcnt lgkmcnt(0)
    s_cmp_lt_i32 s{sSPIN}, 0
    s_cbranch_scc1 {lab}r
    s_andn2_b32 s85, s{sNEED[what]}, s{reg}
    s_cbranch_scc1 {lab}
    s_branch {lab}r
    """)
    return [[I("s_waitcnt lgkmcnt(0)"), I(f"s_andn2_b32 s85, s{sNEED[what]}, s{reg}"), I(f"s_cbranch_scc1 {lab}"), I(f"{lab}r:")]]


def signal(t):
    if OPT["vsig"]:
        return vsignal(t)
    return [wave0([I(f"s_atomic_add s{sINC}, s[{sCNT}:{sCNT + 1}], {hex(t * FST)}")])]


def vsignal(t):
    return [I(f"buffer_atomic_add v{vFD}, v{vFW}, {srd(SWS)}, s{sFL} offen offset:{t * FST}")]


def handoff_setup(base_sgpr, inc):
    o = [I(f"s_and_b32 s85, s{sMT}, 7"), I("s_lshl_b32 s85, s85, 7")]
    for t in range(9):
        o.append(I(f"s_add_u32 s{sCH + t}, s85, s{base_sgpr}"))
        if t < 8:
            o.append(I("s_add_u32 s85, s85, 128"))
            o.append([I("s_cmp_eq_u32 s85, 1152"), I("s_cselect_b32 s85, 0, s85")])
    o += P()(f"""
    s_mul_i32 s{sRD}, s{sMT}, {16 * SRCS}
    s_lshl_b32 s85, s{sW}, 12
    s_add_u32 s{sRD}, s{sRD}, s85
    s_mul_i32 s85, s{sSRC}, {SRCS}
    s_add_u32 s61, s{sRD}, s85
    s_lshl_b32 s85, s{sSRC}, 8
    s_add_u32 s{sRD}, s{sRD}, s85
    s_mul_i32 s{sFL}, s{sMT}, {FSM}
    s_add_u32 s{sFL}, s{sFL}, {WS_FL}
    s_mov_b32 s{sSPIN}, 0x10000
    s_lshl_b32 s3, s{sMT}, 2
    s_lshr_b32 s{sMASK}, 1, s{sW}
    s_lshl_b32 s{sNEED['F']}, s{sMASK}, 4
    s_lshl_b32 s{sNEED['A']}, s{sMASK}, 10
    s_mul_i32 s{sNEED['FA']}, s{sMASK}, 0x410
    s_mov_b32 s{sINC}, {inc}
    v_bfe_u32 v{vPST}, v0, 2, 2
    v_lshlrev_b32 v{vPST}, 8, v{vPST}
    v_lshrrev_b32 v{vCON}, 4, v0
    v_lshl_add_u32 v{vPST}, v{vCON}, 6, v{vPST}
    v_and_b32 v{vFW}, 3, v0
    v_lshl_add_u32 v{vPST}, v{vFW}, 4, v{vPST}
    v_and_b32 v{vFW}, 15, v0
    v_mul_u32_u24 v{vCON}, {SRCS}, v{vCON}
    v_lshl_add_u32 v{vCON}, v{vFW}, 4, v{vCON}
    v_or_b32 v{vFW}, s{sW}, v0
    v_min_u32 v{vFW}, 1, v{vFW}
    v_lshlrev_b32 v{vFW}, 31, v{vFW}
    v_mov_b32 v{vFD}, {inc}
    s_mov_b32 vcc_lo, s{sMASK}
    s_mov_b32 vcc_hi, 0
    """)
    o += [[I(f"s_add_u32 s{sCNT}, s26, s{sFL}"), I(f"s_addc_u32 s{sCNT + 1}, s27, 0")],
          [I(f"s_add_u32 s{sDB}, s24, s3"), I(f"s_addc_u32 s{sDB + 1}, s25, 0")]]
    return o


def counter_init(tmp):
    a = P()(f"""
    s_or_b32 s85, s{sW}, s67
    v_or_b32 v{tmp}, s85, v0
    v_min_u32 v{tmp}, 1, v{tmp}
    v_lshlrev_b32 v{tmp}, 31, v{tmp}
    v_add_u32 v{tmp + 1}, 55, v0
    v_lshrrev_b32 v{tmp + 1}, 6, v{tmp + 1}
    v_or_b32 v{tmp + 1}, s85, v{tmp + 1}
    v_min_u32 v{tmp + 1}, 1, v{tmp + 1}
    v_lshlrev_b32 v{tmp + 1}, 31, v{tmp + 1}
    v_mul_u32_u24 v{tmp + 2}, {FST}, v0
    v_add_u32 v{tmp + 1}, v{tmp + 1}, v{tmp + 2}
    v_mov_b32 v{tmp + 2}, 4
    v_mov_b32 v{tmp + 3}, 1
    """)
    a(f"buffer_store_dword v{tmp + 2}, v{tmp + 1}, {srd(SWS)}, s{sFL} offen sc1", tag="FI")
    b = I(f"buffer_atomic_add v{tmp + 3}, v{tmp}, {srd(SDBG)}, s3 offen")
    return a, b


def touch(vreg, sr, base, off, force=False):
    a = I(f"s_add_u32 s60, s{base}, {off}")
    x = I(f"buffer_load_dword a255, v{vreg}, {srd(sr)}, s60 offen")
    x.writes = set()
    return [a, x] if OPT["touch"] or force else []


def x_touch_addr(p, reg, tmp):
    p(f"""
    s_lshr_b32 s59, s2, 6
    s_lshl_b32 s59, s59, 2
    s_add_u32 s59, s59, s{sW}
    s_mul_i32 s59, s59, {8 * 1152}
    v_and_b32 v{tmp}, 7, v0
    v_mul_u32_u24 v{reg}, 1152, v{tmp}
    v_bfe_u32 v{tmp}, v0, 3, 1
    v_lshl_add_u32 v{reg}, v{tmp}, 7, v{reg}
    v_lshrrev_b32 v{tmp}, 4, v0
    v_min_u32 v{tmp}, 1, v{tmp}
    v_lshlrev_b32 v{tmp}, 31, v{tmp}
    v_add3_u32 v{reg}, v{reg}, v{tmp}, s59
    """)


def code_touch(p, role, tmp):
    p(f"s_and_b32 s68, s{sMT}, 7\ns_lshl_b32 s68, s68, 2\ns_add_u32 s68, s68, s{sW}")
    if OPT["ctouch"]:
        p(f"""
        s_getpc_b64 s[82:83]
        L_{role}_pc:
        s_add_u32 s82, s82, L_{role}_body-L_{role}_pc
        s_addc_u32 s83, s83, 0
        s_lshl_b32 s59, s68, 7
        v_min_u32 v{tmp}, @LASTPAGE_{role}, v0
        v_lshl_add_u32 v{tmp}, v{tmp}, 12, s59
        """)
        x = I(f"global_load_dword a255, v{tmp}, s[82:83]")
        x.writes = set()
        p.append(x)


def code_touch2(role, tmp):
    if not OPT["ct2"]:
        return []
    x = I(f"global_load_dword a255, v{tmp}, s[10:11]")
    x.writes = set()
    return [[I("s_getpc_b64 s[10:11]"), I(f"L_{role}_pc2:"), I(f"s_sub_u32 s10, s10, L_{role}_pc2-L_{role}_body"), I("s_subb_u32 s11, s11, 0")], x]


def warm(p, role):
    if OPT["warm"]:
        p("s_mov_b64 exec, 0")
        for w in range(3):
            p(f"s_cmp_eq_u32 s{sW}, {w}\ns_cbranch_scc1 L_{role}_pad{w}")
        p(f"s_branch L_{role}_pad3\nL_{role}_ret:\ns_mov_b64 exec, -1")


def x_soff(J, base):
    if J == 8:
        return [I(f"s_add_u32 s60, {base}, 1024")]
    return [I(f"s_xor_b32 s60, s{sG}, {J}"), I("s_lshl_b32 s60, s60, 7"), I(f"s_add_u32 s60, s60, {base}")]


def w_block(j, base, pitch):
    if j % 2:
        return []
    if j == 16:
        return [I(f"s_add_u32 s{sWB}, s{base}, {512 * pitch}")]
    return [I(f"s_xor_b32 s{sWB}, s{sG}, {j // 2}"), I(f"s_mul_i32 s{sWB}, s{sWB}, {64 * pitch}"), I(f"s_add_u32 s{sWB}, s{sWB}, s{base}")]


def pace(groups, nsteps, cap, ngap, bgap, npro):
    q = [(e, x) for e, g in groups for x in g]
    res = []
    for j in range(-1, nsteps):
        d, n = [], 0
        lim = npro if j < 0 else 99 if j == nsteps - 1 else cap
        while q and q[0][0] <= j and n < lim:
            e, x = q.pop(0)
            d.append((e == j, x))
            n += x.kind in VM
        k, o = 0, []
        for dep, it in d:
            vm = it.kind in VM
            g = 1 + (ngap * k) // max(n, 1) + (2 if vm else 0)
            o.append((max(g, bgap(j) + 1) if dep else g, it))
            k += vm
        res.append(o)
    assert not q
    if OPT["verbose"]:
        for j, o in enumerate(res):
            sys.stderr.write(f"  step {j - 1}: " + " ".join((x.tag or "t") for _, x in o if x.kind in VM) + "\n")
    return [x for _, x in res[0]], res[1:]


def first_touches(p, tw, tx, wmask):
    if OPT["tfirst"] == 1:
        p.extend(tw(0) + tx(0))
        return 4, 2
    if OPT["tfirst"] == 2 and OPT["touch"]:
        a, b = tw(0), tx(0)
        p(f"s_mov_b64 exec, {wmask}")
        p.extend(a)
        p("s_mov_b64 exec, 0xff")
        p.extend(b)
        p("s_mov_b64 exec, -1")
        return 2, 1
    return 1, 1


def add_touches(groups_after, j, TW, TX, tw, tx):
    o = []
    for k in range(1, 5):
        if j == max(1, TW + 4 * k - OPT["tdist"]):
            if TW + 4 * k < 18:
                o += tw(TW + 4 * k)
            if TX + 2 * k < 9:
                o += tx(TX + 2 * k)
    if o:
        groups_after.append((-1, o))


BG = lambda j: OPT["bg0"] if j == 0 else OPT["bg1"] if j == 1 else OPT["bgv"] if j < OPT["bgn"] else 0


def gemm_step(p, j, mf, tags, rds, dma, side):
    bg = BG(j)
    s_rd = [(bg, [I(f"WAITVM {tags}", cost=1), I("s_barrier")])]
    span = len(mf) - 6 - bg
    for i, x in enumerate(rds):
        s_rd.append((bg + 2 + min(2 * i, (span * i) // len(rds)), x))
    p.extend(sched(mf, [s_rd, dma, side]))


def phase_b(p, units, hreg, trB, hrd, st_gap, hooks, nfirst=10):
    frags = []
    for ui, u in enumerate(units):
        for qi, k in enumerate(u["ks"]):
            frags.append((ui, qi, k))
    ntile_ks = {}
    for ui, qi, k in frags:
        ntile_ks.setdefault(units[ui]["tile"], []).append(k)
    rdc = {}

    def rd(fi):
        if fi not in rdc:
            ui, qi, (ks, off, hoff) = frags[fi]
            w = 48 + 4 * (fi % 4)
            rdc[fi] = [I(f"ds_read_b64_tr_b16 {vr(w, 2)}, {trB.at(off)}"),
                       I(f"ds_read_b64_tr_b16 {vr(w + 2, 2)}, {trB.at(off + hoff)}")]
        return rdc[fi]

    mf, s_rd, s_dma, s_ep = [], [], [], []
    p.extend(rd(0) + rd(1) + hrd[:nfirst])
    s_h = [(i, x) for i, x in enumerate(hrd[nfirst:])]
    seen = {}
    for fi, (ui, qi, (ks, off, hoff)) in enumerate(frags):
        u = units[ui]
        t = u["tile"]
        first = t not in seen
        seen[t] = seen.get(t, 0) + 1
        g0 = len(mf)
        w = 48 + 4 * (fi % 4)
        for b in range(8):
            c = 64 + 32 * (t % 2) + 4 * b
            mf.append(I(f"{MF} {vr(c, 4)}, {vr(w, 4)}, {hreg(ks, b)}, {'0' if first else vr(c, 4)}"))
            mf[-1].deps = rd(fi) + [hrd[ks * 8 + b]]
        nf = fi + 2
        if qi == len(u["ks"]) - 2:
            tags = u.get("wtags", [])
            if nf < len(frags):
                tags = [units[ui + 1]["tag"]] + tags
            chk = u.get("chk", [])
            for it in chk:
                s_rd.append((g0 - 1, it))
            if tags or chk or u.get("pre"):
                s_rd.append((g0, [I("WAITVM none " + " ".join(tags), cost=1), I("s_barrier")]))
            for it in u.get("pre", []):
                s_dma.append((g0 + 2, it))
            items = u.get("dma", [])
            nv = sum(1 for x in items if x.kind in VM)
            k = 0
            for it in items:
                vm = it.kind in VM
                s_dma.append((g0 + 4 + (8 * len(u["ks"]) * k) // nv + (1 if vm else 0), it))
                k += vm
        if nf < len(frags):
            r = rd(nf)
            s_rd.append((g0 + 1, r[0]))
            s_rd.append((g0 + 3, r[1]))
        if seen[t] == len(ntile_ks[t]):
            if t < 8 and OPT["stamp"] >= 2:
                s_rd.append((len(mf) - 1, stamp_ins(f"t{t}", 2)))
            e = len(mf) + 1
            for pp in range(4):
                c = 64 + 32 * (t % 2) + 8 * pp
                for i in range(4):
                    s_ep.append((e + pp * st_gap, I(f"v_cvt_pk_bf16_f32 v{32 + 4 * pp + i}, v{c + 2 * i}, v{c + 2 * i + 1}")))
                    s_ep[-1][1].deps = mf[-8:]
                if not OPT["nost"]:
                    s_ep.append((e + pp * st_gap + 5,
                                 I(f"buffer_store_dwordx4 {vr(32 + 4 * pp, 4)}, v{vPST}, {srd(SWS)}, s61 offen offset:{1024 * pp} {OPT['stflav'].replace('plain', '')}", tag=f"P{t}")))
            if t < 8:
                s_ep.append((e, I("s_add_u32 s61, s61, 16384")))
    p.extend(sched(mf, [s_rd, s_dma, s_h, s_ep, sorted(hooks, key=lambda h: h[0])]))


FRV = lambda r, i: vr(128 + 12 * r + 4 * i, 4)


def f_loads(r, FR):
    o = []
    for i in range(3):
        o += [I(f"s_add_u32 s60, s{sRD}, {r * 16384 + 4 * i * SRCS}"),
              I(f"buffer_load_dwordx4 {FR(r, i)}, v{vCON}, {srd(SWS)}, s60 offen sc1")]
    return o


def a_load(r):
    return [I(f"s_add_u32 s60, s{sRD}, {r * 16384 + 12 * SRCS}"),
            I(f"buffer_load_dwordx4 {vr(4 * r, 4, 'a')}, v{vCON}, {srd(SWS)}, s60 offen sc1")]


def end_phase(p, role, FR, nin, nchk, pre, stages):
    DF = lambda q: 96 + 4 * q
    DA = lambda q: 236 + 4 * q
    for r in range(nin, nchk):
        p.extend(f_loads(r, FR))
    p.extend(pre)
    srd_ptr(p, SB2, 18); srd_const(p, SB2, 1152)
    srd_ptr(p, SOUT, 22); srd_const(p, SOUT, 2048 * 1152)
    p(f"""
    s_lshr_b32 s59, s{sSRC}, 2
    s_lshl_b32 s59, s59, 5
    s_and_b32 s60, s{sSRC}, 3
    s_lshl_b32 s60, s60, 2
    s_add_u32 s59, s59, s60
    v_bfe_u32 v3, v0, 4, 1
    v_and_b32 v4, 3, v0
    v_lshl_add_u32 v3, v3, 4, v4
    v_add_u32 v3, s59, v3
    v_lshlrev_b32 v4, 2, v3
    v_mul_u32_u24 v63, 1152, v3
    s_mul_i32 s62, s{sMT}, 147456
    s_lshl_b32 s63, s{sMT}, 11
    s_add_u32 s63, s63, {WS_G}
    s_and_b32 s59, s{sMT}, 7
    v_lshrrev_b32 v5, 5, v0
    v_add_u32 v6, s59, v5
    v_bfe_u32 v7, v0, 2, 2
    v_lshlrev_b32 v7, 3, v7
    s_lshl_b32 s59, s{sW}, 5
    v_add_u32 v7, s59, v7
    """)
    for q in range(5):
        p(f"""
        v_add_u32 v8, {2 * q}, v6
        v_subrev_u32 v9, 9, v8
        v_min_u32 v8, v8, v9
        v_lshl_add_u32 v{58 + q}, v8, 7, v7
        """)
    p("v_lshl_add_u32 v62, v5, 31, v62")
    for q in range(5):
        p(f"buffer_load_dwordx2 {vr(116 + 2 * q, 2)}, v{58 + q}, {srd(SB2)}, 0 offen")
    p.extend(flat(poll_load(stages[0][0], sP0)))
    stamp(p, "e_setup")
    p("WAITVM P8\ns_barrier")
    p.extend(vsignal(8))
    stamp(p, "e_flag")
    p(f"""
    v_and_b32 v1, 1, v0
    v_lshlrev_b32 v1, 4, v1
    v_mov_b32 v2, 0x3f80
    v_lshlrev_b32 v1, v1, v2
    v_bfe_u32 v2, v0, 1, 3
    """)
    for i in range(8):
        p(f"v_cmp_eq_u32 s[{8 + 2 * (i % 4)}:{9 + 2 * (i % 4)}], {i}, v2")
        if i % 4 == 3:
            for k in range(4):
                p(f"v_cndmask_b32 v{48 + i - 3 + k}, 0, v1, s[{8 + 2 * k}:{9 + 2 * k}]")
    for q in range(5):
        p(f"v_add_u32 v{58 + q}, v63, v{58 + q}")

    def mf_f(r):
        q = r // 2
        for i in range(3):
            p(f"{MF} {vr(DF(q), 4)}, {vr(48 + 4 * (r % 2), 4)}, {FR(r, i)}, {'0' if i == 0 and r % 2 == 0 else vr(DF(q), 4)}")

    def mf_a(r):
        q = r // 2
        p(f"{MF} {vr(DA(q), 4)}, {vr(48 + 4 * (r % 2), 4)}, {vr(4 * r, 4, 'a')}, {'0' if r % 2 == 0 else vr(DA(q), 4)}")

    def fin(q):
        t = 8 + 4 * (q % 2)
        for i in range(2):
            p(f"v_lshlrev_b32 v{t + 2 * i}, 16, v{116 + 2 * q + i}\nv_and_b32 v{t + 2 * i + 1}, 0xffff0000, v{116 + 2 * q + i}")
        for i in (0, 2):
            p(f"v_pk_add_f32 {vr(t + i, 2)}, {vr(t + i, 2)}, {vr(DF(q) + i, 2)}")
        for i in (0, 2):
            p(f"v_pk_mul_f32 {vr(t + i, 2)}, {vr(t + i, 2)}, v[56:57] op_sel:[0,1]")
        for i in (0, 2):
            p(f"v_pk_fma_f32 {vr(t + i, 2)}, {vr(DA(q) + i, 2)}, v[56:57], {vr(t + i, 2)} op_sel_hi:[1,0,1]")
        p(f"v_cvt_pk_bf16_f32 v{16 + 2 * (q % 2)}, v{t}, v{t + 1}\nv_cvt_pk_bf16_f32 v{17 + 2 * (q % 2)}, v{t + 2}, v{t + 3}")
        p(f"buffer_store_dwordx2 {vr(16 + 2 * (q % 2), 2)}, v{58 + q}, {srd(SOUT)}, s62 offen")

    nf, na = nchk, 0
    for k, (t, kind) in enumerate(stages):
        p.extend(flat(poll_check(role, t, kind, [sP0, sP1][k % 2])))
        if k + 1 < len(stages):
            p.extend(flat(poll_load(stages[k + 1][0], [sP0, sP1][(k + 1) % 2])))
        p("s_barrier")
        if k >= len(stages) - 3:
            stamp(p, f"e_{kind}{t}")
        if "F" in kind:
            for r in range(nf, t + 1):
                p.extend(f_loads(r, FR))
            nf = t + 1
        if "A" in kind:
            if na == 0:
                p(f"buffer_load_dword v56, v4, {srd(SWS)}, s63 offen sc1")
            for r in range(na, t + 1):
                p.extend(a_load(r))
            na = t + 1
        if k == 0:
            for r in range(nin):
                mf_f(r)
    p("v_mul_f32 v56, 0xbfb8aa3b, v56\nv_exp_f32 v56, v56")
    for r in range(nin, 8):
        mf_f(r)
    p("v_add_f32 v56, 1.0, v56\nv_rcp_f32 v56, v56")
    for r in range(8):
        mf_a(r)
    p("v_sub_f32 v57, 1.0, v56")
    for q in range(4):
        fin(q)
    mf_f(8); mf_a(8)
    fin(4)
    stamp_out(p)
    p("s_endpgm")
    p.extend(stubs[role])


def role_ffn():
    p = P()
    XR = 98304
    p("L_ffn:")
    code_touch(p, "ffn", 38)
    p(f"""
    v_lshrrev_b32 v32, 3, v0
    v_and_b32 v33, 7, v0
    s_mul_i32 s59, s68, 9216
    s_add_u32 s59, s59, 2048
    v_and_b32 v35, 3, v32
    v_mul_u32_u24 v30, {32 * 9216}, v35
    v_lshl_add_u32 v30, v33, 7, v30
    v_add_u32 v35, 2, v33
    v_and_b32 v35, 8, v35
    v_and_or_b32 v35, v0, 32, v35
    v_min_u32 v35, 1, v35
    v_lshlrev_b32 v35, 31, v35
    v_add3_u32 v30, v30, v35, s59
    """)
    x_touch_addr(p, 31, 35)
    p(f"""
    s_mul_i32 s59, s{sW}, {32 * 1152}
    v_mul_u32_u24 v34, 1152, v32
    v_add_u32 v34, s59, v34
    v_lshrrev_b32 v35, 1, v32
    v_xor_b32 v35, v33, v35
    v_lshlrev_b32 v35, 4, v35
    v_add_u32 v1, v34, v35
    v_xor_b32 v35, 64, v35
    v_add_u32 v2, v34, v35
    v_add_u32 v2, 8192, v2
    v_add_u32 v3, 16384, v1
    v_add_u32 v4, 16384, v2
    s_and_b32 s69, s{sW}, 1
    s_lshl_b32 s59, s69, 2
    v_and_or_b32 v35, v32, 2, s59
    v_xor_b32 v35, v33, v35
    s_mul_i32 s59, s{sW}, {8 * 9216}
    s_add_u32 s59, s59, 2048
    v_mul_u32_u24 v36, 9216, v32
    v_lshl_add_u32 v36, v35, 4, v36
    v_add_u32 v5, s59, v36
    v_subrev_u32 v6, 896, v5
    v_subrev_u32 v7, 1792, v5
    v_lshlrev_b32 v{vL16}, 4, v0
    s_mul_i32 s62, s{sMT}, 147456
    s_mul_i32 s63, s{sSRC}, 768
    s_mul_i32 s64, s{sSRC}, {384 * 1152}
    s_lshl_b32 s65, s{sW}, 12
    s_mul_i32 s66, s{sW}, 6144
    s_mul_i32 s67, s{sW}, 3072
    """)
    srd_const(p, SX, 2048 * 1152)
    srd_const(p, SWA, 576 * 9216 + 2048)
    srd_const(p, SSM, 4608 * 2)
    srd_const(p, SWB, 4608 * 1152)
    srd_const(p, SWS, WS_SIZE)
    p(f"""
    v_and_b32 v35, 6, v32
    v_xor_b32 v35, v33, v35
    v_lshl_add_u32 v8, v35, 4, v34
    v_and_b32 v32, 3, v32
    v_and_b32 v33, 3, v0
    v_lshlrev_b32 v33, 3, v33
    v_lshrrev_b32 v34, 4, v0
    v_bfe_u32 v35, v0, 2, 2
    s_lshl_b32 s59, s69, 1
    v_xor_b32 v12, s59, v32
    v_lshl_add_u32 v12, v12, 5, v33
    v_lshl_add_u32 v12, v35, 7, v12
    v_mul_u32_u24 v13, 6144, v34
    s_lshr_b32 s59, s{sW}, 1
    s_lshl_b32 s59, s59, 10
    v_add3_u32 v12, v12, v13, s59
    v_xor_b32 v13, 32, v12
    v_add_u32 v14, 0x10000, v12
    v_add_u32 v15, 0x10000, v13
    v_xor_b32 v22, s{sW}, v32
    v_lshl_add_u32 v22, v22, 5, v33
    v_lshrrev_b32 v35, 2, v0
    v_lshl_add_u32 v22, v35, 7, v22
    v_and_b32 v32, 15, v0
    v_lshrrev_b32 v33, 1, v32
    v_xor_b32 v33, v33, v34
    v_lshlrev_b32 v33, 4, v33
    v_lshl_add_u32 v16, v32, 7, v33
    v_add_u32 v16, {XR}, v16
    v_xor_b32 v17, 64, v16
    s_mul_i32 s59, s{sW}, {4096 + 64}
    s_add_u32 s59, s59, {XR + 3 * 16384}
    v_lshl_add_u32 v39, v34, 3, s59
    """)
    p("WAITLGKM")
    stamp_begin(p, "ffn", 20)
    stamp(p, "karg", 2)
    srd_ptr(p, SWA, 12, 2048)
    srd_ptr(p, SX, 4)

    def dma4(base, soff, regs, sr, tag, half=None):
        o = [I(f"s_add_u32 m0, s65, {base}")] + soff
        for q in (range(4) if half is None else (2 * half, 2 * half + 1)):
            o.append(I(f"buffer_load_dwordx4 v{regs[q]}, {srd(sr)}, s60 offen offset:{1024 * q} lds", tag=tag))
        return o

    dma_x = lambda J, half=None: dma4(XR + (J % 4) * 16384, x_soff(J, "s62"), [1, 2, 3, 4], SX, f"R{J}", half)
    dma_w2 = lambda n, base: dma4(base, [I(f"s_add_u32 s60, s{sCH + n // 3}, {(n % 3) * 147456}")], [8, 9, 10, 11], SWB, f"U{n}")

    def dma_w1(j):
        o = w_block(j, 63, 9216)
        for h in range(2):
            o.append(I(f"s_add_u32 m0, s66, {(j % 4) * 24576 + h * 3072}"))
            o.append(I(f"s_add_u32 s60, s{sWB}, {(j % 2) * 32 * 9216 + h * 384}"))
            for q in range(3):
                o.append(I(f"buffer_load_dwordx4 v{5 + q}, {srd(SWA)}, s60 offen offset:{1024 * q} lds", tag=f"W{j}"))
        return o

    tw = lambda j: touch(30, SWA, 63, j * 32 * 9216)
    tx = lambda J: touch(31, SX, 62, J * 128)
    TW, TX = first_touches(p, tw, tx, "0xffff")
    p.extend(dma_x(0) + dma_w1(0))
    srd_ptr(p, SSM, 14)
    p(f"s_add_u32 m0, s65, {XR + 3 * 16384}")
    srd_ptr(p, SWB, 16)
    p(f"buffer_load_dwordx4 v{vL16}, {srd(SSM)}, s63 offen lds", tag="W0")
    if OPT["tfirst"] == 1:
        TW, TX = 0, 0
    else:
        p.extend(tw(TW) + tx(TX))
    srd_ptr(p, SWS, 26)
    srd_ptr(p, SDBG, 24); srd_const(p, SDBG, 256)
    d1 = dma_w1(1)
    p.extend(d1[:OPT["w1pre"]])
    stamp(p, "d0", 2)
    warm(p, "ffn")
    stamp(p, "warm", 2)
    p("s_branch L_ffn_body\nL_ffn_body:")
    p.extend(d1[OPT["w1pre"]:])
    stamp(p, "d1", 2)
    groups = []
    add_touches(groups, 1, TW, TX, tw, tx)
    for j in range(2, 18):
        if j == 2:
            groups.append((-1, dma_x(1)))
        elif j < 17:
            J = (j + 1) // 2
            groups.append((max(j - 5, 0 if J == 3 else -1), dma_x(J, (j + 1) % 2)))
        groups.append((j - 4, dma_w1(j)))
        add_touches(groups, j, TW, TX, tw, tx)
    groups.append((13, touch(31, SWB, 64, 1024, True)))
    xslot = lambda st: XR + (st % 4) * 16384
    uslot = {n: xslot(9 + n) for n in range(4)}
    groups += [(2 * n + 11, dma_w2(n, uslot[n])) for n in range(4)]

    trA = [Addr([12, 14]), Addr([13, 15])]
    xr = [Addr([16]), Addr([17])]
    hw = Addr([18, 19])
    hr = Addr([vL16, 21])
    trB = Addr([22, 1, 2])
    xf = lambda s, b: vr(32 * s + 4 * b, 4, "a")
    wf = lambda s, t: 64 + 24 * s + 4 * t
    acc = lambda t, b: 64 + 4 * (t * 8 + b)

    def reads(j):
        s = j % 2
        o = []
        for t in range(6):
            off = (j % 4) * 24576 + (t // 2) * 2048
            w = wf(s, t)
            o.append([I(f"ds_read_b64_tr_b16 {vr(w, 2, 'a')}, {trA[t % 2].at(off)}"),
                      I(f"ds_read_b64_tr_b16 {vr(w + 2, 2, 'a')}, {trA[t % 2].at(off + 512)}")])
        xs = [I(f"ds_read_b128 {xf(s, b)}, {xr[j % 2].at(((j // 2) % 4) * 16384 + b * 2048)}") for b in range(8)]
        return o[0] + xs + [y for x in o[1:] for y in x]

    p("WAITVM R0 W0")
    for t in range(6):
        p(f"ds_read_b64 {vr(244 + 2 * t, 2)}, v39 offset:{(t // 2) * 256 + (t % 2) * 32}")
    stamp(p, "land", 2)
    pro, paced = pace(groups, 18, OPT["cap"], 44, BG, OPT["npro"])
    p("s_barrier")
    p.extend(reads(0))
    p.extend(pro)
    for t in range(6):
        for i in range(2):
            p(f"v_lshlrev_b32 v{40 + 4 * t + 2 * i}, 16, v{244 + 2 * t + i}")
            p(f"v_and_b32 v{41 + 4 * t + 2 * i}, 0xffff0000, v{244 + 2 * t + i}")
    p("WAITLGKM")
    stamp(p, "A0")

    def epi(u, b, slot):
        o = []
        tmp = 32 + 4 * (slot % 4)
        for e in range(2):
            c = acc(2 * u + e, b)
            for i in range(4):
                o.append(I(f"v_mul_f32 v{c + i}, v{c + i}, |v{c + i}|"))
            for i in range(2):
                o.append(I(f"v_cvt_pk_bf16_f32 v{tmp + 2 * e + i}, v{c + 2 * i}, v{c + 2 * i + 1}"))
        for i in range(4):
            o.append(I(f"v_pk_max_i16 v{tmp + i}, v{tmp + i}, 0"))
        o.append(I(f"ds_write_b128 {hw.wr(u * 32768 + b * 1024, vr(tmp, 4))}"))
        return o

    hs = handoff_setup(64, 1)
    late = {7: hs[:27], 9: hs[27:48], 10: hs[48:],
            8: P()(f"""
            v_add_u32 v9, 8192, v8
            v_add_u32 v10, 16384, v8
            v_add_u32 v11, 24576, v8
            v_add_u32 v21, 0x10000, v{vL16}
            s_lshl_b32 s85, s{sW}, 13
            v_add_u32 v18, s85, v{vL16}
            v_add_u32 v19, 0x10000, v18
            """),
            12: P()(f"""
            s_mul_i32 s85, s68, {12 * 1152}
            v_min_u32 v31, 11, v0
            v_mul_u32_u24 v31, 1152, v31
            v_add_u32 v31, s85, v31
            """),
            11: code_touch2("ffn", 38),
            15: P()("v_add_u32 v1, 0x10000, v22\nv_add_u32 v2, 0x20000, v22")}
    assert not any(("v", 1) in x.reads or ("v", 2) in x.reads for j in (15, 16, 17) for _, x in paced[j])
    assert not any(("v", 31) in x.reads for _, x in paced[12])
    for j in range(18):
        s = j % 2
        last = j == 17
        order = [(t, b) for t in range(6) for b in range(8)]
        if last:
            order = [(2 * u + e, b) for u in range(3) for b in range(8) for e in range(2)]
        mf = [I(f"{MF} {vr(acc(t, b), 4)}, {vr(wf(s, t), 4, 'a')}, {xf(s, b)}, {vr(40 + 4 * t if j == 0 else acc(t, b), 4)}") for t, b in order]
        side = [(4, x) for x in late.get(j, [])]
        if last:
            n = 0
            for u in range(3):
                for b in range(8):
                    side += [(16 * u + 2 * b + 5, x) for x in epi(u, b, n)]
                    n += 1
        if j == 16:
            side += [(1, x) for x in poll_load("init")]
        gemm_step(p, j, mf, f"W{j + 1} R{(j + 1) // 2}" if not last else "none", [] if last else reads(j + 1), paced[j], side)
        if j == 16:
            p.extend(flat(poll_check("ffn", "init", "init")))
        p("WAITLGKM")
        if j in (0, 1, 3, 8, 16):
            stamp(p, f"A{j + 1}", 2)
    stamp(p, "Aend")
    p("WAITVM U0\ns_barrier")

    def hreg(ks, b):
        n = ks * 8 + b
        return vr(4 * n, 4, "a") if n < 64 else vr(128 + 4 * (n - 64), 4)

    hrd = [I(f"ds_read_b128 {hreg(n // 8, n % 8)}, {hr.at(n * 1024)}") for n in range(96)]
    SL = OPT["slack"]
    chk_at = {3 * r + SL: r for r in range(9) if 3 * r + SL <= 26}
    assert SL > 3 + OPT["sig"]
    nchk = len(chk_at)
    nin = sum(1 for n in chk_at if n < 25)
    sig_at = {min(3 * t + 3 + OPT["sig"], 26): t for t in range(8)}
    units, hooks, free, fslot = [], [], [], {}
    issued = 4
    for n in range(27):
        u = dict(tile=n // 3, tag=f"U{n}", wtags=[], pre=[], dma=[])
        if n >= 1:
            free.append(uslot[n - 1])
        if n == 3:
            free += [16384 * i for i in range(6)]
        fd = []
        if n in sig_at:
            if not OPT["nosig"]:
                u["wtags"].append(f"P{sig_at[n]}")
            u["pre"] += signal(sig_at[n])
        if n in chk_at:
            r = chk_at[n]
            if not OPT["nochk"]:
                hooks += [(32 * n + 16 - OPT["pdist"], y) for y in poll_load(r)]
                u["chk"] = poll_check("ffn", r, "F")
            if r < nin:
                fslot[r] = free.pop(0)
                fd = [I(f"s_add_u32 m0, s67, {fslot[r]}")]
                for i in range(3):
                    fd += [I(f"s_add_u32 s60, s{sRD}, {r * 16384 + 4 * i * SRCS - 1024 * i}"),
                           I(f"buffer_load_dwordx4 v{vCON}, {srd(SWS)}, s60 offen offset:{1024 * i} sc1 lds", tag="FD")]
        k = 0
        while issued < 27 and issued <= n + OPT["look"] and free and k < (1 if fd else 2):
            uslot[issued] = free.pop(0)
            u["dma"] += dma_w2(issued, uslot[issued])
            issued += 1
            k += 1
        assert issued >= min(27, n + 3)
        u["dma"] += fd
        units.append(u)
    for n, u in enumerate(units):
        u["ks"] = [(4 * (n % 3) + q, uslot[n] + q * 4096, 2048) for q in range(4)]
    phase_b(p, units, hreg, trB, hrd, OPT["stg"], hooks)
    stamp(p, "Bend")
    pre = P()(f"v_add_u32 v30, s67, v{vL16}\nv_add_u32 v31, 0x10000, v30\nv_add_u32 v21, 0x20000, v30\nWAITVM FD")
    for r in range(nin):
        for i in range(3):
            pre(f"ds_read_b128 {FRV(r, i)}, {Addr([30, 31, 21]).at(fslot[r] + i * 1024)}")
    end_phase(p, "ffn", FRV, nin, nchk, pre, [(5, "A")] + [(r, "F") for r in range(nchk, 7)] + [(7, "FA"), (8, "FA")])
    return p


def role_att():
    p = P()
    WSL, XR, XSL, GT, ZT = 28672, 114688, 20480, 155648, 162304
    EO, RO, OB = 64512, 20736, 4736
    WO = [129024, 64512, 84992, 41472, 105984]
    p("L_att:")
    code_touch(p, "att", 39)
    p(f"""
    s_sub_u32 s67, s{sSRC}, 12
    v_lshrrev_b32 v32, 3, v0
    v_and_b32 v33, 7, v0
    s_mul_i32 s59, s68, 3456
    s_add_u32 s59, s59, 2048
    v_lshrrev_b32 v35, 4, v0
    v_mul_u32_u24 v40, {32 * 3456}, v35
    v_bfe_u32 v35, v0, 2, 2
    v_and_b32 v36, 3, v0
    v_mul_u32_u24 v37, 1152, v35
    v_add3_u32 v40, v40, v37, s59
    v_lshl_add_u32 v40, v36, 7, v40
    v_max_u32 v35, v35, v36
    v_add_u32 v35, 1, v35
    v_lshrrev_b32 v35, 2, v35
    v_lshl_add_u32 v40, v35, 31, v40
    """)
    x_touch_addr(p, 41, 35)
    p(f"""
    s_mul_i32 s63, s{sMT}, 147456
    s_and_b32 s69, s{sW}, 1
    s_lshr_b32 s60, s{sW}, 1
    s_mul_i32 s59, s69, 64
    s_add_u32 s59, s59, s60
    s_mul_i32 s59, s59, 1152
    s_add_u32 s59, s59, s63
    v_lshrrev_b32 v35, 1, v32
    v_xor_b32 v35, v33, v35
    v_lshlrev_b32 v35, 4, v35
    v_mul_u32_u24 v34, 2304, v32
    v_add3_u32 v1, v34, v35, s59
    v_xor_b32 v36, 64, v35
    s_add_u32 s59, s59, {16 * 1152 - 1024}
    v_add3_u32 v2, v34, v36, s59
    v_add_u32 v3, {32 * 1152 - 2048}, v1
    v_add_u32 v4, {32 * 1152 - 2048}, v2
    s_sub_u32 s59, s{sW}, 16
    s_mul_i32 s59, s59, 1152
    s_add_u32 s59, s59, s63
    s_cmp_eq_u32 s{sMT}, 0
    s_cselect_b32 s62, 0, 2
    s_cmp_ge_u32 s{sW}, s62
    s_cselect_b32 s59, {OOB}, s59
    s_lshl_b32 s62, s69, 6
    v_xor_b32 v36, s62, v35
    v_add3_u32 v5, v34, v36, s59
    s_lshl_b32 s59, s69, 2
    v_and_or_b32 v38, v32, 2, s59
    v_xor_b32 v38, v33, v38
    s_mul_i32 s59, s{sW}, {8 * 3456}
    s_add_u32 s59, s59, 2048
    v_mul_u32_u24 v36, 3456, v32
    v_add_u32 v36, s59, v36
    v_lshl_add_u32 v6, v38, 4, v36
    v_subrev_u32 v7, 896, v6
    v_subrev_u32 v8, 1792, v6
    v_lshrrev_b32 v35, 1, v38
    v_mul_u32_u24 v37, 1152, v35
    v_add_u32 v35, 1, v35
    v_lshrrev_b32 v35, 2, v35
    v_lshl_add_u32 v36, v35, 31, v36
    v_and_b32 v35, 1, v38
    v_lshl_add_u32 v37, v35, 4, v37
    v_add_u32 v37, v37, v36
    v_subrev_u32 v9, {2048 - 256}, v37
    s_mul_i32 s64, s67, 288
    s_lshl_b32 s65, s{sW}, 12
    s_mul_i32 s66, s{sW}, 7168
    s_lshl_b32 s17, s{sW}, 10
    s_lshl_b32 s59, s{sW}, 6
    v_add_u32 v42, s59, v0
    v_lshlrev_b32 v43, 1, v42
    s_lshl_b32 s59, s{sG}, 7
    v_xor_b32 v44, s59, v43
    v_xor_b32 v45, 512, v44
    """.replace("s17", "s82"))
    srd_const(p, SX, 2048 * 1152)
    srd_const(p, SWA, 576 * 3456 + 2048)
    srd_const(p, SSM, 576 * 2)
    srd_const(p, SWB, 576 * 1152)
    srd_const(p, SWS, WS_SIZE)
    p("WAITLGKM")
    stamp_begin(p, "att", 47)
    stamp(p, "karg", 2)
    srd_ptr(p, SWA, 6, 2048)
    srd_ptr(p, SX, 4)

    def dma5(base, regs, sr, soff, tag):
        o = [I(f"s_add_u32 m0, s65, {base}")] + soff
        for q in range(4):
            o.append(I(f"buffer_load_dwordx4 v{regs[q]}, {srd(sr)}, s60 offen offset:{1024 * q} lds", tag=tag))
        o.append(I(f"s_add_u32 m0, s82, {base + 16384}"))
        o.append(I(f"buffer_load_dwordx4 v{regs[4]}, {srd(sr)}, s60 offen lds", tag=tag))
        return o

    dma_x = lambda J: dma5(XR + (J % 2) * XSL, [1, 2, 3, 4, 5], SX, x_soff(J, "0")[:2 if J < 8 else 1], f"R{J}")
    dma_wo = lambda t: dma5(WO[t % 5], [15, 16, 17, 18, 19], SWB, [I(f"s_mov_b32 s60, s{sCH + t}")], f"O{t}")

    def dma_w(j):
        tg = f"W{j}"
        o = w_block(j, 64, 3456) + [I(f"s_add_u32 m0, s66, {(j % 4) * WSL}"), I(f"s_add_u32 s60, s{sWB}, {(j % 2) * 32 * 3456}")]
        for q, r in enumerate([6, 7, 7, 8]):
            o.append(I(f"buffer_load_dwordx4 v{r}, {srd(SWA)}, s60 offen offset:{1024 * q} lds", tag=tg))
        o.append(I(f"s_add_u32 m0, s66, {(j % 4) * WSL + 4096}"))
        o.append(I(f"s_add_u32 s59, s{sWB}, {(j % 2) * 32 * 3456 + 2304}"))
        o.append(I(f"buffer_load_dwordx4 v9, {srd(SWA)}, s60 offen offset:2048 lds", tag=tg))
        o.append(I(f"buffer_load_dwordx4 v7, {srd(SWA)}, s59 offen offset:1024 lds", tag=tg))
        o.append(I(f"buffer_load_dwordx4 v6, {srd(SWA)}, s59 offen lds", tag=tg))
        return o

    tw = lambda j: touch(40, SWA, 64, j * 32 * 3456)
    tx = lambda J: touch(41, SX, 63, J * 128)
    TW, TX = first_touches(p, tw, tx, "0xffffffff")
    srd_ptr(p, SSM, 20)
    for i in range(3):
        p(f"buffer_load_ushort v{48 + 2 * i}, v{[44, 45, 43][i]}, {srd(SSM)}, 0 offen offset:{[0, 0, 1024][i]}")
    p.extend(dma_x(0) + dma_w(0))
    if OPT["tfirst"] == 1:
        TW, TX = 0, 0
    else:
        p.extend(tw(TW) + tx(TX))
    srd_ptr(p, SWB, 8)
    srd_ptr(p, SWS, 26)
    srd_ptr(p, SDBG, 24); srd_const(p, SDBG, 256)
    stamp(p, "d0", 2)
    p(f"""
    v_and_b32 v34, 3, v42
    v_lshlrev_b32 v34, 3, v34
    v_bfe_u32 v35, v42, 2, 1
    v_lshl_add_u32 v34, v35, 9, v34
    v_bfe_u32 v35, v42, 3, 4
    v_lshl_add_u32 v34, v35, 5, v34
    v_lshrrev_b32 v35, 7, v42
    v_lshl_add_u32 v34, v35, 10, v34
    v_add_u32 v43, {GT}, v34
    v_and_b32 v36, 3, v32
    v_and_b32 v37, 3, v0
    v_lshlrev_b32 v37, 3, v37
    v_lshrrev_b32 v34, 4, v0
    v_bfe_u32 v35, v0, 2, 2
    v_xor_b32 v36, s{sW}, v36
    v_lshl_add_u32 v36, v36, 5, v37
    v_lshl_add_u32 v36, v35, 7, v36
    v_mul_u32_u24 v10, 7168, v34
    v_add_u32 v10, v10, v36
    v_add_u32 v11, 0x10000, v10
    v_lshl_add_u32 v20, v34, 10, v36
    v_add_u32 v12, 6144, v10
    v_lshlrev_b32 v37, 5, v34
    v_lshl_add_u32 v37, v35, 3, v37
    v_add_u32 v37, {GT}, v37
    s_cmp_eq_u32 s{sW}, 3
    s_cselect_b64 vcc, -1, 0
    s_mov_b32 s62, {WSL}
    s_mov_b32 s83, {-3 * WSL}
    s_cselect_b32 s62, 128, s62
    s_cselect_b32 s83, 640, s83
    v_cndmask_b32 v12, v12, v37, vcc
    v_and_b32 v36, 15, v0
    v_lshrrev_b32 v37, 1, v36
    v_xor_b32 v37, v37, v34
    v_lshlrev_b32 v37, 4, v37
    v_lshl_add_u32 v13, v36, 7, v37
    v_add_u32 v13, {XR}, v13
    v_xor_b32 v14, 64, v13
    s_mul_i32 s68, s67, {144 * 1152}
    """)
    warm(p, "att")
    stamp(p, "warm", 2)
    p("s_branch L_att_body\nL_att_body:")
    for i in range(3):
        p(f"v_lshl_or_b32 v{48 + 2 * i}, v{48 + 2 * i}, 16, v{48 + 2 * i}\nv_mov_b32 v{49 + 2 * i}, v{48 + 2 * i}")
        p(f"ds_write_b64 v43, {vr(48 + 2 * i, 2)} offset:{2048 * i}")
    p.extend(dma_w(1))
    groups = []
    add_touches(groups, 1, TW, TX, tw, tx)
    for j in range(2, 18):
        if j == 2:
            groups.append((-1, dma_x(1)))
        if j == 4:
            groups.append((1, dma_x(2)))
        if j % 2 == 1 and j >= 7:
            groups.append((j - 4, dma_x((j - 1) // 2)))
        groups.append((j - 4, dma_w(j)))
        add_touches(groups, j, TW, TX, tw, tx)
    groups.append((17, dma_wo(0)))
    trA = Addr([10, 11])
    xr = [Addr([13]), Addr([14])]
    xf = lambda s, b: vr(36 * s + 4 * b, 4, "a")
    wf = lambda s, t: 72 + 28 * s + 4 * t
    nb = [8, 8, 9, 9, 9, 9, 9]
    accbase = [48, 80, 112, 148, 184, 220]
    acc = lambda t, b: vr(accbase[t] + 4 * b, 4) if t < 6 else vr(128 + 4 * b, 4, "a")

    def reads(j):
        s = j % 2
        o = []
        for t in range(7):
            w = wf(s, t)
            if t < 6:
                off = (j % 4) * WSL + t * 1024
                a0, a1 = trA.at(off), trA.at(off + 512)
            else:
                a0, a1 = "v12", "v12 offset:512"
            o.append([I(f"ds_read_b64_tr_b16 {vr(w, 2, 'a')}, {a0}"), I(f"ds_read_b64_tr_b16 {vr(w + 2, 2, 'a')}, {a1}")])
        o[6].append(I(f"v_add_u32 v12, s{83 if j % 4 == 3 else 62}, v12"))
        xs = [I(f"ds_read_b128 {xf(s, b)}, {xr[j % 2].at(((j // 2) % 2) * XSL + b * 2048)}") for b in range(9)]
        return o[0] + xs + [y for x in o[1:] for y in x]

    p("WAITVM R0 W0\nWAITLGKM")
    stamp(p, "land", 2)
    pro, paced = pace(groups, 18, OPT["capa"], 56, BG, OPT["nproa"])
    p("s_barrier")
    p.extend(reads(0))
    p.extend(pro)
    p("WAITLGKM")
    stamp(p, "A0")

    hs = handoff_setup(68, 0x100)
    ci_a, ci_b = counter_init(42)
    wo_addr = P()(f"""
    s_mul_i32 s85, s{sW}, {36 * 1152}
    v_mul_u32_u24 v34, 1152, v32
    v_add_u32 v34, s85, v34
    v_and_b32 v35, 2, v32
    v_xor_b32 v35, v33, v35
    v_lshlrev_b32 v35, 4, v35
    v_add_u32 v15, v34, v35
    v_xor_b32 v35, 64, v35
    v_add_u32 v16, v34, v35
    v_add_u32 v16, 8192, v16
    v_add_u32 v17, 16384, v15
    v_add_u32 v18, 16384, v16
    v_lshrrev_b32 v34, 2, v32
    v_lshl_add_u32 v34, v34, 5, v32
    s_mul_i32 s85, s{sW}, 72
    v_add3_u32 v34, v34, s85, 32
    v_mul_u32_u24 v34, 1152, v34
    v_lshl_add_u32 v34, v38, 4, v34
    s_lshl_b32 s85, s{sW}, 30
    s_and_b32 s85, s85, {OOB}
    v_add_u32 v19, s85, v34
    v_add_u32 v21, 0x10000, v20
    v_add_u32 v22, 0x20000, v20
    """)
    ep_addr = P()(f"""
    v_and_b32 v40, 15, v0
    v_lshrrev_b32 v41, 4, v0
    v_mul_u32_u24 v30, 576, v41
    v_lshl_add_u32 v30, v40, 3, v30
    s_mul_i32 s85, s{sW}, 2304
    v_add_u32 v30, s85, v30
    v_add_u32 v31, {EO}, v30
    v_lshrrev_b32 v42, 3, v40
    v_mul_u32_u24 v42, {EO - 64}, v42
    v_add_u32 v32, v30, v42
    s_lshl_b32 s85, s{sW}, 3
    s_add_u32 s85, s85, 8
    s_min_u32 s85, s85, 24
    s_mul_i32 s85, s85, 2304
    v_add_u32 v33, s85, v30
    v_add_u32 v34, s85, v31
    v_add_u32 v35, s85, v32
    s_mul_i32 s85, s{sW}, {9 * 576}
    v_lshl_add_u32 v36, v0, 3, s85
    v_add_u32 v37, {EO}, v36
    v_and_b32 v42, 3, v0
    v_lshl_add_u32 v42, v41, 2, v42
    v_bfe_u32 v43, v0, 2, 2
    v_lshl_add_u32 v42, v42, 2, v43
    v_lshl_add_u32 v38, v42, 3, s85
    v_add_u32 v39, {EO}, v38
    s_add_u32 s85, s{sW}, 1
    s_and_b32 s85, s85, 4
    s_lshl_b32 s85, s85, 7
    s_sub_u32 s85, {ZT + 512}, s85
    v_lshl_add_u32 v46, v40, 3, s85
    s_lshl_b32 s85, s{sMT}, 6
    v_add_u32 v42, s85, v0
    v_mov_b32 v43, {hex(f2u(-2.0 ** 100))}
    v_cmp_gt_u32 s[8:9], 8, v42
    v_cmp_gt_u32 s[10:11], 4, v42
    """)
    for i in range(8):
        ep_addr(f"v_cndmask_b32 v{2 + i}, 0, v43, s[{8 + 2 * (i // 4)}:{9 + 2 * (i // 4)}]")

    def epi(t, b, n):
        tmp = 40 + 2 * (n % 3)
        o = []
        if t < 6:
            c = accbase[t] + 4 * b
            base, off = 30, (9 * (t // 2) + 4 * (t % 2)) * 2304
        else:
            c = 48 + 4 * b
            base, off = 33, 0
            if b < 8:
                o.append(I(f"ds_write_b32 v46, a{128 + 4 * b} offset:{128 * (b % 4) + 4 * (b // 4)}"))
            o += [I(f"v_accvgpr_read_b32 v{c + i}, a{128 + 4 * b + i}") for i in range(4)]
        o += [I(f"v_cvt_pk_bf16_f32 v{tmp}, v{c}, v{c + 1}"), I(f"v_cvt_pk_bf16_f32 v{tmp + 1}, v{c + 2}, v{c + 3}")]
        o.append(I(f"ds_write_b64 v{base + b // 4}, {vr(tmp, 2)} offset:{off + (128 * (b % 4) + 64 if b < 8 else 0)}"))
        return o

    late = {2: hs[27:48], 3: ci_a, 4: hs[48:], 6: [ci_b], 10: hs[:27], 12: wo_addr, 13: code_touch2("att", 39), 15: ep_addr}
    assert not paced[15] and not paced[16]
    for j in range(18):
        s = j % 2
        last = j == 17
        mf, ends = [], []
        for t in range(7):
            for b in range(nb[t]):
                mf.append(I(f"{MF} {acc(t, b)}, {vr(wf(s, t), 4, 'a')}, {xf(s, b)}, {'0' if j == 0 else acc(t, b)}"))
                ends.append((t, b))
        tags = f"W{j + 1} R{(j + 1) // 2}" if not last else "none"
        if j == 6:
            tags += " FI"
        side = [(4, x) for x in late.get(j, [])]
        if j == 16:
            side += [(2, x) for x in poll_load("init")]
        if last:
            for n, (t, b) in enumerate(ends):
                side += [(n + 4, x) for x in epi(t, b, n)]
        gemm_step(p, j, mf, tags, [] if last else reads(j + 1), paced[j], side)
        if not last:
            p("WAITLGKM")
        if j in (0, 1, 3, 8, 16):
            stamp(p, f"A{j + 1}", 2)
    stamp(p, "Aend")
    AR = [int(x) for x in str(OPT["ar"]).split(",")]
    FRA = lambda r, i: vr(164 + 12 * r + 4 * i, 4, "a") if r < 7 else FRV(r, i)
    p.extend(flat(poll_check("att", "init", "init")))
    if AR[0] >= 0:
        p.extend(flat(poll_load(AR[0])))
    p("WAITLGKM\ns_barrier")
    stamp(p, "join", 2)

    S = lambda u, z: 48 + 12 * u + 4 * z
    grp = [(e, lq) for e in range(2) for lq in range(9)]

    def kq_rd(gi):
        e, lq = grp[gi]
        kb = 112 + 8 * (gi % 4)
        o = [I(f"ds_read_b64 {vr(kb + 2 * z, 2)}, v{36 + e} offset:{RO + lq * 576 + 32 * z}") for z in range(3)]
        if lq == 4:
            o += [I(f"ds_read_b32 v{144 + 4 * e}, v{36 + e} offset:{lq * 576 + 64}"),
                  I(f"ds_read_b32 v{147 + 4 * e}, v{36 + e} offset:{lq * 576 + 68}")]
        else:
            o.append(I(f"ds_read_b64 {vr(kb + 6, 2)}, v{36 + e} offset:{lq * 576 + 64}"))
        return o

    p.extend(kq_rd(0) + kq_rd(1) + kq_rd(2))
    p(f"v_lshlrev_b32 v1, 3, v0\nv_add_u32 v96, {ZT}, v1\nds_read_b64 v[96:97], v96")
    misc = P()(f"""
    v_mov_b32 v145, 0
    v_mov_b32 v146, 0
    v_mov_b32 v149, 0
    v_mov_b32 v150, 0
    s_min_u32 s59, s{sW}, 1
    s_lshl_b32 s59, s59, 31
    v_add_u32 v1, s59, v1
    s_lshl_b32 s59, s{sMT}, 2
    s_add_u32 s59, s59, s67
    s_lshl_b32 s59, s59, 9
    s_add_u32 s59, s59, {WS_G}
    buffer_store_dwordx2 v[96:97], v1, {srd(SWS)}, s59 offen sc1
    v_lshrrev_b32 v98, 3, v0
    v_mul_u32_u24 v98, {OB}, v98
    v_and_b32 v99, 7, v0
    v_mul_u32_u24 v99, 288, v99
    s_lshl_b32 s59, s{sW}, 6
    v_add3_u32 v10, v98, v99, s59
    s_lshl_b32 s59, s{sW}, 3
    v_add3_u32 v11, v98, v99, s59
    v_bfe_u32 v98, v0, 1, 3
    v_mul_u32_u24 v98, 288, v98
    v_and_b32 v99, 1, v0
    v_mul_u32_u24 v99, 2432, v99
    v_add_u32 v98, v98, v99
    v_lshrrev_b32 v99, 4, v0
    v_lshl_add_u32 v13, v99, 4, v98
    v_and_b32 v99, 1, v99
    v_lshl_add_u32 v14, v99, 4, v98
    s_mov_b32 s8, 0x11111111
    s_mov_b32 s9, s8
    s_mov_b32 s10, 0x33333333
    s_mov_b32 s11, s10
    s_mov_b32 s12, 0x77777777
    s_mov_b32 s13, s12
    v_mov_b32 v98, 0xffff0000
    v_mov_b32 v99, 0xffff
    v_cndmask_b32 v100, 0, v98, s[8:9]
    v_cndmask_b32 v101, 0, v99, s[10:11]
    v_cndmask_b32 v98, 0, v98, s[12:13]
    v_or_b32 v101, v101, v98
    s_mov_b32 s14, {hex(f2u((18 ** -0.5) * 1.4426950408889634))}
    s_mov_b32 s15, s14
    """)
    for gi, (e, lq) in enumerate(grp):
        kb = 112 + 8 * (gi % 4)
        nx = kq_rd(gi + 3) if gi + 3 < 18 else []
        for hh in ([0] if lq < 4 else [0, 1] if lq == 4 else [1]):
            u = 2 * e + hh
            q = vr(144 + 4 * e + 2 * hh, 2) if lq == 4 else vr(kb + 6, 2)
            for z in range(3):
                c = vr(S(u, z), 4) if lq != 4 * hh else ["v[2:5]", "v[6:9]", "0"][z]
                p(f"{MF4} {vr(S(u, z), 4)}, {vr(kb + 2 * z, 2)}, {q}, {c}")
                if nx:
                    p.append(nx.pop(0))
                if misc:
                    p.append(misc.pop(0))
        p.extend(nx)
    p.extend(misc)
    stamp(p, "qk", 2)
    if AR[0] >= 0:
        p.extend(flat(poll_check("att", AR[0], "F")))
    p("s_barrier")

    def v_rd(lq):
        vb = 112 + 12 * (lq % 3)
        return [I(f"ds_read_b64_tr_b16 {vr(vb + 6 * e + 2 * z, 2)}, v{38 + e} offset:{2 * RO + lq * 576 + 32 * z}")
                for z in range(3) for e in range(2)]

    p.extend(v_rd(0) + v_rd(1))
    sm = P()
    B = lambda u: S(u, 0)
    U4 = range(4)
    for r in (1, 2, 3):
        for u in U4:
            sm(f"v_cndmask_b32 v{B(u) + 8 + r}, v{B(u) + 8 + r}, v{B(u) + r}, s[{6 + 2 * r}:{7 + 2 * r}]")
    for u in U4:
        sm(f"v_max3_f32 v{B(u)}, v{B(u) + 4}, v{B(u) + 5}, v{B(u) + 6}")
    for k in (7, 9):
        for u in U4:
            sm(f"v_max3_f32 v{B(u)}, v{B(u)}, v{B(u) + k}, v{B(u) + k + 1}")
    for u in U4:
        sm(f"v_max_f32 v{B(u)}, v{B(u)}, v{B(u) + 11}")
    for u in U4:
        sm(f"v_mul_f32 v{B(u)}, s14, v{B(u)}")
    for u in U4:
        for k in (4, 6, 8, 10):
            sm(f"v_pk_fma_f32 {vr(B(u) + k, 2)}, {vr(B(u) + k, 2)}, s[14:15], {vr(B(u), 2)} op_sel_hi:[1,1,0] neg_lo:[0,0,1] neg_hi:[0,0,1]")
    for u in U4:
        for k in range(4, 12):
            sm(f"v_exp_f32 v{B(u) + k}, v{B(u) + k}")
    for u in U4:
        sm(f"v_pk_add_f32 {vr(B(u), 2)}, {vr(B(u) + 4, 2)}, {vr(B(u) + 6, 2)}")
        sm(f"v_pk_add_f32 {vr(B(u) + 2, 2)}, {vr(B(u) + 8, 2)}, {vr(B(u) + 10, 2)}")
    for u in U4:
        sm(f"v_pk_add_f32 {vr(B(u), 2)}, {vr(B(u), 2)}, {vr(B(u) + 2, 2)}")
    for u in U4:
        sm(f"v_add_f32 v{B(u)}, v{B(u)}, v{B(u) + 1}")
    for u in U4:
        sm(f"v_rcp_f32 v{B(u)}, v{B(u)}")
    for u in U4:
        for k in (4, 6, 8, 10):
            sm(f"v_pk_mul_f32 {vr(B(u) + k, 2)}, {vr(B(u) + k, 2)}, {vr(B(u), 2)} op_sel_hi:[1,0]")
    for u in U4:
        for k in (4, 8):
            sm(f"v_cvt_pk_bf16_f32 v{B(u) + k}, v{B(u) + k}, v{B(u) + k + 1}")
            sm(f"v_cvt_pk_bf16_f32 v{B(u) + k + 1}, v{B(u) + k + 2}, v{B(u) + k + 3}")
    for u in U4:
        for i in range(2):
            sm(f"v_and_b32 v{B(u) + i}, v{100 + i}, v{B(u) + 8 + i}")
            sm(f"v_bfi_b32 v{B(u) + 8 + i}, v{100 + i}, 0, v{B(u) + 8 + i}")
    vmq = dma_wo(1) + dma_wo(2) + [y for r in range(AR[0] + 1) for y in f_loads(r, FRA)]
    nv = sum(1 for x in vmq if x.kind in VM)
    step = max(1, len(sm) // (nv + 1))
    for i, x in enumerate(sm):
        p.append(x)
        if i % step == step - 1:
            while vmq:
                y = vmq.pop(0)
                p.append(y)
                if y.kind in VM:
                    break
    p.extend(vmq)
    if AR[1] > AR[0]:
        p.extend(flat(poll_load(AR[1])))
    stamp(p, "smax", 2)
    po = lambda e, d: 192 + 20 * e + d
    pend = []
    for lq in range(9):
        vb = 112 + 12 * (lq % 3)
        nx = v_rd(lq + 2) if lq + 2 < 9 else []
        hhs = [0] if lq < 4 else [0, 1] if lq == 4 else [1]
        D = lambda e, hh: (152 + 8 * (lq % 2) if hh == hhs[0] else 168) + 4 * e
        for z in range(3):
            for hh in hhs:
                for e in range(2):
                    p(f"{MF4} {vr(D(e, hh), 4)}, {vr(vb + 6 * e + 2 * z, 2)}, {vr(S(2 * e + hh, z), 2)}, {vr(D(e, hh), 4) if z else '0'}")
                    if nx:
                        p.append(nx.pop(0))
                    if z >= 1 and pend:
                        p.append(pend.pop(0))
        p.extend(pend)
        pend = []
        for e in range(2):
            pend.append(I(f"v_cvt_pk_bf16_f32 v{po(e, 2 * lq)}, v{D(e, hhs[0])}, v{D(e, hhs[0]) + 1}"))
            pend.append(I(f"v_cvt_pk_bf16_f32 v{po(e, 2 * lq + 1)}, v{D(e, hhs[-1]) + 2}, v{D(e, hhs[-1]) + 3}"))
        if lq % 2 == 1:
            pend += [I(f"ds_write_b128 v10, {vr(po(e, 2 * lq - 2), 4)} offset:{e * 2432 + 8 * (lq - 1)}") for e in range(2)]
        if lq == 8:
            pend += [I(f"ds_write_b64 v11, {vr(po(e, 16), 2)} offset:{e * 2432 + 256}") for e in range(2)]
    p.extend(pend)
    stamp(p, "core")
    if OPT["stamp"]:
        p("v_mov_b32 v30, v47")
        cur["vst"] = 30
    if AR[1] > AR[0]:
        p.extend(flat(poll_check("att", AR[1], "F")))
    p("WAITVM O0\nWAITLGKM\ns_barrier")
    oreg = lambda ks, b: vr(4 * (ks * 8 + b), 4, "a")
    ord_ = [I(f"ds_read_b128 {oreg(ks, b)}, v{13 if ks < 4 else 14} offset:{b * OB + 64 * ks}") for ks in range(5) for b in range(8)]
    units, hooks = [], []
    rounds = {3: (AR[1] + 1, AR[2]), 6: (AR[2] + 1, AR[3])}
    for t in range(9):
        u = dict(tile=t, tag=f"O{t}", wtags=[], pre=[], dma=[], ks=[(q, WO[t % 5] + q * 4096, 512) for q in range(5)])
        if t == 0:
            u["dma"] += dma_wo(3)
        if t + 4 < 9:
            u["dma"] += dma_wo(t + 4)
        if t == 1:
            u["dma"] += [y for r in range(AR[0] + 1, AR[1] + 1) for y in f_loads(r, FRA)]
        if t == 8:
            u["wtags"].append("P5")
            u["pre"] += signal(5)
        if t in rounds and rounds[t][1] >= rounds[t][0]:
            r0, r1 = rounds[t]
            hooks += [(40 * t + 24 - OPT["pdist"], y) for y in poll_load(r1)]
            u["chk"] = poll_check("att", r1, "F")
            u["dma"] += [y for r in range(r0, r1 + 1) for y in f_loads(r, FRA)]
        units.append(u)
    phase_b(p, units, oreg, Addr([20, 21, 22]), ord_, OPT["stga"], hooks)
    stamp(p, "Bend")
    pre = P()("WAITVM P7\ns_barrier")
    pre.extend(flat(signal(7)))
    end_phase(p, "att", FRA, AR[3] + 1, AR[3] + 1, pre,
              [(5, "A")] + [(r, "F") for r in range(AR[3] + 1, 6)] + [(7, "A"), (6, "F"), (7, "F"), (8, "FA")])
    return p


def head():
    p = P()
    p("s_cmp_ge_u32 s2, 256\ns_cbranch_scc1 L_exit")
    p("s_load_dwordx16 s[4:19], s[0:1], 0\ns_load_dwordx8 s[20:27], s[0:1], 64")
    if OPT["stamp"]:
        p("s_memrealtime s[86:87]\ns_memtime s[88:89]")
    cross = f"s_lshr_b32 s59, s2, 2\ns_xor_b32 s59, s59, s2\ns_and_b32 s59, s59, 1\n"
    inner = f"s_lshr_b32 s60, s2, 3\ns_xor_b32 s60, s60, s2\ns_bfe_u32 s60, s60, 0x10003\n"
    inner2 = f"s_lshr_b32 s60, s2, 3\ns_xor_b32 s60, s60, s2\ns_bfe_u32 s60, s60, 0x20003\n"
    rot = {0: f"s_mov_b32 s{sG}, 0",
           1: cross + f"s_mov_b32 s{sG}, s59",
           2: cross + inner + f"s_lshl1_add_u32 s{sG}, s60, s59",
           3: cross + inner + f"s_lshl1_add_u32 s{sG}, s59, s60",
           4: inner + f"s_mov_b32 s{sG}, s60",
           5: cross + inner2 + f"s_lshl1_add_u32 s{sG}, s60, s59",
           6: cross + f"s_lshl_b32 s{sG}, s59, 1"}[OPT["rotg"]]
    p(f"""
    v_lshrrev_b32 v1, 6, v0
    v_and_b32 v0, 63, v0
    v_readfirstlane_b32 s{sW}, v1
    s_bfe_u32 s59, s2, 0x10002
    s_lshl_b32 s59, s59, 3
    s_bfe_u32 s{sMT}, s2, 0x30003
    s_add_u32 s{sMT}, s{sMT}, s59
    @ROT
    s_and_b32 s59, s2, 3
    s_add_u32 s{sSRC}, s59, 12
    s_lshr_b32 s60, s2, 6
    s_cbranch_scc0 L_att
    s_mul_i32 s{sSRC}, s59, 3
    s_add_u32 s{sSRC}, s{sSRC}, s60
    s_sub_u32 s{sSRC}, s{sSRC}, 1
    """.replace("@ROT", rot))
    return p


def desc(name, nv, acc):
    return f""".amdhsa_kernel {name}
  .amdhsa_next_free_vgpr {nv}
  .amdhsa_next_free_sgpr 102
  .amdhsa_accum_offset {acc}
  .amdhsa_group_segment_fixed_size 0
  .amdhsa_kernarg_size 96
  .amdhsa_user_sgpr_count 2
  .amdhsa_user_sgpr_kernarg_segment_ptr 1
  .amdhsa_system_sgpr_workgroup_id_x 1
.end_amdhsa_kernel"""


def main():
    fin = Finalizer(OPT["age"])
    hd = head()
    parts = {}
    for role, fn in (("att", role_att), ("ffn", role_ffn)):
        code = fin.run(hd + fn())
        i0 = next(i for i, x in enumerate(code) if x.text == f"L_{role}:")
        i1 = next(i for i, x in enumerate(code) if x.text == f"L_{role}_body:")
        body, npad, nb, st = layout(code[i1:], 0, f"L_{role}_pad" if OPT["warm"] else None, 4, f"L_{role}_ret", OPT["align"])
        pro = [I(x.text.replace(f"@LASTPAGE_{role}", str((nb - 1) // 4096))) for x in code[i0:i1]]
        parts[role] = (code[:i0], pro, body)
        sys.stderr.write(f"{role}: {len(code)} ins {fin.stats} body {nb} B pads {npad} {st} prologue {sum(inst_sizes(pro))} B\n")
    ref = open(f"cdna_kernels/{NAME}.s.ref").read().split("\n")
    hdr = [l for l in ref if l.startswith(";") and "@launch" not in l]
    if OPT["stamp"]:
        hdr += [f"; stamps {r} " + " ".join(n) for r, n in stnames.items()]
    o = hdr + ["; @launch grid=(256,1,1) block=(256,1,1) lds=163840",
               '.amdgcn_target "amdgcn-amd-amdhsa--gfx950"', ".text",
               f".globl {NAME}_kernel", ".p2align 12", ".p2align 8", f".type {NAME}_kernel,@function", f"{NAME}_kernel:",
               text_of(parts["ffn"][0]), text_of(parts["ffn"][1]), text_of(parts["att"][1]), "L_exit:", "    s_endpgm",
               ".p2align 12", text_of(parts["ffn"][2]), ".p2align 12", text_of(parts["att"][2]), ".p2align 12",
               '.section .rodata,"a"', ".p2align 6", desc(f"{NAME}_kernel", 512, 256)]
    txt = "\n".join(o)
    if OPT["dflav"]:
        import re
        txt = re.sub(r"(s\[(?:28:31|32:35)\].*) lds$", lambda m: m.group(1) + " " + OPT["dflav"].replace("+", " ") + " lds", txt, flags=re.M)
    print(txt)


main()
```

```python
import re

REG_RE = re.compile(r"^(-?\|?)([vas])(\d+)\|?$")
RNG_RE = re.compile(r"^(-?\|?)([vas])\[(\d+):(\d+)\]\|?$")
TRANS = ("v_exp_f32", "v_log_f32", "v_rcp_f32", "v_rsq_f32", "v_sqrt_f32", "v_sin_f32", "v_cos_f32")


def regs_of(tok):
    tok = tok.strip()
    m = REG_RE.match(tok)
    if m:
        return [(m.group(2), int(m.group(3)))]
    m = RNG_RE.match(tok)
    if m:
        return [(m.group(2), i) for i in range(int(m.group(3)), int(m.group(4)) + 1)]
    if tok in ("vcc", "vcc_lo", "vcc_hi"):
        return [("s", "vcc")]
    if tok == "m0":
        return [("s", "m0")]
    if tok == "exec":
        return [("s", "exec")]
    return []


def vr(n, k=1, t="v"):
    return f"{t}{n}" if k == 1 else f"{t}[{n}:{n + k - 1}]"


class Ins:
    def __init__(self, text, tag=None, cost=None):
        self.text = text
        self.tag = tag
        self.op = text.split()[0] if text else ""
        self.reads, self.writes = set(), set()
        self.srcc = set()
        self.srcab = set()
        self.kind = "other"
        self.deps = []
        self.after = []
        self._parse()
        self.cost = cost if cost is not None else self._cost()

    def _parse(self):
        op = self.op
        if op.endswith(":") or op.startswith(".") or op.startswith(";"):
            self.kind = "label" if op.endswith(":") else "dir"
            return
        if op in ("WAITVM", "WAITLGKM", "RESET"):
            self.kind = "pseudo"
            return
        rest = re.sub(r"\s\w+:\[[^\]]*\]", "", self.text[len(op):])
        toks = [t.strip() for t in rest.split(",")]
        last = toks[-1].split()
        mods = last[1:] if last else []
        if last:
            toks[-1] = last[0]
        self.mods = mods
        R = [regs_of(t) for t in toks]
        flat = lambda L: set(x for l in L for x in l)
        if op.startswith("v_mfma"):
            self.kind = "mfma"
            self.writes = set(R[0]); self.srcab = set(R[1]) | set(R[2]); self.srcc = set(R[3])
            self.reads = self.srcab | self.srcc
            self.passes = 2 if "4x4x4" in op else 4 if "16x16" in op else 8
        elif op.startswith("ds_read") or op.startswith("ds_bpermute") or op.startswith("ds_swizzle"):
            self.kind = "dsr"; self.writes = set(R[0]); self.reads = flat(R[1:])
        elif op.startswith("ds_write"):
            self.kind = "dsw"; self.reads = flat(R)
        elif op.startswith("buffer_load") or op.startswith("global_load"):
            if "lds" in mods or "_lds_" in op:
                self.kind = "dma"; self.reads = flat(R) | {("s", "m0")}
            else:
                self.kind = "vload"; self.writes = set(R[0]); self.reads = flat(R[1:])
        elif op.startswith("buffer_store") or op.startswith("global_store"):
            self.kind = "vstore"; self.reads = flat(R)
            self.data = set(R[0]) if op.startswith("buffer") else set(R[1])
        elif op.startswith("buffer_atomic") or op.startswith("global_atomic"):
            self.kind = "vstore"; self.reads = flat(R); self.data = set()
            if "sc0" in mods:
                self.kind = "vload"; self.writes = set(R[0])
        elif op in ("buffer_wbl2", "buffer_inv"):
            self.kind = "vstore"; self.data = set()
        elif op.startswith("s_load") or op in ("s_memtime", "s_memrealtime"):
            self.kind = "smem"; self.writes = set(R[0]); self.reads = flat(R[1:])
        elif op.startswith("s_atomic"):
            self.kind = "salu"; self.reads = flat(R)
        elif op.startswith("s_waitcnt"):
            self.kind = "wait"
        elif op == "s_nop":
            self.kind = "nop"; self.n = int(toks[0])
        elif op == "s_barrier":
            self.kind = "barrier"
        elif op.startswith("s_cbranch") or op in ("s_branch", "s_setpc_b64", "s_endpgm", "s_swappc_b64"):
            self.kind = "branch"; self.reads = flat(R)
        elif op.startswith("s_cmp") or op.startswith("s_bitcmp") or op in ("s_setprio", "s_sleep"):
            self.kind = "salu"; self.reads = flat(R)
        elif op.startswith("s_"):
            self.kind = "salu"; self.writes = set(R[0]); self.reads = flat(R[1:])
            if "saveexec" in op:
                self.writes.add(("s", "exec"))
        elif op.startswith("v_"):
            self.kind = "valu"
            self.writes = set(R[0]); self.reads = flat(R[1:])
            if op.startswith("v_permlane") and "swap" in op:
                self.writes = flat(R); self.reads = flat(R)
            if op.startswith("v_fmac") or op.startswith("v_dot2c"):
                self.reads |= set(R[0])
            if op.startswith("v_add_co") or op.startswith("v_sub_co") or op.startswith("v_addc_co"):
                self.writes |= set(R[1])
            if op.startswith("v_dot2"):
                self.srcc = set(R[3]) if len(R) > 3 else set(R[0])
                self.srcab = set(R[1]) | set(R[2])
        else:
            raise ValueError("unknown instruction: " + self.text)

    def _cost(self):
        k = self.kind
        if k in ("dma", "vload"):
            return 2
        if k == "vstore":
            return 2
        if k == "dsw":
            return 2 if "b128" in self.op else 1
        if k == "valu" and self.op.startswith(TRANS):
            return 2
        if k in ("label", "dir"):
            return 0
        return 1

    def states(self):
        if self.kind == "nop":
            return self.n + 1
        if self.kind in ("label", "dir", "pseudo"):
            return 0
        return 1


def I(text, tag=None, cost=None):
    return Ins(text, tag, cost)


def is_v(r):
    return r[0] in ("v", "a")


def need_states(p, c):
    n = 0
    pk, ck = p.kind, c.kind
    vmem = ("dma", "vload", "vstore")
    if pk == "valu":
        vw = {r for r in p.writes if is_v(r)}
        sw = {r for r in p.writes if r[0] == "s"}
        isdot = p.op.startswith("v_dot2")
        if ck == "mfma" and vw & c.reads:
            n = max(n, 3 if isdot else 2)
        if ck == "valu":
            if c.op.startswith("v_permlane") and vw & c.reads:
                n = max(n, 2)
            if c.op.startswith(("v_readlane", "v_readfirstlane")) and vw & c.reads:
                n = max(n, 1)
            if ("row_" in c.text or "quad_perm" in c.text or "wave_" in c.text) and vw & c.reads:
                n = max(n, 2)
            if p.op.startswith(TRANS) and vw & c.reads:
                n = max(n, 1)
            if sw & c.reads:
                n = max(n, 4 if c.op.startswith(("v_readlane", "v_writelane")) else 2)
            if ("s", "exec") in sw:
                n = max(n, 4)
        if isdot:
            if ck == "valu" and c.op == p.op:
                if vw & c.srcab:
                    n = max(n, 3)
            elif vw & (c.reads | c.writes):
                n = max(n, 3)
        if ck in vmem and sw & c.reads:
            n = max(n, 5)
        if ck in ("salu", "branch", "smem") and sw & c.reads:
            n = max(n, 2)
        if ck == "branch" and ("vcc" in c.op) and ("s", "vcc") in sw:
            n = max(n, 5)
    if pk == "mfma":
        rd_, ov_, war_, same_ = {2: (5, 4, 1, 2), 4: (8, 6, 3, 0), 8: (12, 10, 7, 0)}[p.passes]
        if ck == "mfma":
            if p.writes & c.srcab:
                n = max(n, rd_)
            if p.writes & c.srcc:
                n = max(n, same_ if (p.writes == c.srcc and p.passes == c.passes) else ov_)
            if p.writes & c.writes:
                n = max(n, same_ if (p.writes == c.writes and p.passes == c.passes) else ov_)
        elif ck in ("valu", "dsr", "dsw") + vmem:
            if p.writes & (c.reads | c.writes):
                n = max(n, rd_)
            if p.srcc & c.writes:
                n = max(n, war_)
    if pk == "salu" and ("s", "m0") in p.writes and ck == "dma":
        n = max(n, 1)
    if pk == "vstore" and ("x4" in p.op or "x3" in p.op) and p.data & c.writes:
        n = max(n, 2)
    if pk == "dsw" and "b128" in p.op and ck == "valu" and (p.reads & c.writes):
        n = max(n, 1)
    return n


class Finalizer:
    def __init__(self, lgkm_age=10):
        self.lgkm_age = lgkm_age
        self.keep = 2

    def run(self, ins):
        out = []
        lg = []
        vm = []
        smem = []
        stats = {"lgkm": 0, "vm": 0, "nop": 0}
        lastw = {}
        waited = set()
        seen = set()

        def pos():
            return len(out)

        def emit(x):
            if x.kind not in ("label", "dir", "wait", "nop", "pseudo"):
                dist = 0
                need = 0
                for p in reversed(out[-24:]):
                    r = need_states(p, x) - dist
                    need = max(need, r)
                    dist += p.states()
                    if dist > 14:
                        break
                while need > 0:
                    k = min(need, 16)
                    out.append(Ins(f"s_nop {k - 1}"))
                    stats["nop"] += 1
                    need -= k
            out.append(x)

        def wait(l=None, v=None):
            parts = []
            if v is not None:
                v = min(v, 63)
                if len(vm) > v:
                    parts.append(f"vmcnt({v})")
                    del vm[: len(vm) - v]
                    stats["vm"] += 1
            if l is not None:
                l = min(l, 15)
                if smem:
                    l = 0
                if len(lg) > l or smem:
                    parts.append(f"lgkmcnt({l})")
                    del lg[: len(lg) - l]
                    del smem[:]
                    stats["lgkm"] += 1
            if parts:
                out.append(Ins("s_waitcnt " + " ".join(parts)))

        for x in ins:
            if x.kind == "pseudo":
                a = x.text.split()
                if x.op == "RESET":
                    del lg[:]; del vm[:]; del smem[:]
                elif x.op == "WAITLGKM":
                    wait(l=0)
                elif x.op == "WAITVM":
                    if a[1] == "ALL":
                        wait(v=0)
                    else:
                        tags = set(a[1:])
                        waited |= tags
                        idx = [i for i, (p, _) in enumerate(vm) if p.tag in tags]
                        if idx:
                            wait(v=len(vm) - 1 - idx[-1])
                continue
            if x.kind == "wait":
                m = re.search(r"vmcnt\((\d+)\)", x.text)
                if m:
                    n = int(m.group(1)); del vm[: max(0, len(vm) - n)]
                m = re.search(r"lgkmcnt\((\d+)\)", x.text)
                if m:
                    n = int(m.group(1)); del lg[: max(0, len(lg) - n)]
                    if n == 0:
                        del smem[:]
                out.append(x)
                continue
            assert x.tag is None or x.tag not in waited, f"tag {x.tag} issued after its wait: {x.text}"
            seen.add(id(x))
            for d in x.after:
                assert id(d) in seen, f"{x.text} placed before {d.text}"
            for d in x.deps:
                for r in d.writes & x.reads:
                    assert lastw.get(r) is d, f"bad producer for {r} in {x.text}: want {d.text}, have {lastw.get(r) and lastw[r].text}"
            for r in x.writes:
                lastw[r] = x
            touch = x.reads | x.writes
            lw = vw = None
            idx = [i for i, (p, _) in enumerate(lg) if p.writes & touch]
            if idx:
                i = idx[-1]
                while i + 1 < len(lg) - self.keep and pos() - lg[i + 1][1] >= self.lgkm_age:
                    i += 1
                lw = len(lg) - 1 - i
            if any(p.writes & touch for p in smem):
                lw = 0
            idx = [i for i, (p, _) in enumerate(vm) if p.writes & touch]
            if idx:
                vw = len(vm) - 1 - idx[-1]
            if lw is not None or vw is not None:
                wait(l=lw, v=vw)
            emit(x)
            if x.kind in ("dsr", "dsw"):
                lg.append((x, pos()))
            elif x.kind in ("dma", "vload", "vstore"):
                vm.append((x, pos()))
                assert len(vm) <= 63 or True
            elif x.kind == "smem":
                smem.append(x)
        self.stats = stats
        return out


def sched(mf, streams, cap=2, flush=True):
    out = []
    heads = [0] * len(streams)
    for g, m in enumerate(mf):
        out.append(m)
        budget = cap
        progress = True
        while progress:
            progress = False
            for si, st in enumerate(streams):
                if heads[si] >= len(st):
                    continue
                e, it = st[heads[si]]
                if e > g:
                    continue
                items = it if isinstance(it, list) else [it]
                c = sum(i.cost for i in items)
                if c <= budget or (budget == cap and c > cap):
                    out.extend(items)
                    budget -= c
                    heads[si] += 1
                    progress = True
                    break
            if budget <= 0:
                for si, st in enumerate(streams):
                    while heads[si] < len(st):
                        e, it = st[heads[si]]
                        items = it if isinstance(it, list) else [it]
                        if e <= g and sum(i.cost for i in items) == 0:
                            out.extend(items); heads[si] += 1
                        else:
                            break
                break
    left = []
    for si, st in enumerate(streams):
        rest = st[heads[si]:]
        if flush:
            for e, it in rest:
                out.extend(it if isinstance(it, list) else [it])
        left.append(rest)
    return out if flush else (out, left)


def text_of(ins):
    return "\n".join(("" if x.kind in ("label", "dir") else "    ") + x.text for x in ins)


import subprocess
_size_cache = {}


def inst_sizes(ins):
    for x in ins:
        if x.kind == "salu" and "L_" in x.text:
            _size_cache[x.text] = 8
    todo = sorted({x.text for x in ins if x.kind not in ("label", "dir", "branch") and x.text not in _size_cache})
    if todo:
        r = subprocess.run(["llvm-mc", "-triple=amdgcn-amd-amdhsa", "-mcpu=gfx950", "-show-encoding"],
                           input="\n".join(todo) + "\n", capture_output=True, text=True)
        assert r.returncode == 0, r.stderr
        enc = [l for l in r.stdout.split("\n") if "encoding:" in l]
        assert len(enc) == len(todo)
        for t, l in zip(todo, enc):
            _size_cache[t] = l.split("encoding:")[1].count("0x")
    return [0 if x.kind in ("label", "dir") else 4 if x.kind == "branch" else _size_cache[x.text] for x in ins]


NOPROMOTE = ("v_readfirstlane", "v_dot2c", "v_permlane", "v_nop", "v_accvgpr", "v_fmac")


def promotable(x, sz):
    return x.kind == "valu" and sz == 4 and not x.op.startswith(NOPROMOTE) and not x.op.endswith("_e64")


def layout(ins, start=0, pad_prefix=None, pad_stride=4, pad_ret=None, align=True):
    sz = inst_sizes(ins)
    out, osz = [], []
    off = start
    npad = 0
    st = {"promo": 0, "nop": 0}
    cand = None
    for i, (x, s) in enumerate(zip(ins, sz)):
        if s and pad_prefix and off % 4096 == 0:
            out.append(Ins(f"{pad_prefix}{npad}:")); osz.append(0)
            out.append(Ins(f"s_cbranch_execz @PAD{npad + pad_stride}")); osz.append(4)
            npad += 1
            off += 4
            cand = None
        if s == 8 and off % 32 == 28 and (align or (off + 4) % 4096 == 0):
            if cand is not None:
                y = out[cand]
                z = Ins(y.op + "_e64" + y.text[len(y.op):], y.tag, y.cost)
                out[cand] = z; osz[cand] = 8
                st["promo"] += 1
            else:
                out.append(Ins("s_nop 0")); osz.append(4)
                st["nop"] += 1
            off += 4
            cand = None
            if pad_prefix and off % 4096 == 0:
                out.append(Ins(f"{pad_prefix}{npad}:")); osz.append(0)
                out.append(Ins(f"s_cbranch_execz @PAD{npad + pad_stride}")); osz.append(4)
                npad += 1
                off += 4
        if off % 32 == 0:
            cand = None
        out.append(x); osz.append(s)
        if promotable(x, s):
            cand = len(out) - 1
        off += s
    res = []
    for x in out:
        if "@PAD" in x.text:
            k = int(x.text.split("@PAD")[1])
            res.append(Ins(f"s_cbranch_execz {pad_prefix + str(k) if k < npad else pad_ret}"))
        else:
            res.append(x)
    return res, npad, off - start, st
```

```python
import sys
import struct
from asmlib import *

NAME = "gated_mix__sliding_local_dilated__dense_activation_squared_relu__prompt"
OPT = dict(stamp=0, warm=1, touch=0, align=1, ctouch=1, tfirst=2, slack=8, look=6, sig=3, pdist=44,
           bg0=12, bg1=0, cap=11, capa=13, npro=10, nproa=8, tdist=4, sleep=0, ar="-1,1,3,4", stg=8, stga=6, verbose=0, dflav='', bgn=0, bgv=24, rotg=3, w1pre=0, nost=0, stflav='sc1', nochk=0, nosig=0, age=10, ct2=1, vsig=0, pol='probe', pg0=14, pg1=33, pgs=3, nrace=4, prb=0x1a0000)
for a in sys.argv[1:]:
    k, v = a.split("=")
    assert k in OPT, k
    OPT[k] = int(v) if v.lstrip("-").isdigit() else v

PG = 0x200000
SRCS = 32768
O_CNT, O_Z, O_PRB = 0x180000, 0x190000, OPT['prb']
FST = 256
WS_STAMP = 0x9000000
WS_SIZE = 0xa000000
MF = "v_mfma_f32_16x16x32_bf16"
MF4 = "v_mfma_f32_4x4x4_16b_bf16"
OOB = "0x80000000"

SX, SWA, SWB, SSM, SWS, SOUT, SB2 = 28, 32, 36, 40, 44, 48, 52
SDBG = 4
sW, sMT, sSRC = 56, 57, 58
sCH = 70
sFL, sMB, sSPIN, sMASK = 79, 80, 81, 84
sPG = 0
sG, sWB = 90, 91
vL16, vPST, vFW, vPOLL2, vPOLL, vCON, vFD = 23, 24, 25, 26, 27, 28, 29
srd = lambda n: f"s[{n}:{n + 3}]"
f2u = lambda x: struct.unpack("<I", struct.pack("<f", x))[0]
VM = ("dma", "vload", "vstore")


class P(list):
    def __call__(self, text, tag=None, cost=None):
        for t in text.split("\n"):
            t = t.strip()
            if t:
                self.append(I(t, tag, cost))
        return self


def flat(items):
    o = []
    for it in items:
        o.extend(it if isinstance(it, list) else [it])
    return o


def srd_const(p, n, size):
    p(f"s_mov_b32 s{n + 2}, {size}\ns_mov_b32 s{n + 3}, 0x20000")


def srd_ptr(p, n, ptr, bias=0):
    if bias:
        p(f"s_sub_u32 s{n}, s{ptr}, {bias}\ns_subb_u32 s{n + 1}, s{ptr + 1}, 0")
    else:
        p(f"s_mov_b64 s[{n}:{n + 1}], s[{ptr}:{ptr + 1}]")


class Addr:
    def __init__(self, regs):
        self.regs = regs

    def at(self, off):
        return f"v{self.regs[off >> 16]} offset:{off & 0xffff}"

    def wr(self, off, data):
        return f"v{self.regs[off >> 16]}, {data} offset:{off & 0xffff}"


nstamp = [0]
stnames = {}
cur = {"role": None, "vst": None}


def stamp_ins(name, lvl=1):
    if not (OPT["stamp"] and (OPT["stamp"] >= lvl or name == "end")):
        return []
    n = nstamp[0]
    nstamp[0] += 1
    assert n < 31
    stnames.setdefault(cur["role"], []).append(name)
    v = cur["vst"]
    return [I("s_memrealtime s[86:87]"), I("s_memtime s[88:89]"), I("s_waitcnt lgkmcnt(0)"),
            I(f"v_writelane_b32 v{v}, s86, {2 * n}"), I(f"v_writelane_b32 v{v}, s88, {2 * n + 1}")]


def stamp(p, name, lvl=1):
    p.extend(stamp_ins(name, lvl))


def stamp_begin(p, role, v):
    cur["role"], cur["vst"] = role, v
    nstamp[0] = 1
    stnames[role] = ["start"]
    if OPT["stamp"]:
        p(f"v_mov_b32 v{v}, 0\ns_waitcnt lgkmcnt(0)\nv_writelane_b32 v{v}, s86, 0\nv_writelane_b32 v{v}, s88, 1")


def stamp_out(p):
    if OPT["stamp"]:
        p("s_waitcnt vmcnt(0)")
        stamp(p, "end")
        p(f"s_lshl_b32 s59, s2, 2\ns_add_u32 s59, s59, s{sW}\ns_lshl_b32 s59, s59, 8\ns_add_u32 s59, s59, {WS_STAMP}")
        p(f"v_lshlrev_b32 v1, 2, v0\nv_writelane_b32 v{cur['vst']}, s{sSPIN}, 63")
        p(f"buffer_store_dword v{cur['vst']}, v1, {srd(SWS)}, s59 offen")


stubs = {}
sCNT, sDB, sINC, sP0, sP1 = 92, 94, 96, 97, 98
sNEED = {"F": "s99", "A": "s100", "FA": "s101", "init": "15"}
PGS = [0, 1, 61]


nskip = [0]
lastpoll, lastchk = {}, {}


def wave0(items):
    nskip[0] += 1
    return [I(f"s_cbranch_vccz L_skip{nskip[0]}")] + items + [I(f"L_skip{nskip[0]}:")]


def poll_load(t, reg=sP0, bare=False):
    if t == "init" and not bare:
        x = I(f"s_load_dword s{reg}, s[{sDB}:{sDB + 1}], 0x0")
        x.kind = "salu"
        lastpoll[reg] = (t, x)
        lastchk.clear()
        return [[x]]
    base, off = (sDB, 0) if t == "init" else (sCNT, t * FST)
    o = [I(f"s_mov_b32 s{reg}, 0", cost=0), I(f"s_atomic_add s{reg}, s[{base}:{base + 1}], {hex(off)} glc")]
    if not bare:
        o[0].after = lastchk.get(reg, [])
        lastpoll[reg] = (t, o[1])
    return [o if bare else wave0(o)]


def poll_check(role, t, what, reg=sP0):
    st = stubs.setdefault(role, P())
    n = sum(1 for x in st if x.kind == "label")
    lab = f"L_{role}_spin{n}"
    st(f"{lab}:")
    if OPT["sleep"]:
        st(f"s_sleep {OPT['sleep']}")
    st.extend(flat(poll_load(t, reg, True)))
    st(f"""
    s_sub_u32 s{sSPIN}, s{sSPIN}, 1
    s_waitcnt lgkmcnt(0)
    s_cmp_lt_i32 s{sSPIN}, 0
    s_cbranch_scc1 {lab}r
    s_andn2_b32 s85, {sNEED[what]}, s{reg}
    s_cbranch_scc1 {lab}
    s_branch {lab}r
    """)
    c = I(f"s_andn2_b32 s85, {sNEED[what]}, s{reg}")
    assert lastpoll[reg][0] == t
    c.after = [lastpoll.pop(reg)[1]]
    lastchk[reg] = [c]
    return [[I("s_waitcnt lgkmcnt(0)"), c, I(f"s_cbranch_scc1 {lab}"), I(f"{lab}r:")]]


def signal(t):
    if OPT["vsig"]:
        return vsignal(t)
    return [wave0([I(f"s_atomic_add s{sINC}, s[{sCNT}:{sCNT + 1}], {hex(t * FST)}")])]


def vsignal(t):
    return [I(f"buffer_atomic_add v{vFD}, v{vFW}, {srd(SWS)}, s{sFL} offen offset:{t * FST}")]


def handoff_setup(base_sgpr, inc):
    o = [I(f"s_and_b32 s85, s{sMT}, 7"), I("s_lshl_b32 s85, s85, 7")]
    for t in range(9):
        o.append(I(f"s_add_u32 s{sCH + t}, s85, s{base_sgpr}"))
        if t < 8:
            o.append(I("s_add_u32 s85, s85, 128"))
            o.append([I("s_cmp_eq_u32 s85, 1152"), I("s_cselect_b32 s85, 0, s85")])
    o += P()(f"""
    s_sub_u32 s85, 0, s26
    s_and_b32 s85, s85, {PG - 1}
    s_lshl_b32 s{sMB}, s{sMT}, 23
    s_add_u32 s{sMB}, s{sMB}, s85
    s_mov_b32 s{sSPIN}, 0x10000
    s_lshl_b32 s3, s{sMT}, 2
    s_lshr_b32 s{sMASK}, 1, s{sW}
    s_lshl_b32 {sNEED['F']}, s{sMASK}, 4
    s_lshl_b32 {sNEED['A']}, s{sMASK}, 10
    s_mul_i32 {sNEED['FA']}, s{sMASK}, 0x410
    s_mov_b32 s{sINC}, {inc}
    v_bfe_u32 v{vPST}, v0, 2, 2
    v_lshlrev_b32 v{vPST}, 8, v{vPST}
    v_lshrrev_b32 v{vCON}, 4, v0
    v_lshl_add_u32 v{vPST}, v{vCON}, 6, v{vPST}
    v_and_b32 v{vFW}, 3, v0
    v_lshl_add_u32 v{vPST}, v{vFW}, 4, v{vPST}
    v_and_b32 v{vFW}, 15, v0
    v_mul_u32_u24 v{vCON}, {SRCS}, v{vCON}
    v_lshl_add_u32 v{vCON}, v{vFW}, 4, v{vCON}
    s_lshl_b32 s85, s{sSRC}, 8
    v_add_u32 v{vCON}, s85, v{vCON}
    s_mul_i32 s85, s{sSRC}, {SRCS}
    v_add_u32 v{vPST}, s85, v{vPST}
    v_or_b32 v{vFW}, s{sW}, v0
    v_min_u32 v{vFW}, 1, v{vFW}
    v_lshlrev_b32 v{vFW}, 31, v{vFW}
    v_mov_b32 v{vFD}, {inc}
    s_mov_b32 vcc_lo, s{sMASK}
    s_mov_b32 vcc_hi, 0
    """)
    o += [[I(f"s_add_u32 s{sDB}, s24, s3"), I(f"s_addc_u32 s{sDB + 1}, s25, 0")]]
    return o


def page_setup():
    o = P()(f"""
    s_lshr_b32 s85, s{sW}, 1
    s_mul_i32 s85, s85, {16384 - 8192}
    s_lshl_b32 s3, s{sW}, 12
    s_add_u32 s3, s3, s85
    s_add_u32 s3, s3, s{sMB}
    """)
    for k in range(3):
        if OPT["pol"] == "probe":
            o(f"s_bfe_u32 s85, s{sP0}, {hex(0x10004 + k)}")
        elif OPT["pol"] == "inv":
            o(f"s_bfe_u32 s85, s{sP0}, {hex(0x10004 + k)}\ns_xor_b32 s85, s85, 1")
        elif OPT["pol"] in ("fix0", "fix1"):
            o(f"s_lshr_b32 s85, s{sMT}, 3\ns_xor_b32 s85, s85, {(k ^ int(OPT['pol'][3])) & 1}")
        else:
            o(f"s_and_b32 s85, s{sMT}, 1")
        o("s_lshl_b32 s85, s85, 13")
        if k == 0:
            o(f"s_add_u32 s{sFL}, s85, s{sMB}\ns_add_u32 s{sFL}, s{sFL}, {O_CNT}")
        o(f"s_add_u32 s85, s85, s3")
        o(f"s_add_u32 s{PGS[k]}, s85, {k * PG}")
    return list(o) + [[I(f"s_add_u32 s{sCNT}, s26, s{sFL}"), I(f"s_addc_u32 s{sCNT + 1}, s27, 0")]]


def counter_init(tmp):
    a = P()(f"""
    s_min_u32 s85, s{sW}, 1
    s_lshl_b32 s85, s85, 31
    v_and_b32 v{tmp}, 15, v0
    v_lshlrev_b32 v{tmp}, 8, v{tmp}
    v_bfe_u32 v{tmp + 1}, v0, 4, 1
    v_lshl_add_u32 v{tmp}, v{tmp + 1}, 13, v{tmp}
    v_lshrrev_b32 v{tmp + 1}, 5, v0
    v_or_b32 v{tmp + 1}, s67, v{tmp + 1}
    v_min_u32 v{tmp + 1}, 1, v{tmp + 1}
    v_lshl_or_b32 v{tmp}, v{tmp + 1}, 31, v{tmp}
    v_or_b32 v{tmp}, s85, v{tmp}
    v_lshrrev_b32 v{tmp + 1}, 3, v0
    v_lshlrev_b32 v{tmp + 1}, 12, v{tmp + 1}
    v_and_b32 v{tmp + 2}, 7, v0
    v_lshl_add_u32 v{tmp + 1}, v{tmp + 2}, 3, v{tmp + 1}
    v_or_b32 v{tmp + 1}, s85, v{tmp + 1}
    v_mov_b32 v{tmp + 2}, 4
    v_mov_b32 v{tmp + 3}, 4
    s_add_u32 s85, s{sMB}, {O_CNT}
    """)
    a(f"buffer_store_dword v{tmp + 2}, v{tmp}, {srd(SWS)}, s85 offen sc1", tag="FI")
    a(f"s_lshl_b32 s85, s67, 21\ns_add_u32 s85, s85, s{sMB}\ns_add_u32 s85, s85, {O_PRB}")
    a(f"buffer_store_dwordx2 {vr(tmp + 2, 2)}, v{tmp + 1}, {srd(SWS)}, s85 offen sc1", tag="FI")
    a = list(a) + [[I("s_add_u32 s16, s26, s85"), I("s_addc_u32 s17, s27, 0")], I("s_mov_b32 s14, 0")]

    def race(n):
        blk = [0x0, 0x1000, 0x4000, 0x5000][n % 4]
        ld = [I(f"s_load_dword s{8 + c}, s[16:17], {hex(blk + 0x2000 * c)} glc", cost=0) for c in ((0, 1) if n % 2 == 0 else (1, 0))]
        for x in ld:
            x.kind = "salu"
        o = [(2, [I("s_mov_b64 s[8:9], 0")] + wave0(ld))]
        smp = ["s_add_u32 s14, s14, s8", "s_sub_u32 s14, s14, s9"]
        for g in range(OPT["pg0"], OPT["pg1"], OPT["pgs"]):
            o.append((2 + g, [I(t) for t in (smp if n % 2 == 0 else smp[::-1])]))
        return o

    pub = [[I("s_cmp_lt_i32 s14, 0"), I("s_cselect_b32 s15, 17, 1")], I("s_lshl_b32 s15, s15, s67"),
           wave0([I(f"s_atomic_or s15, s[{sDB}:{sDB + 1}], 0x0")])]
    if OPT["stamp"]:
        pub += [[I("s_ashr_i32 s15, s14, 2"), I("s_and_b32 s15, s15, 0xff")], [I("s_lshl_b32 s14, s67, 3"), I("s_lshl_b32 s15, s15, s14")],
                wave0([I(f"s_atomic_or s15, s[{sDB}:{sDB + 1}], 0x40")])]
    return a, race, pub


def touch(vreg, sr, base, off, force=False):
    a = I(f"s_add_u32 s60, s{base}, {off}")
    x = I(f"buffer_load_dword a255, v{vreg}, {srd(sr)}, s60 offen")
    x.writes = set()
    return [a, x] if OPT["touch"] or force else []


def x_touch_addr(p, reg, tmp):
    p(f"""
    s_lshr_b32 s59, s2, 6
    s_lshl_b32 s59, s59, 2
    s_add_u32 s59, s59, s{sW}
    s_mul_i32 s59, s59, {8 * 1152}
    v_and_b32 v{tmp}, 7, v0
    v_mul_u32_u24 v{reg}, 1152, v{tmp}
    v_bfe_u32 v{tmp}, v0, 3, 1
    v_lshl_add_u32 v{reg}, v{tmp}, 7, v{reg}
    v_lshrrev_b32 v{tmp}, 4, v0
    v_min_u32 v{tmp}, 1, v{tmp}
    v_lshlrev_b32 v{tmp}, 31, v{tmp}
    v_add3_u32 v{reg}, v{reg}, v{tmp}, s59
    """)


def code_touch(p, role, tmp):
    p(f"s_and_b32 s68, s{sMT}, 7\ns_lshl_b32 s68, s68, 2\ns_add_u32 s68, s68, s{sW}")
    if OPT["ctouch"]:
        p(f"""
        s_getpc_b64 s[82:83]
        L_{role}_pc:
        s_add_u32 s82, s82, L_{role}_body-L_{role}_pc
        s_addc_u32 s83, s83, 0
        s_lshl_b32 s59, s68, 7
        v_min_u32 v{tmp}, @LASTPAGE_{role}, v0
        v_lshl_add_u32 v{tmp}, v{tmp}, 12, s59
        """)
        x = I(f"global_load_dword a255, v{tmp}, s[82:83]")
        x.writes = set()
        p.append(x)


def code_touch2(role, tmp):
    if not OPT["ct2"]:
        return []
    x = I(f"global_load_dword a255, v{tmp}, s[10:11]")
    x.writes = set()
    return [[I("s_getpc_b64 s[10:11]"), I(f"L_{role}_pc2:"), I(f"s_sub_u32 s10, s10, L_{role}_pc2-L_{role}_body"), I("s_subb_u32 s11, s11, 0")], x]


def warm(p, role):
    if OPT["warm"]:
        p("s_mov_b64 exec, 0")
        for w in range(3):
            p(f"s_cmp_eq_u32 s{sW}, {w}\ns_cbranch_scc1 L_{role}_pad{w}")
        p(f"s_branch L_{role}_pad3\nL_{role}_ret:\ns_mov_b64 exec, -1")


def x_soff(J, base):
    if J == 8:
        return [I(f"s_add_u32 s60, {base}, 1024")]
    return [I(f"s_xor_b32 s60, s{sG}, {J}"), I("s_lshl_b32 s60, s60, 7"), I(f"s_add_u32 s60, s60, {base}")]


def w_block(j, base, pitch):
    if j % 2:
        return []
    if j == 16:
        return [I(f"s_add_u32 s{sWB}, s{base}, {512 * pitch}")]
    return [I(f"s_xor_b32 s{sWB}, s{sG}, {j // 2}"), I(f"s_mul_i32 s{sWB}, s{sWB}, {64 * pitch}"), I(f"s_add_u32 s{sWB}, s{sWB}, s{base}")]


def pace(groups, nsteps, cap, ngap, bgap, npro):
    q = [(e, x) for e, g in groups for x in g]
    res = []
    for j in range(-1, nsteps):
        d, n = [], 0
        lim = npro if j < 0 else 99 if j == nsteps - 1 else cap
        while q and q[0][0] <= j and n < lim:
            e, x = q.pop(0)
            d.append((e == j, x))
            n += x.kind in VM
        k, o = 0, []
        for dep, it in d:
            vm = it.kind in VM
            g = 1 + (ngap * k) // max(n, 1) + (2 if vm else 0)
            o.append((max(g, bgap(j) + 1) if dep else g, it))
            k += vm
        res.append(o)
    assert not q
    if OPT["verbose"]:
        for j, o in enumerate(res):
            sys.stderr.write(f"  step {j - 1}: " + " ".join((x.tag or "t") for _, x in o if x.kind in VM) + "\n")
    return [x for _, x in res[0]], res[1:]


def first_touches(p, tw, tx, wmask):
    if OPT["tfirst"] == 1:
        p.extend(tw(0) + tx(0))
        return 4, 2
    if OPT["tfirst"] == 2 and OPT["touch"]:
        a, b = tw(0), tx(0)
        p(f"s_mov_b64 exec, {wmask}")
        p.extend(a)
        p("s_mov_b64 exec, 0xff")
        p.extend(b)
        p("s_mov_b64 exec, -1")
        return 2, 1
    return 1, 1


def add_touches(groups_after, j, TW, TX, tw, tx):
    o = []
    for k in range(1, 5):
        if j == max(1, TW + 4 * k - OPT["tdist"]):
            if TW + 4 * k < 18:
                o += tw(TW + 4 * k)
            if TX + 2 * k < 9:
                o += tx(TX + 2 * k)
    if o:
        groups_after.append((-1, o))


BG = lambda j: OPT["bg0"] if j == 0 else OPT["bg1"] if j == 1 else OPT["bgv"] if j < OPT["bgn"] else 0


def gemm_step(p, j, mf, tags, rds, dma, side, first=(), hi=()):
    bg = BG(j)
    s_rd = [(bg, [I(f"WAITVM {tags}", cost=1), I("s_barrier")])] + list(first)
    r0 = max([bg] + [g for g, _ in first])
    span = len(mf) - 6 - r0
    for i, x in enumerate(rds):
        s_rd.append((r0 + 2 + min(2 * i, (span * i) // len(rds)), x))
    p.extend(sched(mf, [list(hi), s_rd, dma, side]))


def phase_b(p, units, hreg, trB, hrd, st_gap, hooks, nfirst=10):
    frags = []
    for ui, u in enumerate(units):
        for qi, k in enumerate(u["ks"]):
            frags.append((ui, qi, k))
    ntile_ks = {}
    for ui, qi, k in frags:
        ntile_ks.setdefault(units[ui]["tile"], []).append(k)
    rdc = {}

    def rd(fi):
        if fi not in rdc:
            ui, qi, (ks, off, hoff) = frags[fi]
            w = 48 + 4 * (fi % 4)
            rdc[fi] = [I(f"ds_read_b64_tr_b16 {vr(w, 2)}, {trB.at(off)}"),
                       I(f"ds_read_b64_tr_b16 {vr(w + 2, 2)}, {trB.at(off + hoff)}")]
        return rdc[fi]

    mf, s_rd, s_dma, s_ep = [], [], [], []
    p.extend(rd(0) + rd(1) + hrd[:nfirst])
    s_h = [(i, x) for i, x in enumerate(hrd[nfirst:])]
    seen = {}
    for fi, (ui, qi, (ks, off, hoff)) in enumerate(frags):
        u = units[ui]
        t = u["tile"]
        first = t not in seen
        seen[t] = seen.get(t, 0) + 1
        g0 = len(mf)
        w = 48 + 4 * (fi % 4)
        for b in range(8):
            c = 64 + 32 * (t % 2) + 4 * b
            mf.append(I(f"{MF} {vr(c, 4)}, {vr(w, 4)}, {hreg(ks, b)}, {'0' if first else vr(c, 4)}"))
            mf[-1].deps = rd(fi) + [hrd[ks * 8 + b]]
        nf = fi + 2
        if qi == len(u["ks"]) - 2:
            tags = u.get("wtags", [])
            if nf < len(frags):
                tags = [units[ui + 1]["tag"]] + tags
            chk = u.get("chk", [])
            for it in chk:
                s_rd.append((g0 - 1, it))
            if tags or chk or u.get("pre"):
                bi = I("s_barrier")
                s_rd.append((g0, [I("WAITVM none " + " ".join(tags), cost=1), bi]))
                for x in flat(u.get("pre", []) + u.get("dma", [])):
                    x.after = [bi]
            for it in u.get("pre", []):
                s_dma.append((g0 + 2, it))
            items = u.get("dma", [])
            nv = sum(1 for x in items if x.kind in VM)
            k = 0
            for it in items:
                vm = it.kind in VM
                s_dma.append((g0 + 4 + (8 * len(u["ks"]) * k) // nv + (1 if vm else 0), it))
                k += vm
        if nf < len(frags):
            r = rd(nf)
            s_rd.append((g0 + 1, r[0]))
            s_rd.append((g0 + 3, r[1]))
        if seen[t] == len(ntile_ks[t]):
            if t < 8 and OPT["stamp"] >= 2:
                s_rd.append((len(mf) - 1, stamp_ins(f"t{t}", 2)))
            e = len(mf) + 1
            s_ep.append((e, I(f"s_add_u32 s62, s{PGS[t // 3]}, {(t % 3) * 16 * SRCS}")))
            for pp in range(4):
                c = 64 + 32 * (t % 2) + 8 * pp
                for i in range(4):
                    s_ep.append((e + pp * st_gap, I(f"v_cvt_pk_bf16_f32 v{32 + 4 * pp + i}, v{c + 2 * i}, v{c + 2 * i + 1}")))
                    s_ep[-1][1].deps = mf[-8:]
                if not OPT["nost"]:
                    s_ep.append((e + pp * st_gap + 5,
                                 I(f"buffer_store_dwordx4 {vr(32 + 4 * pp, 4)}, v{vPST}, {srd(SWS)}, s62 offen offset:{1024 * pp} {OPT['stflav'].replace('plain', '')}", tag=f"P{t}")))
    p.extend(sched(mf, [s_rd, s_dma, s_h, s_ep, sorted(hooks, key=lambda h: h[0])]))


FRV = lambda r, i: vr(128 + 12 * r + 4 * i, 4)


def f_loads(r, FR):
    o = []
    for i in range(3):
        o += [I(f"s_add_u32 s60, s{PGS[r // 3]}, {((r % 3) * 16 + 4 * i) * SRCS}"),
              I(f"buffer_load_dwordx4 {FR(r, i)}, v{vCON}, {srd(SWS)}, s60 offen sc1")]
    return o


def a_load(r):
    return [I(f"s_add_u32 s60, s{PGS[r // 3]}, {((r % 3) * 16 + 12) * SRCS}"),
            I(f"buffer_load_dwordx4 {vr(4 * r, 4, 'a')}, v{vCON}, {srd(SWS)}, s60 offen sc1")]


def end_phase(p, role, FR, nin, nchk, pre, stages):
    DF = lambda q: 96 + 4 * q
    DA = lambda q: 236 + 4 * q
    for r in range(nin, nchk):
        p.extend(f_loads(r, FR))
    p.extend(pre)
    srd_ptr(p, SB2, 18); srd_const(p, SB2, 1152)
    srd_ptr(p, SOUT, 22); srd_const(p, SOUT, 2048 * 1152)
    p(f"""
    s_lshr_b32 s59, s{sSRC}, 2
    s_lshl_b32 s59, s59, 5
    s_and_b32 s60, s{sSRC}, 3
    s_lshl_b32 s60, s60, 2
    s_add_u32 s59, s59, s60
    v_bfe_u32 v3, v0, 4, 1
    v_and_b32 v4, 3, v0
    v_lshl_add_u32 v3, v3, 4, v4
    v_add_u32 v3, s59, v3
    v_lshlrev_b32 v4, 2, v3
    v_mul_u32_u24 v63, 1152, v3
    s_mul_i32 s62, s{sMT}, 147456
    s_add_u32 s63, s{sFL}, {O_Z - O_CNT}
    s_and_b32 s59, s{sMT}, 7
    v_lshrrev_b32 v5, 5, v0
    v_add_u32 v6, s59, v5
    v_bfe_u32 v7, v0, 2, 2
    v_lshlrev_b32 v7, 3, v7
    s_lshl_b32 s59, s{sW}, 5
    v_add_u32 v7, s59, v7
    """)
    for q in range(5):
        p(f"""
        v_add_u32 v8, {2 * q}, v6
        v_subrev_u32 v9, 9, v8
        v_min_u32 v8, v8, v9
        v_lshl_add_u32 v{58 + q}, v8, 7, v7
        """)
    p("v_lshl_add_u32 v62, v5, 31, v62")
    for q in range(5):
        p(f"buffer_load_dwordx2 {vr(116 + 2 * q, 2)}, v{58 + q}, {srd(SB2)}, 0 offen")
    p.extend(flat(poll_load(stages[0][0], sP0)))
    stamp(p, "e_setup")
    p("WAITVM P8\ns_barrier")
    p.extend(vsignal(8))
    stamp(p, "e_flag")
    p(f"""
    v_and_b32 v1, 1, v0
    v_lshlrev_b32 v1, 4, v1
    v_mov_b32 v2, 0x3f80
    v_lshlrev_b32 v1, v1, v2
    v_bfe_u32 v2, v0, 1, 3
    """)
    for i in range(8):
        p(f"v_cmp_eq_u32 s[{8 + 2 * (i % 4)}:{9 + 2 * (i % 4)}], {i}, v2")
        if i % 4 == 3:
            for k in range(4):
                p(f"v_cndmask_b32 v{48 + i - 3 + k}, 0, v1, s[{8 + 2 * k}:{9 + 2 * k}]")
    for q in range(5):
        p(f"v_add_u32 v{58 + q}, v63, v{58 + q}")

    def mf_f(r):
        q = r // 2
        for i in range(3):
            p(f"{MF} {vr(DF(q), 4)}, {vr(48 + 4 * (r % 2), 4)}, {FR(r, i)}, {'0' if i == 0 and r % 2 == 0 else vr(DF(q), 4)}")

    def mf_a(r):
        q = r // 2
        p(f"{MF} {vr(DA(q), 4)}, {vr(48 + 4 * (r % 2), 4)}, {vr(4 * r, 4, 'a')}, {'0' if r % 2 == 0 else vr(DA(q), 4)}")

    def fin(q):
        t = 8 + 4 * (q % 2)
        for i in range(2):
            p(f"v_lshlrev_b32 v{t + 2 * i}, 16, v{116 + 2 * q + i}\nv_and_b32 v{t + 2 * i + 1}, 0xffff0000, v{116 + 2 * q + i}")
        for i in (0, 2):
            p(f"v_pk_add_f32 {vr(t + i, 2)}, {vr(t + i, 2)}, {vr(DF(q) + i, 2)}")
        for i in (0, 2):
            p(f"v_pk_mul_f32 {vr(t + i, 2)}, {vr(t + i, 2)}, v[56:57] op_sel:[0,1]")
        for i in (0, 2):
            p(f"v_pk_fma_f32 {vr(t + i, 2)}, {vr(DA(q) + i, 2)}, v[56:57], {vr(t + i, 2)} op_sel_hi:[1,0,1]")
        p(f"v_cvt_pk_bf16_f32 v{16 + 2 * (q % 2)}, v{t}, v{t + 1}\nv_cvt_pk_bf16_f32 v{17 + 2 * (q % 2)}, v{t + 2}, v{t + 3}")
        p(f"buffer_store_dwordx2 {vr(16 + 2 * (q % 2), 2)}, v{58 + q}, {srd(SOUT)}, s62 offen")

    nf, na = nchk, 0
    for k, (t, kind) in enumerate(stages):
        p.extend(flat(poll_check(role, t, kind, [sP0, sP1][k % 2])))
        if k + 1 < len(stages):
            p.extend(flat(poll_load(stages[k + 1][0], [sP0, sP1][(k + 1) % 2])))
        p("s_barrier")
        if k >= len(stages) - 3:
            stamp(p, f"e_{kind}{t}")
        if "F" in kind:
            for r in range(nf, t + 1):
                p.extend(f_loads(r, FR))
            nf = t + 1
        if "A" in kind:
            if na == 0:
                p(f"buffer_load_dword v56, v4, {srd(SWS)}, s63 offen sc1")
            for r in range(na, t + 1):
                p.extend(a_load(r))
            na = t + 1
        if k == 0:
            for r in range(nin):
                mf_f(r)
    p("v_mul_f32 v56, 0xbfb8aa3b, v56\nv_exp_f32 v56, v56")
    for r in range(nin, 8):
        mf_f(r)
    p("v_add_f32 v56, 1.0, v56\nv_rcp_f32 v56, v56")
    for r in range(8):
        mf_a(r)
    p("v_sub_f32 v57, 1.0, v56")
    for q in range(4):
        fin(q)
    mf_f(8); mf_a(8)
    fin(4)
    stamp_out(p)
    p("s_endpgm")
    p.extend(stubs[role])


def role_ffn():
    p = P()
    XR = 98304
    p("L_ffn:")
    code_touch(p, "ffn", 38)
    p(f"""
    v_lshrrev_b32 v32, 3, v0
    v_and_b32 v33, 7, v0
    s_mul_i32 s59, s68, 9216
    s_add_u32 s59, s59, 2048
    v_and_b32 v35, 3, v32
    v_mul_u32_u24 v30, {32 * 9216}, v35
    v_lshl_add_u32 v30, v33, 7, v30
    v_add_u32 v35, 2, v33
    v_and_b32 v35, 8, v35
    v_and_or_b32 v35, v0, 32, v35
    v_min_u32 v35, 1, v35
    v_lshlrev_b32 v35, 31, v35
    v_add3_u32 v30, v30, v35, s59
    """)
    x_touch_addr(p, 31, 35)
    p(f"""
    s_mul_i32 s59, s{sW}, {32 * 1152}
    v_mul_u32_u24 v34, 1152, v32
    v_add_u32 v34, s59, v34
    v_lshrrev_b32 v35, 1, v32
    v_xor_b32 v35, v33, v35
    v_lshlrev_b32 v35, 4, v35
    v_add_u32 v1, v34, v35
    v_xor_b32 v35, 64, v35
    v_add_u32 v2, v34, v35
    v_add_u32 v2, 8192, v2
    v_add_u32 v3, 16384, v1
    v_add_u32 v4, 16384, v2
    s_and_b32 s69, s{sW}, 1
    s_lshl_b32 s59, s69, 2
    v_and_or_b32 v35, v32, 2, s59
    v_xor_b32 v35, v33, v35
    s_mul_i32 s59, s{sW}, {8 * 9216}
    s_add_u32 s59, s59, 2048
    v_mul_u32_u24 v36, 9216, v32
    v_lshl_add_u32 v36, v35, 4, v36
    v_add_u32 v5, s59, v36
    v_subrev_u32 v6, 896, v5
    v_subrev_u32 v7, 1792, v5
    v_lshlrev_b32 v{vL16}, 4, v0
    s_mul_i32 s62, s{sMT}, 147456
    s_mul_i32 s63, s{sSRC}, 768
    s_mul_i32 s64, s{sSRC}, {384 * 1152}
    s_lshl_b32 s65, s{sW}, 12
    s_mul_i32 s66, s{sW}, 6144
    s_mul_i32 s67, s{sW}, 3072
    """)
    srd_const(p, SX, 2048 * 1152)
    srd_const(p, SWA, 576 * 9216 + 2048)
    srd_const(p, SSM, 4608 * 2)
    srd_const(p, SWB, 4608 * 1152)
    srd_const(p, SWS, WS_SIZE)
    p(f"""
    v_and_b32 v35, 6, v32
    v_xor_b32 v35, v33, v35
    v_lshl_add_u32 v8, v35, 4, v34
    v_and_b32 v32, 3, v32
    v_and_b32 v33, 3, v0
    v_lshlrev_b32 v33, 3, v33
    v_lshrrev_b32 v34, 4, v0
    v_bfe_u32 v35, v0, 2, 2
    s_lshl_b32 s59, s69, 1
    v_xor_b32 v12, s59, v32
    v_lshl_add_u32 v12, v12, 5, v33
    v_lshl_add_u32 v12, v35, 7, v12
    v_mul_u32_u24 v13, 6144, v34
    s_lshr_b32 s59, s{sW}, 1
    s_lshl_b32 s59, s59, 10
    v_add3_u32 v12, v12, v13, s59
    v_xor_b32 v13, 32, v12
    v_add_u32 v14, 0x10000, v12
    v_add_u32 v15, 0x10000, v13
    v_xor_b32 v22, s{sW}, v32
    v_lshl_add_u32 v22, v22, 5, v33
    v_lshrrev_b32 v35, 2, v0
    v_lshl_add_u32 v22, v35, 7, v22
    v_and_b32 v32, 15, v0
    v_lshrrev_b32 v33, 1, v32
    v_xor_b32 v33, v33, v34
    v_lshlrev_b32 v33, 4, v33
    v_lshl_add_u32 v16, v32, 7, v33
    v_add_u32 v16, {XR}, v16
    v_xor_b32 v17, 64, v16
    s_mul_i32 s59, s{sW}, {4096 + 64}
    s_add_u32 s59, s59, {XR + 3 * 16384}
    v_lshl_add_u32 v39, v34, 3, s59
    """)
    p("WAITLGKM")
    stamp_begin(p, "ffn", 20)
    stamp(p, "karg", 2)
    srd_ptr(p, SWA, 12, 2048)
    srd_ptr(p, SX, 4)

    def dma4(base, soff, regs, sr, tag, half=None):
        o = [I(f"s_add_u32 m0, s65, {base}")] + soff
        for q in (range(4) if half is None else (2 * half, 2 * half + 1)):
            o.append(I(f"buffer_load_dwordx4 v{regs[q]}, {srd(sr)}, s60 offen offset:{1024 * q} lds", tag=tag))
        return o

    dma_x = lambda J, half=None: dma4(XR + (J % 4) * 16384, x_soff(J, "s62"), [1, 2, 3, 4], SX, f"R{J}", half)
    dma_w2 = lambda n, base: dma4(base, [I(f"s_add_u32 s60, s{sCH + n // 3}, {(n % 3) * 147456}")], [8, 9, 10, 11], SWB, f"U{n}")

    def dma_w1(j):
        o = w_block(j, 63, 9216)
        for h in range(2):
            o.append(I(f"s_add_u32 m0, s66, {(j % 4) * 24576 + h * 3072}"))
            o.append(I(f"s_add_u32 s60, s{sWB}, {(j % 2) * 32 * 9216 + h * 384}"))
            for q in range(3):
                o.append(I(f"buffer_load_dwordx4 v{5 + q}, {srd(SWA)}, s60 offen offset:{1024 * q} lds", tag=f"W{j}"))
        return o

    tw = lambda j: touch(30, SWA, 63, j * 32 * 9216)
    tx = lambda J: touch(31, SX, 62, J * 128)
    TW, TX = first_touches(p, tw, tx, "0xffff")
    p.extend(dma_x(0) + dma_w1(0))
    srd_ptr(p, SSM, 14)
    p(f"s_add_u32 m0, s65, {XR + 3 * 16384}")
    srd_ptr(p, SWB, 16)
    p(f"buffer_load_dwordx4 v{vL16}, {srd(SSM)}, s63 offen lds", tag="W0")
    if OPT["tfirst"] == 1:
        TW, TX = 0, 0
    else:
        p.extend(tw(TW) + tx(TX))
    srd_ptr(p, SWS, 26)
    d1 = dma_w1(1)
    p.extend(d1[:OPT["w1pre"]])
    stamp(p, "d0", 2)
    warm(p, "ffn")
    stamp(p, "warm", 2)
    p("s_branch L_ffn_body\nL_ffn_body:")
    p.extend(d1[OPT["w1pre"]:])
    stamp(p, "d1", 2)
    groups = []
    add_touches(groups, 1, TW, TX, tw, tx)
    for j in range(2, 18):
        if j == 2:
            groups.append((-1, dma_x(1)))
        elif j < 17:
            J = (j + 1) // 2
            groups.append((max(j - 5, 0 if J == 3 else -1), dma_x(J, (j + 1) % 2)))
        groups.append((j - 4, dma_w1(j)))
        add_touches(groups, j, TW, TX, tw, tx)
    groups.append((13, touch(31, SWB, 64, 1024, True)))
    xslot = lambda st: XR + (st % 4) * 16384
    uslot = {n: xslot(9 + n) for n in range(4)}
    groups += [(2 * n + 11, dma_w2(n, uslot[n])) for n in range(4)]

    trA = [Addr([12, 14]), Addr([13, 15])]
    xr = [Addr([16]), Addr([17])]
    hw = Addr([18, 19])
    hr = Addr([vL16, 21])
    trB = Addr([22, 1, 2])
    xf = lambda s, b: vr(32 * s + 4 * b, 4, "a")
    wf = lambda s, t: 64 + 24 * s + 4 * t
    acc = lambda t, b: 64 + 4 * (t * 8 + b)

    def reads(j):
        s = j % 2
        o = []
        for t in range(6):
            off = (j % 4) * 24576 + (t // 2) * 2048
            w = wf(s, t)
            o.append([I(f"ds_read_b64_tr_b16 {vr(w, 2, 'a')}, {trA[t % 2].at(off)}"),
                      I(f"ds_read_b64_tr_b16 {vr(w + 2, 2, 'a')}, {trA[t % 2].at(off + 512)}")])
        xs = [I(f"ds_read_b128 {xf(s, b)}, {xr[j % 2].at(((j // 2) % 4) * 16384 + b * 2048)}") for b in range(8)]
        return o[0] + xs + [y for x in o[1:] for y in x]

    p("WAITVM R0 W0")
    for t in range(6):
        p(f"ds_read_b64 {vr(244 + 2 * t, 2)}, v39 offset:{(t // 2) * 256 + (t % 2) * 32}")
    stamp(p, "land", 2)
    pro, paced = pace(groups, 18, OPT["cap"], 44, BG, OPT["npro"])
    p("s_barrier")
    p.extend(reads(0))
    p.extend(pro)
    for t in range(6):
        for i in range(2):
            p(f"v_lshlrev_b32 v{40 + 4 * t + 2 * i}, 16, v{244 + 2 * t + i}")
            p(f"v_and_b32 v{41 + 4 * t + 2 * i}, 0xffff0000, v{244 + 2 * t + i}")
    p("WAITLGKM")
    stamp(p, "A0")

    def epi(u, b, slot):
        o = []
        tmp = 32 + 4 * (slot % 4)
        for e in range(2):
            c = acc(2 * u + e, b)
            for i in range(4):
                o.append(I(f"v_mul_f32 v{c + i}, v{c + i}, |v{c + i}|"))
            for i in range(2):
                o.append(I(f"v_cvt_pk_bf16_f32 v{tmp + 2 * e + i}, v{c + 2 * i}, v{c + 2 * i + 1}"))
        for i in range(4):
            o.append(I(f"v_pk_max_i16 v{tmp + i}, v{tmp + i}, 0"))
        o.append(I(f"ds_write_b128 {hw.wr(u * 32768 + b * 1024, vr(tmp, 4))}"))
        return o

    hs = handoff_setup(64, 1)
    late = {7: hs[:27], 9: hs[27:46], 10: hs[46:],
            8: P()(f"""
            v_add_u32 v9, 8192, v8
            v_add_u32 v10, 16384, v8
            v_add_u32 v11, 24576, v8
            v_add_u32 v21, 0x10000, v{vL16}
            s_lshl_b32 s85, s{sW}, 13
            v_add_u32 v18, s85, v{vL16}
            v_add_u32 v19, 0x10000, v18
            """),
            12: P()(f"""
            s_mul_i32 s85, s68, {12 * 1152}
            v_min_u32 v31, 11, v0
            v_mul_u32_u24 v31, 1152, v31
            v_add_u32 v31, s85, v31
            """),
            11: code_touch2("ffn", 38),
            15: P()("v_add_u32 v1, 0x10000, v22\nv_add_u32 v2, 0x20000, v22")}
    assert not any(("v", 1) in x.reads or ("v", 2) in x.reads for j in (15, 16, 17) for _, x in paced[j])
    assert not any(("v", 31) in x.reads for _, x in paced[12])
    for j in range(18):
        s = j % 2
        last = j == 17
        order = [(t, b) for t in range(6) for b in range(8)]
        if last:
            order = [(2 * u + e, b) for u in range(3) for b in range(8) for e in range(2)]
        mf = [I(f"{MF} {vr(acc(t, b), 4)}, {vr(wf(s, t), 4, 'a')}, {xf(s, b)}, {vr(40 + 4 * t if j == 0 else acc(t, b), 4)}") for t, b in order]
        side = [(4, x) for x in late.get(j, [])]
        if last:
            n = 0
            for u in range(3):
                for b in range(8):
                    side += [(16 * u + 2 * b + 5, x) for x in epi(u, b, n)]
                    n += 1
        if j == 15:
            side = [(1, x) for x in poll_load("init")] + side
        if j == 16:
            side += [(4, x) for x in page_setup()]
        gemm_step(p, j, mf, f"W{j + 1} R{(j + 1) // 2}" if not last else "none", [] if last else reads(j + 1), paced[j], side)
        if j == 15:
            p.extend(flat(poll_check("ffn", "init", "init")))
        p("WAITLGKM")
        if j in (0, 1, 3, 8, 16):
            stamp(p, f"A{j + 1}", 2)
    stamp(p, "Aend")
    p("WAITVM U0\ns_barrier")

    def hreg(ks, b):
        n = ks * 8 + b
        return vr(4 * n, 4, "a") if n < 64 else vr(128 + 4 * (n - 64), 4)

    hrd = [I(f"ds_read_b128 {hreg(n // 8, n % 8)}, {hr.at(n * 1024)}") for n in range(96)]
    SL = OPT["slack"]
    chk_at = {3 * r + SL: r for r in range(9) if 3 * r + SL <= 26}
    assert SL > 3 + OPT["sig"]
    nchk = len(chk_at)
    nin = sum(1 for n in chk_at if n < 25)
    sig_at = {min(3 * t + 3 + OPT["sig"], 26): t for t in range(8)}
    units, hooks, free, fslot = [], [], [], {}
    issued = 4
    for n in range(27):
        u = dict(tile=n // 3, tag=f"U{n}", wtags=[], pre=[], dma=[])
        if n >= 1:
            free.append(uslot[n - 1])
        if n == 3:
            free += [16384 * i for i in range(6)]
        fd = []
        if n in sig_at:
            if not OPT["nosig"]:
                u["wtags"].append(f"P{sig_at[n]}")
            u["pre"] += signal(sig_at[n])
        if n in chk_at:
            r = chk_at[n]
            if not OPT["nochk"]:
                hooks += [(32 * n + 16 - OPT["pdist"], y) for y in poll_load(r)]
                u["chk"] = poll_check("ffn", r, "F")
            if r < nin:
                fslot[r] = free.pop(0)
                fd = [I(f"s_add_u32 m0, s67, {fslot[r]}")]
                for i in range(3):
                    fd += [I(f"s_add_u32 s60, s{PGS[r // 3]}, {((r % 3) * 16 + 4 * i) * SRCS - 1024 * i}"),
                           I(f"buffer_load_dwordx4 v{vCON}, {srd(SWS)}, s60 offen offset:{1024 * i} sc1 lds", tag="FD")]
        k = 0
        while issued < 27 and issued <= n + OPT["look"] and free and k < (1 if fd else 2):
            uslot[issued] = free.pop(0)
            u["dma"] += dma_w2(issued, uslot[issued])
            issued += 1
            k += 1
        assert issued >= min(27, n + 3)
        u["dma"] += fd
        units.append(u)
    for n, u in enumerate(units):
        u["ks"] = [(4 * (n % 3) + q, uslot[n] + q * 4096, 2048) for q in range(4)]
    phase_b(p, units, hreg, trB, hrd, OPT["stg"], hooks)
    stamp(p, "Bend")
    pre = P()(f"v_add_u32 v30, s67, v{vL16}\nv_add_u32 v31, 0x10000, v30\nv_add_u32 v21, 0x20000, v30\nWAITVM FD")
    for r in range(nin):
        for i in range(3):
            pre(f"ds_read_b128 {FRV(r, i)}, {Addr([30, 31, 21]).at(fslot[r] + i * 1024)}")
    end_phase(p, "ffn", FRV, nin, nchk, pre, [(5, "A")] + [(r, "F") for r in range(nchk, 7)] + [(7, "FA"), (8, "FA")])
    return p


def role_att():
    p = P()
    WSL, XR, XSL, GT, ZT = 28672, 114688, 20480, 155648, 162304
    EO, RO, OB = 64512, 20736, 4736
    WO = [129024, 64512, 84992, 41472, 105984]
    p("L_att:")
    code_touch(p, "att", 39)
    p(f"""
    s_sub_u32 s67, s{sSRC}, 12
    v_lshrrev_b32 v32, 3, v0
    v_and_b32 v33, 7, v0
    s_mul_i32 s59, s68, 3456
    s_add_u32 s59, s59, 2048
    v_lshrrev_b32 v35, 4, v0
    v_mul_u32_u24 v40, {32 * 3456}, v35
    v_bfe_u32 v35, v0, 2, 2
    v_and_b32 v36, 3, v0
    v_mul_u32_u24 v37, 1152, v35
    v_add3_u32 v40, v40, v37, s59
    v_lshl_add_u32 v40, v36, 7, v40
    v_max_u32 v35, v35, v36
    v_add_u32 v35, 1, v35
    v_lshrrev_b32 v35, 2, v35
    v_lshl_add_u32 v40, v35, 31, v40
    """)
    x_touch_addr(p, 41, 35)
    p(f"""
    s_mul_i32 s63, s{sMT}, 147456
    s_and_b32 s69, s{sW}, 1
    s_lshr_b32 s60, s{sW}, 1
    s_mul_i32 s59, s69, 64
    s_add_u32 s59, s59, s60
    s_mul_i32 s59, s59, 1152
    s_add_u32 s59, s59, s63
    v_lshrrev_b32 v35, 1, v32
    v_xor_b32 v35, v33, v35
    v_lshlrev_b32 v35, 4, v35
    v_mul_u32_u24 v34, 2304, v32
    v_add3_u32 v1, v34, v35, s59
    v_xor_b32 v36, 64, v35
    s_add_u32 s59, s59, {16 * 1152 - 1024}
    v_add3_u32 v2, v34, v36, s59
    v_add_u32 v3, {32 * 1152 - 2048}, v1
    v_add_u32 v4, {32 * 1152 - 2048}, v2
    s_sub_u32 s59, s{sW}, 16
    s_mul_i32 s59, s59, 1152
    s_add_u32 s59, s59, s63
    s_cmp_eq_u32 s{sMT}, 0
    s_cselect_b32 s62, 0, 2
    s_cmp_ge_u32 s{sW}, s62
    s_cselect_b32 s59, {OOB}, s59
    s_lshl_b32 s62, s69, 6
    v_xor_b32 v36, s62, v35
    v_add3_u32 v5, v34, v36, s59
    s_lshl_b32 s59, s69, 2
    v_and_or_b32 v38, v32, 2, s59
    v_xor_b32 v38, v33, v38
    s_mul_i32 s59, s{sW}, {8 * 3456}
    s_add_u32 s59, s59, 2048
    v_mul_u32_u24 v36, 3456, v32
    v_add_u32 v36, s59, v36
    v_lshl_add_u32 v6, v38, 4, v36
    v_subrev_u32 v7, 896, v6
    v_subrev_u32 v8, 1792, v6
    v_lshrrev_b32 v35, 1, v38
    v_mul_u32_u24 v37, 1152, v35
    v_add_u32 v35, 1, v35
    v_lshrrev_b32 v35, 2, v35
    v_lshl_add_u32 v36, v35, 31, v36
    v_and_b32 v35, 1, v38
    v_lshl_add_u32 v37, v35, 4, v37
    v_add_u32 v37, v37, v36
    v_subrev_u32 v9, {2048 - 256}, v37
    s_mul_i32 s64, s67, 288
    s_lshl_b32 s65, s{sW}, 12
    s_mul_i32 s66, s{sW}, 7168
    s_lshl_b32 s17, s{sW}, 10
    s_lshl_b32 s59, s{sW}, 6
    v_add_u32 v42, s59, v0
    v_lshlrev_b32 v43, 1, v42
    s_lshl_b32 s59, s{sG}, 7
    v_xor_b32 v44, s59, v43
    v_xor_b32 v45, 512, v44
    """.replace("s17", "s82"))
    srd_const(p, SX, 2048 * 1152)
    srd_const(p, SWA, 576 * 3456 + 2048)
    srd_const(p, SSM, 576 * 2)
    srd_const(p, SWB, 576 * 1152)
    srd_const(p, SWS, WS_SIZE)
    p("WAITLGKM")
    stamp_begin(p, "att", 47)
    stamp(p, "karg", 2)
    srd_ptr(p, SWA, 6, 2048)
    srd_ptr(p, SX, 4)

    def dma5(base, regs, sr, soff, tag):
        o = [I(f"s_add_u32 m0, s65, {base}")] + soff
        for q in range(4):
            o.append(I(f"buffer_load_dwordx4 v{regs[q]}, {srd(sr)}, s60 offen offset:{1024 * q} lds", tag=tag))
        o.append(I(f"s_add_u32 m0, s82, {base + 16384}"))
        o.append(I(f"buffer_load_dwordx4 v{regs[4]}, {srd(sr)}, s60 offen lds", tag=tag))
        return o

    dma_x = lambda J: dma5(XR + (J % 2) * XSL, [1, 2, 3, 4, 5], SX, x_soff(J, "0")[:2 if J < 8 else 1], f"R{J}")
    dma_wo = lambda t: dma5(WO[t % 5], [15, 16, 17, 18, 19], SWB, [I(f"s_mov_b32 s60, s{sCH + t}")], f"O{t}")

    def dma_w(j):
        tg = f"W{j}"
        o = w_block(j, 64, 3456) + [I(f"s_add_u32 m0, s66, {(j % 4) * WSL}"), I(f"s_add_u32 s60, s{sWB}, {(j % 2) * 32 * 3456}")]
        for q, r in enumerate([6, 7, 7, 8]):
            o.append(I(f"buffer_load_dwordx4 v{r}, {srd(SWA)}, s60 offen offset:{1024 * q} lds", tag=tg))
        o.append(I(f"s_add_u32 m0, s66, {(j % 4) * WSL + 4096}"))
        o.append(I(f"s_add_u32 s59, s{sWB}, {(j % 2) * 32 * 3456 + 2304}"))
        o.append(I(f"buffer_load_dwordx4 v9, {srd(SWA)}, s60 offen offset:2048 lds", tag=tg))
        o.append(I(f"buffer_load_dwordx4 v7, {srd(SWA)}, s59 offen offset:1024 lds", tag=tg))
        o.append(I(f"buffer_load_dwordx4 v6, {srd(SWA)}, s59 offen lds", tag=tg))
        return o

    tw = lambda j: touch(40, SWA, 64, j * 32 * 3456)
    tx = lambda J: touch(41, SX, 63, J * 128)
    TW, TX = first_touches(p, tw, tx, "0xffffffff")
    srd_ptr(p, SSM, 20)
    for i in range(3):
        p(f"buffer_load_ushort v{48 + 2 * i}, v{[44, 45, 43][i]}, {srd(SSM)}, 0 offen offset:{[0, 0, 1024][i]}")
    p.extend(dma_x(0) + dma_w(0))
    if OPT["tfirst"] == 1:
        TW, TX = 0, 0
    else:
        p.extend(tw(TW) + tx(TX))
    srd_ptr(p, SWB, 8)
    srd_ptr(p, SWS, 26)
    stamp(p, "d0", 2)
    p(f"""
    v_and_b32 v34, 3, v42
    v_lshlrev_b32 v34, 3, v34
    v_bfe_u32 v35, v42, 2, 1
    v_lshl_add_u32 v34, v35, 9, v34
    v_bfe_u32 v35, v42, 3, 4
    v_lshl_add_u32 v34, v35, 5, v34
    v_lshrrev_b32 v35, 7, v42
    v_lshl_add_u32 v34, v35, 10, v34
    v_add_u32 v43, {GT}, v34
    v_and_b32 v36, 3, v32
    v_and_b32 v37, 3, v0
    v_lshlrev_b32 v37, 3, v37
    v_lshrrev_b32 v34, 4, v0
    v_bfe_u32 v35, v0, 2, 2
    v_xor_b32 v36, s{sW}, v36
    v_lshl_add_u32 v36, v36, 5, v37
    v_lshl_add_u32 v36, v35, 7, v36
    v_mul_u32_u24 v10, 7168, v34
    v_add_u32 v10, v10, v36
    v_add_u32 v11, 0x10000, v10
    v_lshl_add_u32 v20, v34, 10, v36
    v_add_u32 v12, 6144, v10
    v_lshlrev_b32 v37, 5, v34
    v_lshl_add_u32 v37, v35, 3, v37
    v_add_u32 v37, {GT}, v37
    s_cmp_eq_u32 s{sW}, 3
    s_cselect_b64 vcc, -1, 0
    s_mov_b32 s62, {WSL}
    s_mov_b32 s83, {-3 * WSL}
    s_cselect_b32 s62, 128, s62
    s_cselect_b32 s83, 640, s83
    v_cndmask_b32 v12, v12, v37, vcc
    v_and_b32 v36, 15, v0
    v_lshrrev_b32 v37, 1, v36
    v_xor_b32 v37, v37, v34
    v_lshlrev_b32 v37, 4, v37
    v_lshl_add_u32 v13, v36, 7, v37
    v_add_u32 v13, {XR}, v13
    v_xor_b32 v14, 64, v13
    s_mul_i32 s68, s67, {144 * 1152}
    """)
    warm(p, "att")
    stamp(p, "warm", 2)
    p("s_branch L_att_body\nL_att_body:")
    for i in range(3):
        p(f"v_lshl_or_b32 v{48 + 2 * i}, v{48 + 2 * i}, 16, v{48 + 2 * i}\nv_mov_b32 v{49 + 2 * i}, v{48 + 2 * i}")
        p(f"ds_write_b64 v43, {vr(48 + 2 * i, 2)} offset:{2048 * i}")
    p.extend(dma_w(1))
    groups = []
    add_touches(groups, 1, TW, TX, tw, tx)
    for j in range(2, 18):
        if j == 2:
            groups.append((-1, dma_x(1)))
        if j == 4:
            groups.append((1, dma_x(2)))
        if j % 2 == 1 and j >= 7:
            groups.append((j - 4, dma_x((j - 1) // 2)))
        groups.append((j - 4, dma_w(j)))
        add_touches(groups, j, TW, TX, tw, tx)
    groups.append((17, dma_wo(0)))
    trA = Addr([10, 11])
    xr = [Addr([13]), Addr([14])]
    xf = lambda s, b: vr(36 * s + 4 * b, 4, "a")
    wf = lambda s, t: 72 + 28 * s + 4 * t
    nb = [8, 8, 9, 9, 9, 9, 9]
    accbase = [48, 80, 112, 148, 184, 220]
    acc = lambda t, b: vr(accbase[t] + 4 * b, 4) if t < 6 else vr(128 + 4 * b, 4, "a")

    def reads(j):
        s = j % 2
        o = []
        for t in range(7):
            w = wf(s, t)
            if t < 6:
                off = (j % 4) * WSL + t * 1024
                a0, a1 = trA.at(off), trA.at(off + 512)
            else:
                a0, a1 = "v12", "v12 offset:512"
            o.append([I(f"ds_read_b64_tr_b16 {vr(w, 2, 'a')}, {a0}"), I(f"ds_read_b64_tr_b16 {vr(w + 2, 2, 'a')}, {a1}")])
        o[6].append(I(f"v_add_u32 v12, s{83 if j % 4 == 3 else 62}, v12"))
        xs = [I(f"ds_read_b128 {xf(s, b)}, {xr[j % 2].at(((j // 2) % 2) * XSL + b * 2048)}") for b in range(9)]
        return o[0] + xs + [y for x in o[1:] for y in x]

    p("WAITVM R0 W0\nWAITLGKM")
    stamp(p, "land", 2)
    pro, paced = pace(groups, 18, OPT["capa"], 56, BG, OPT["nproa"])
    p("s_barrier")
    p.extend(reads(0))
    p.extend(pro)
    p("WAITLGKM")
    stamp(p, "A0")

    hs = handoff_setup(68, 0x100)
    ci_a, race, pub = counter_init(42)
    wo_addr = P()(f"""
    s_mul_i32 s85, s{sW}, {36 * 1152}
    v_mul_u32_u24 v34, 1152, v32
    v_add_u32 v34, s85, v34
    v_and_b32 v35, 2, v32
    v_xor_b32 v35, v33, v35
    v_lshlrev_b32 v35, 4, v35
    v_add_u32 v15, v34, v35
    v_xor_b32 v35, 64, v35
    v_add_u32 v16, v34, v35
    v_add_u32 v16, 8192, v16
    v_add_u32 v17, 16384, v15
    v_add_u32 v18, 16384, v16
    v_lshrrev_b32 v34, 2, v32
    v_lshl_add_u32 v34, v34, 5, v32
    s_mul_i32 s85, s{sW}, 72
    v_add3_u32 v34, v34, s85, 32
    v_mul_u32_u24 v34, 1152, v34
    v_lshl_add_u32 v34, v38, 4, v34
    s_lshl_b32 s85, s{sW}, 30
    s_and_b32 s85, s85, {OOB}
    v_add_u32 v19, s85, v34
    v_add_u32 v21, 0x10000, v20
    v_add_u32 v22, 0x20000, v20
    """)
    ep_addr = P()(f"""
    v_and_b32 v40, 15, v0
    v_lshrrev_b32 v41, 4, v0
    v_mul_u32_u24 v30, 576, v41
    v_lshl_add_u32 v30, v40, 3, v30
    s_mul_i32 s85, s{sW}, 2304
    v_add_u32 v30, s85, v30
    v_add_u32 v31, {EO}, v30
    v_lshrrev_b32 v42, 3, v40
    v_mul_u32_u24 v42, {EO - 64}, v42
    v_add_u32 v32, v30, v42
    s_lshl_b32 s85, s{sW}, 3
    s_add_u32 s85, s85, 8
    s_min_u32 s85, s85, 24
    s_mul_i32 s85, s85, 2304
    v_add_u32 v33, s85, v30
    v_add_u32 v34, s85, v31
    v_add_u32 v35, s85, v32
    s_mul_i32 s85, s{sW}, {9 * 576}
    v_lshl_add_u32 v36, v0, 3, s85
    v_add_u32 v37, {EO}, v36
    v_and_b32 v42, 3, v0
    v_lshl_add_u32 v42, v41, 2, v42
    v_bfe_u32 v43, v0, 2, 2
    v_lshl_add_u32 v42, v42, 2, v43
    v_lshl_add_u32 v38, v42, 3, s85
    v_add_u32 v39, {EO}, v38
    s_add_u32 s85, s{sW}, 1
    s_and_b32 s85, s85, 4
    s_lshl_b32 s85, s85, 7
    s_sub_u32 s85, {ZT + 512}, s85
    v_lshl_add_u32 v46, v40, 3, s85
    s_lshl_b32 s85, s{sMT}, 6
    v_add_u32 v42, s85, v0
    v_mov_b32 v43, {hex(f2u(-2.0 ** 100))}
    v_cmp_gt_u32 s[8:9], 8, v42
    v_cmp_gt_u32 s[10:11], 4, v42
    """)
    for i in range(8):
        ep_addr(f"v_cndmask_b32 v{2 + i}, 0, v43, s[{8 + 2 * (i // 4)}:{9 + 2 * (i // 4)}]")

    def epi(t, b, n):
        tmp = 40 + 2 * (n % 3)
        o = []
        if t < 6:
            c = accbase[t] + 4 * b
            base, off = 30, (9 * (t // 2) + 4 * (t % 2)) * 2304
        else:
            c = 48 + 4 * b
            base, off = 33, 0
            if b < 8:
                o.append(I(f"ds_write_b32 v46, a{128 + 4 * b} offset:{128 * (b % 4) + 4 * (b // 4)}"))
            o += [I(f"v_accvgpr_read_b32 v{c + i}, a{128 + 4 * b + i}") for i in range(4)]
        o += [I(f"v_cvt_pk_bf16_f32 v{tmp}, v{c}, v{c + 1}"), I(f"v_cvt_pk_bf16_f32 v{tmp + 1}, v{c + 2}, v{c + 3}")]
        o.append(I(f"ds_write_b64 v{base + b // 4}, {vr(tmp, 2)} offset:{off + (128 * (b % 4) + 64 if b < 8 else 0)}"))
        return o

    late = {1: hs[27:46], 2: ci_a, 3: hs[46:], 10: hs[:27], 12: wo_addr, 13: code_touch2("att", 39), 15: ep_addr}
    assert not paced[15] and not paced[16]
    for j in range(18):
        s = j % 2
        last = j == 17
        mf, ends = [], []
        for t in range(7):
            for b in range(nb[t]):
                mf.append(I(f"{MF} {acc(t, b)}, {vr(wf(s, t), 4, 'a')}, {xf(s, b)}, {'0' if j == 0 else acc(t, b)}"))
                ends.append((t, b))
        tags = f"W{j + 1} R{(j + 1) // 2}" if not last else "none"
        if j == 4:
            tags += " FI"
        side = [(4, x) for x in late.get(j, [])]
        first = []
        hi = []
        if j == 4:
            hi = race(1)[:1]
        if 5 <= j < 5 + OPT["nrace"]:
            hi = race(j - 5)
        if j == 5 + OPT["nrace"]:
            side = [(2, x) for x in pub] + side
        if j == 14:
            side += [(1, x) for x in poll_load("init")]
        if j == 16:
            side += [(4, x) for x in page_setup()]
        if last:
            for n, (t, b) in enumerate(ends):
                side += [(n + 4, x) for x in epi(t, b, n)]
        gemm_step(p, j, mf, tags, [] if last else reads(j + 1), paced[j], side, first, hi)
        if j == 14:
            p.extend(flat(poll_check("att", "init", "init")))
        if not last:
            p("WAITLGKM")
        if j in (0, 1, 3, 8, 16):
            stamp(p, f"A{j + 1}", 2)
    stamp(p, "Aend")
    AR = [int(x) for x in str(OPT["ar"]).split(",")]
    FRA = lambda r, i: vr(164 + 12 * r + 4 * i, 4, "a") if r < 7 else FRV(r, i)
    if AR[0] >= 0:
        p.extend(flat(poll_load(AR[0])))
    p("WAITLGKM\ns_barrier")
    stamp(p, "join", 2)

    S = lambda u, z: 48 + 12 * u + 4 * z
    grp = [(e, lq) for e in range(2) for lq in range(9)]

    def kq_rd(gi):
        e, lq = grp[gi]
        kb = 112 + 8 * (gi % 4)
        o = [I(f"ds_read_b64 {vr(kb + 2 * z, 2)}, v{36 + e} offset:{RO + lq * 576 + 32 * z}") for z in range(3)]
        if lq == 4:
            o += [I(f"ds_read_b32 v{144 + 4 * e}, v{36 + e} offset:{lq * 576 + 64}"),
                  I(f"ds_read_b32 v{147 + 4 * e}, v{36 + e} offset:{lq * 576 + 68}")]
        else:
            o.append(I(f"ds_read_b64 {vr(kb + 6, 2)}, v{36 + e} offset:{lq * 576 + 64}"))
        return o

    p.extend(kq_rd(0) + kq_rd(1) + kq_rd(2))
    p(f"v_lshlrev_b32 v1, 3, v0\nv_add_u32 v96, {ZT}, v1\nds_read_b64 v[96:97], v96")
    misc = P()(f"""
    v_mov_b32 v145, 0
    v_mov_b32 v146, 0
    v_mov_b32 v149, 0
    v_mov_b32 v150, 0
    s_min_u32 s59, s{sW}, 1
    s_lshl_b32 s59, s59, 31
    v_add_u32 v1, s59, v1
    s_lshl_b32 s59, s67, 9
    s_add_u32 s59, s59, s{sFL}
    s_add_u32 s59, s59, {O_Z - O_CNT}
    buffer_store_dwordx2 v[96:97], v1, {srd(SWS)}, s59 offen sc1
    v_lshrrev_b32 v98, 3, v0
    v_mul_u32_u24 v98, {OB}, v98
    v_and_b32 v99, 7, v0
    v_mul_u32_u24 v99, 288, v99
    s_lshl_b32 s59, s{sW}, 6
    v_add3_u32 v10, v98, v99, s59
    s_lshl_b32 s59, s{sW}, 3
    v_add3_u32 v11, v98, v99, s59
    v_bfe_u32 v98, v0, 1, 3
    v_mul_u32_u24 v98, 288, v98
    v_and_b32 v99, 1, v0
    v_mul_u32_u24 v99, 2432, v99
    v_add_u32 v98, v98, v99
    v_lshrrev_b32 v99, 4, v0
    v_lshl_add_u32 v13, v99, 4, v98
    v_and_b32 v99, 1, v99
    v_lshl_add_u32 v14, v99, 4, v98
    s_mov_b32 s8, 0x11111111
    s_mov_b32 s9, s8
    s_mov_b32 s10, 0x33333333
    s_mov_b32 s11, s10
    s_mov_b32 s12, 0x77777777
    s_mov_b32 s13, s12
    v_mov_b32 v98, 0xffff0000
    v_mov_b32 v99, 0xffff
    v_cndmask_b32 v100, 0, v98, s[8:9]
    v_cndmask_b32 v101, 0, v99, s[10:11]
    v_cndmask_b32 v98, 0, v98, s[12:13]
    v_or_b32 v101, v101, v98
    s_mov_b32 s14, {hex(f2u((18 ** -0.5) * 1.4426950408889634))}
    s_mov_b32 s15, s14
    """)
    for gi, (e, lq) in enumerate(grp):
        kb = 112 + 8 * (gi % 4)
        nx = kq_rd(gi + 3) if gi + 3 < 18 else []
        for hh in ([0] if lq < 4 else [0, 1] if lq == 4 else [1]):
            u = 2 * e + hh
            q = vr(144 + 4 * e + 2 * hh, 2) if lq == 4 else vr(kb + 6, 2)
            for z in range(3):
                c = vr(S(u, z), 4) if lq != 4 * hh else ["v[2:5]", "v[6:9]", "0"][z]
                p(f"{MF4} {vr(S(u, z), 4)}, {vr(kb + 2 * z, 2)}, {q}, {c}")
                if nx:
                    p.append(nx.pop(0))
                if misc:
                    p.append(misc.pop(0))
        p.extend(nx)
    p.extend(misc)
    stamp(p, "qk", 2)
    if AR[0] >= 0:
        p.extend(flat(poll_check("att", AR[0], "F")))
    p("s_barrier")

    def v_rd(lq):
        vb = 112 + 12 * (lq % 3)
        return [I(f"ds_read_b64_tr_b16 {vr(vb + 6 * e + 2 * z, 2)}, v{38 + e} offset:{2 * RO + lq * 576 + 32 * z}")
                for z in range(3) for e in range(2)]

    p.extend(v_rd(0) + v_rd(1))
    sm = P()
    B = lambda u: S(u, 0)
    U4 = range(4)
    for r in (1, 2, 3):
        for u in U4:
            sm(f"v_cndmask_b32 v{B(u) + 8 + r}, v{B(u) + 8 + r}, v{B(u) + r}, s[{6 + 2 * r}:{7 + 2 * r}]")
    for u in U4:
        sm(f"v_max3_f32 v{B(u)}, v{B(u) + 4}, v{B(u) + 5}, v{B(u) + 6}")
    for k in (7, 9):
        for u in U4:
            sm(f"v_max3_f32 v{B(u)}, v{B(u)}, v{B(u) + k}, v{B(u) + k + 1}")
    for u in U4:
        sm(f"v_max_f32 v{B(u)}, v{B(u)}, v{B(u) + 11}")
    for u in U4:
        sm(f"v_mul_f32 v{B(u)}, s14, v{B(u)}")
    for u in U4:
        for k in (4, 6, 8, 10):
            sm(f"v_pk_fma_f32 {vr(B(u) + k, 2)}, {vr(B(u) + k, 2)}, s[14:15], {vr(B(u), 2)} op_sel_hi:[1,1,0] neg_lo:[0,0,1] neg_hi:[0,0,1]")
    for u in U4:
        for k in range(4, 12):
            sm(f"v_exp_f32 v{B(u) + k}, v{B(u) + k}")
    for u in U4:
        sm(f"v_pk_add_f32 {vr(B(u), 2)}, {vr(B(u) + 4, 2)}, {vr(B(u) + 6, 2)}")
        sm(f"v_pk_add_f32 {vr(B(u) + 2, 2)}, {vr(B(u) + 8, 2)}, {vr(B(u) + 10, 2)}")
    for u in U4:
        sm(f"v_pk_add_f32 {vr(B(u), 2)}, {vr(B(u), 2)}, {vr(B(u) + 2, 2)}")
    for u in U4:
        sm(f"v_add_f32 v{B(u)}, v{B(u)}, v{B(u) + 1}")
    for u in U4:
        sm(f"v_rcp_f32 v{B(u)}, v{B(u)}")
    for u in U4:
        for k in (4, 6, 8, 10):
            sm(f"v_pk_mul_f32 {vr(B(u) + k, 2)}, {vr(B(u) + k, 2)}, {vr(B(u), 2)} op_sel_hi:[1,0]")
    for u in U4:
        for k in (4, 8):
            sm(f"v_cvt_pk_bf16_f32 v{B(u) + k}, v{B(u) + k}, v{B(u) + k + 1}")
            sm(f"v_cvt_pk_bf16_f32 v{B(u) + k + 1}, v{B(u) + k + 2}, v{B(u) + k + 3}")
    for u in U4:
        for i in range(2):
            sm(f"v_and_b32 v{B(u) + i}, v{100 + i}, v{B(u) + 8 + i}")
            sm(f"v_bfi_b32 v{B(u) + 8 + i}, v{100 + i}, 0, v{B(u) + 8 + i}")
    vmq = dma_wo(1) + dma_wo(2) + [y for r in range(AR[0] + 1) for y in f_loads(r, FRA)]
    nv = sum(1 for x in vmq if x.kind in VM)
    step = max(1, len(sm) // (nv + 1))
    for i, x in enumerate(sm):
        p.append(x)
        if i % step == step - 1:
            while vmq:
                y = vmq.pop(0)
                p.append(y)
                if y.kind in VM:
                    break
    p.extend(vmq)
    if AR[1] > AR[0]:
        p.extend(flat(poll_load(AR[1])))
    stamp(p, "smax", 2)
    po = lambda e, d: 192 + 20 * e + d
    pend = []
    for lq in range(9):
        vb = 112 + 12 * (lq % 3)
        nx = v_rd(lq + 2) if lq + 2 < 9 else []
        hhs = [0] if lq < 4 else [0, 1] if lq == 4 else [1]
        D = lambda e, hh: (152 + 8 * (lq % 2) if hh == hhs[0] else 168) + 4 * e
        for z in range(3):
            for hh in hhs:
                for e in range(2):
                    p(f"{MF4} {vr(D(e, hh), 4)}, {vr(vb + 6 * e + 2 * z, 2)}, {vr(S(2 * e + hh, z), 2)}, {vr(D(e, hh), 4) if z else '0'}")
                    if nx:
                        p.append(nx.pop(0))
                    if z >= 1 and pend:
                        p.append(pend.pop(0))
        p.extend(pend)
        pend = []
        for e in range(2):
            pend.append(I(f"v_cvt_pk_bf16_f32 v{po(e, 2 * lq)}, v{D(e, hhs[0])}, v{D(e, hhs[0]) + 1}"))
            pend.append(I(f"v_cvt_pk_bf16_f32 v{po(e, 2 * lq + 1)}, v{D(e, hhs[-1]) + 2}, v{D(e, hhs[-1]) + 3}"))
        if lq % 2 == 1:
            pend += [I(f"ds_write_b128 v10, {vr(po(e, 2 * lq - 2), 4)} offset:{e * 2432 + 8 * (lq - 1)}") for e in range(2)]
        if lq == 8:
            pend += [I(f"ds_write_b64 v11, {vr(po(e, 16), 2)} offset:{e * 2432 + 256}") for e in range(2)]
    p.extend(pend)
    stamp(p, "core")
    if OPT["stamp"]:
        p("v_mov_b32 v30, v47")
        cur["vst"] = 30
    if AR[1] > AR[0]:
        p.extend(flat(poll_check("att", AR[1], "F")))
    p("WAITVM O0\nWAITLGKM\ns_barrier")
    oreg = lambda ks, b: vr(4 * (ks * 8 + b), 4, "a")
    ord_ = [I(f"ds_read_b128 {oreg(ks, b)}, v{13 if ks < 4 else 14} offset:{b * OB + 64 * ks}") for ks in range(5) for b in range(8)]
    units, hooks = [], []
    rounds = {3: (AR[1] + 1, AR[2]), 6: (AR[2] + 1, AR[3])}
    for t in range(9):
        u = dict(tile=t, tag=f"O{t}", wtags=[], pre=[], dma=[], ks=[(q, WO[t % 5] + q * 4096, 512) for q in range(5)])
        if t == 0:
            u["dma"] += dma_wo(3)
        if t + 4 < 9:
            u["dma"] += dma_wo(t + 4)
        if t == 1:
            u["dma"] += [y for r in range(AR[0] + 1, AR[1] + 1) for y in f_loads(r, FRA)]
        if t == 8:
            u["wtags"].append("P5")
            u["pre"] += signal(5)
        if t in rounds and rounds[t][1] >= rounds[t][0]:
            r0, r1 = rounds[t]
            hooks += [(40 * t + 24 - OPT["pdist"], y) for y in poll_load(r1)]
            u["chk"] = poll_check("att", r1, "F")
            u["dma"] += [y for r in range(r0, r1 + 1) for y in f_loads(r, FRA)]
        units.append(u)
    phase_b(p, units, oreg, Addr([20, 21, 22]), ord_, OPT["stga"], hooks)
    stamp(p, "Bend")
    pre = P()("WAITVM P7\ns_barrier")
    pre.extend(flat(signal(7)))
    end_phase(p, "att", FRA, AR[3] + 1, AR[3] + 1, pre,
              [(5, "A")] + [(r, "F") for r in range(AR[3] + 1, 6)] + [(7, "A"), (6, "F"), (7, "F"), (8, "FA")])
    return p


def head():
    p = P()
    p("s_cmp_ge_u32 s2, 256\ns_cbranch_scc1 L_exit")
    p("s_load_dwordx16 s[4:19], s[0:1], 0\ns_load_dwordx8 s[20:27], s[0:1], 64")
    if OPT["stamp"]:
        p("s_memrealtime s[86:87]\ns_memtime s[88:89]")
    cross = f"s_lshr_b32 s59, s2, 2\ns_xor_b32 s59, s59, s2\ns_and_b32 s59, s59, 1\n"
    inner = f"s_lshr_b32 s60, s2, 3\ns_xor_b32 s60, s60, s2\ns_bfe_u32 s60, s60, 0x10003\n"
    inner2 = f"s_lshr_b32 s60, s2, 3\ns_xor_b32 s60, s60, s2\ns_bfe_u32 s60, s60, 0x20003\n"
    rot = {0: f"s_mov_b32 s{sG}, 0",
           1: cross + f"s_mov_b32 s{sG}, s59",
           2: cross + inner + f"s_lshl1_add_u32 s{sG}, s60, s59",
           3: cross + inner + f"s_lshl1_add_u32 s{sG}, s59, s60",
           4: inner + f"s_mov_b32 s{sG}, s60",
           5: cross + inner2 + f"s_lshl1_add_u32 s{sG}, s60, s59",
           6: cross + f"s_lshl_b32 s{sG}, s59, 1"}[OPT["rotg"]]
    p(f"""
    v_lshrrev_b32 v1, 6, v0
    v_and_b32 v0, 63, v0
    v_readfirstlane_b32 s{sW}, v1
    s_bfe_u32 s59, s2, 0x10002
    s_lshl_b32 s59, s59, 3
    s_bfe_u32 s{sMT}, s2, 0x30003
    s_add_u32 s{sMT}, s{sMT}, s59
    @ROT
    s_and_b32 s59, s2, 3
    s_add_u32 s{sSRC}, s59, 12
    s_lshr_b32 s60, s2, 6
    s_cbranch_scc0 L_att
    s_mul_i32 s{sSRC}, s59, 3
    s_add_u32 s{sSRC}, s{sSRC}, s60
    s_sub_u32 s{sSRC}, s{sSRC}, 1
    """.replace("@ROT", rot))
    return p


def desc(name, nv, acc):
    return f""".amdhsa_kernel {name}
  .amdhsa_next_free_vgpr {nv}
  .amdhsa_next_free_sgpr 102
  .amdhsa_accum_offset {acc}
  .amdhsa_group_segment_fixed_size 0
  .amdhsa_kernarg_size 96
  .amdhsa_user_sgpr_count 2
  .amdhsa_user_sgpr_kernarg_segment_ptr 1
  .amdhsa_system_sgpr_workgroup_id_x 1
.end_amdhsa_kernel"""


def main():
    fin = Finalizer(OPT["age"])
    hd = head()
    parts = {}
    for role, fn in (("att", role_att), ("ffn", role_ffn)):
        code = fin.run(hd + fn())
        i0 = next(i for i, x in enumerate(code) if x.text == f"L_{role}:")
        i1 = next(i for i, x in enumerate(code) if x.text == f"L_{role}_body:")
        body, npad, nb, st = layout(code[i1:], 0, f"L_{role}_pad" if OPT["warm"] else None, 4, f"L_{role}_ret", OPT["align"])
        pro = [I(x.text.replace(f"@LASTPAGE_{role}", str((nb - 1) // 4096))) for x in code[i0:i1]]
        parts[role] = (code[:i0], pro, body)
        sys.stderr.write(f"{role}: {len(code)} ins {fin.stats} body {nb} B pads {npad} {st} prologue {sum(inst_sizes(pro))} B\n")
    ref = open(f"cdna_kernels/{NAME}.s.ref").read().split("\n")
    hdr = [l for l in ref if l.startswith(";") and "@launch" not in l]
    if OPT["stamp"]:
        hdr += [f"; stamps {r} " + " ".join(n) for r, n in stnames.items()]
    o = hdr + ["; @launch grid=(256,1,1) block=(256,1,1) lds=163840",
               '.amdgcn_target "amdgcn-amd-amdhsa--gfx950"', ".text",
               f".globl {NAME}_kernel", ".p2align 12", ".p2align 8", f".type {NAME}_kernel,@function", f"{NAME}_kernel:",
               text_of(parts["ffn"][0]), text_of(parts["ffn"][1]), text_of(parts["att"][1]), "L_exit:", "    s_endpgm",
               ".p2align 12", text_of(parts["ffn"][2]), ".p2align 12", text_of(parts["att"][2]), ".p2align 12",
               '.section .rodata,"a"', ".p2align 6", desc(f"{NAME}_kernel", 512, 256)]
    txt = "\n".join(o)
    if OPT["dflav"]:
        import re
        txt = re.sub(r"(s\[(?:28:31|32:35)\].*) lds$", lambda m: m.group(1) + " " + OPT["dflav"].replace("+", " ") + " lds", txt, flags=re.M)
    print(txt)


main()
```

```python
import re

REG_RE = re.compile(r"^(-?\|?)([vas])(\d+)\|?$")
RNG_RE = re.compile(r"^(-?\|?)([vas])\[(\d+):(\d+)\]\|?$")
TRANS = ("v_exp_f32", "v_log_f32", "v_rcp_f32", "v_rsq_f32", "v_sqrt_f32", "v_sin_f32", "v_cos_f32")


def regs_of(tok):
    tok = tok.strip()
    m = REG_RE.match(tok)
    if m:
        return [(m.group(2), int(m.group(3)))]
    m = RNG_RE.match(tok)
    if m:
        return [(m.group(2), i) for i in range(int(m.group(3)), int(m.group(4)) + 1)]
    if tok in ("vcc", "vcc_lo", "vcc_hi"):
        return [("s", "vcc")]
    if tok == "m0":
        return [("s", "m0")]
    if tok == "exec":
        return [("s", "exec")]
    return []


def vr(n, k=1, t="v"):
    return f"{t}{n}" if k == 1 else f"{t}[{n}:{n + k - 1}]"


class Ins:
    def __init__(self, text, tag=None, cost=None):
        self.text = text
        self.tag = tag
        self.op = text.split()[0] if text else ""
        self.reads, self.writes = set(), set()
        self.srcc = set()
        self.srcab = set()
        self.kind = "other"
        self.deps = []
        self.after = []
        self._parse()
        self.cost = cost if cost is not None else self._cost()

    def _parse(self):
        op = self.op
        if op.endswith(":") or op.startswith(".") or op.startswith(";"):
            self.kind = "label" if op.endswith(":") else "dir"
            return
        if op in ("WAITVM", "WAITLGKM", "WAITLG", "RESET", "KEEP"):
            self.kind = "pseudo"
            return
        rest = re.sub(r"\s\w+:\[[^\]]*\]", "", self.text[len(op):])
        toks = [t.strip() for t in rest.split(",")]
        last = toks[-1].split()
        mods = last[1:] if last else []
        if last:
            toks[-1] = last[0]
        self.mods = mods
        R = [regs_of(t) for t in toks]
        flat = lambda L: set(x for l in L for x in l)
        if op.startswith("v_mfma"):
            self.kind = "mfma"
            self.writes = set(R[0]); self.srcab = set(R[1]) | set(R[2]); self.srcc = set(R[3])
            self.reads = self.srcab | self.srcc
            self.passes = 2 if "4x4x4" in op else 4 if "16x16" in op else 8
        elif op.startswith("ds_read") or op.startswith("ds_bpermute") or op.startswith("ds_swizzle"):
            self.kind = "dsr"; self.writes = set(R[0]); self.reads = flat(R[1:])
        elif op.startswith("ds_write"):
            self.kind = "dsw"; self.reads = flat(R)
        elif op.startswith("buffer_load") or op.startswith("global_load"):
            if "lds" in mods or "_lds_" in op:
                self.kind = "dma"; self.reads = flat(R) | {("s", "m0")}
            else:
                self.kind = "vload"; self.writes = set(R[0]); self.reads = flat(R[1:])
        elif op.startswith("buffer_store") or op.startswith("global_store"):
            self.kind = "vstore"; self.reads = flat(R)
            self.data = set(R[0]) if op.startswith("buffer") else set(R[1])
        elif op.startswith("buffer_atomic") or op.startswith("global_atomic"):
            self.kind = "vstore"; self.reads = flat(R); self.data = set()
            if "sc0" in mods:
                self.kind = "vload"; self.writes = set(R[0])
        elif op in ("buffer_wbl2", "buffer_inv"):
            self.kind = "vstore"; self.data = set()
        elif op.startswith("s_load") or op in ("s_memtime", "s_memrealtime"):
            self.kind = "smem"; self.writes = set(R[0]); self.reads = flat(R[1:])
        elif op.startswith("s_atomic"):
            self.kind = "salu"; self.reads = flat(R)
        elif op.startswith("s_waitcnt"):
            self.kind = "wait"
        elif op == "s_nop":
            self.kind = "nop"; self.n = int(toks[0])
        elif op == "s_barrier":
            self.kind = "barrier"
        elif op.startswith("s_cbranch") or op in ("s_branch", "s_setpc_b64", "s_endpgm", "s_swappc_b64"):
            self.kind = "branch"; self.reads = flat(R)
        elif op.startswith("s_cmp") or op.startswith("s_bitcmp") or op in ("s_setprio", "s_sleep"):
            self.kind = "salu"; self.reads = flat(R)
        elif op.startswith("s_"):
            self.kind = "salu"; self.writes = set(R[0]); self.reads = flat(R[1:])
            if "saveexec" in op:
                self.writes.add(("s", "exec"))
        elif op.startswith("v_"):
            self.kind = "valu"
            self.writes = set(R[0]); self.reads = flat(R[1:])
            if op.startswith("v_permlane") and "swap" in op:
                self.writes = flat(R); self.reads = flat(R)
            if op.startswith("v_fmac") or op.startswith("v_dot2c"):
                self.reads |= set(R[0])
            if op.startswith("v_add_co") or op.startswith("v_sub_co") or op.startswith("v_addc_co"):
                self.writes |= set(R[1])
            if op.startswith("v_dot2"):
                self.srcc = set(R[3]) if len(R) > 3 else set(R[0])
                self.srcab = set(R[1]) | set(R[2])
        else:
            raise ValueError("unknown instruction: " + self.text)

    def _cost(self):
        k = self.kind
        if k in ("dma", "vload"):
            return 2
        if k == "vstore":
            return 2
        if k == "dsw":
            return 2 if "b128" in self.op else 1
        if k == "valu" and self.op.startswith(TRANS):
            return 2
        if k in ("label", "dir"):
            return 0
        return 1

    def states(self):
        if self.kind == "nop":
            return self.n + 1
        if self.kind in ("label", "dir", "pseudo"):
            return 0
        return 1


def I(text, tag=None, cost=None):
    return Ins(text, tag, cost)


def is_v(r):
    return r[0] in ("v", "a")


def need_states(p, c):
    n = 0
    pk, ck = p.kind, c.kind
    vmem = ("dma", "vload", "vstore")
    if pk == "valu":
        vw = {r for r in p.writes if is_v(r)}
        sw = {r for r in p.writes if r[0] == "s"}
        isdot = p.op.startswith("v_dot2")
        if ck == "mfma" and vw & c.reads:
            n = max(n, 3 if isdot else 2)
        if ck == "valu":
            if c.op.startswith("v_permlane") and vw & c.reads:
                n = max(n, 2)
            if c.op.startswith(("v_readlane", "v_readfirstlane")) and vw & c.reads:
                n = max(n, 1)
            if ("row_" in c.text or "quad_perm" in c.text or "wave_" in c.text) and vw & c.reads:
                n = max(n, 2)
            if p.op.startswith(TRANS) and vw & c.reads:
                n = max(n, 1)
            if sw & c.reads:
                n = max(n, 4 if c.op.startswith(("v_readlane", "v_writelane")) else 2)
            if ("s", "exec") in sw:
                n = max(n, 4)
        if isdot:
            if ck == "valu" and c.op == p.op:
                if vw & c.srcab:
                    n = max(n, 3)
            elif vw & (c.reads | c.writes):
                n = max(n, 3)
        if ck in vmem and sw & c.reads:
            n = max(n, 5)
        if ck in ("salu", "branch", "smem") and sw & c.reads:
            n = max(n, 2)
        if ck == "branch" and ("vcc" in c.op) and ("s", "vcc") in sw:
            n = max(n, 5)
    if pk == "mfma":
        rd_, ov_, war_, same_ = {2: (5, 4, 1, 2), 4: (8, 6, 3, 0), 8: (12, 10, 7, 0)}[p.passes]
        if ck == "mfma":
            if p.writes & c.srcab:
                n = max(n, rd_)
            if p.writes & c.srcc:
                n = max(n, same_ if (p.writes == c.srcc and p.passes == c.passes) else ov_)
            if p.writes & c.writes:
                n = max(n, same_ if (p.writes == c.writes and p.passes == c.passes) else ov_)
        elif ck in ("valu", "dsr", "dsw") + vmem:
            if p.writes & (c.reads | c.writes):
                n = max(n, rd_)
            if p.srcc & c.writes:
                n = max(n, war_)
    if pk == "salu" and ("s", "m0") in p.writes and ck == "dma":
        n = max(n, 1)
    if pk == "vstore" and ("x4" in p.op or "x3" in p.op) and p.data & c.writes:
        n = max(n, 2)
    if pk == "dsw" and "b128" in p.op and ck == "valu" and (p.reads & c.writes):
        n = max(n, 1)
    return n


class Finalizer:
    def __init__(self, lgkm_age=10):
        self.lgkm_age = lgkm_age
        self.keep = 2
        self.hoist = False

    def run(self, ins):
        out = []
        lg = []
        vm = []
        smem = []
        stats = {"lgkm": 0, "vm": 0, "nop": 0}
        lastw = {}
        waited = set()
        seen = set()

        def pos():
            return len(out)

        def emit(x):
            if x.kind not in ("label", "dir", "wait", "nop", "pseudo"):
                dist = 0
                need = 0
                for p in reversed(out[-24:]):
                    r = need_states(p, x) - dist
                    need = max(need, r)
                    dist += p.states()
                    if dist > 14:
                        break
                while need > 0:
                    k = min(need, 16)
                    out.append(Ins(f"s_nop {k - 1}"))
                    stats["nop"] += 1
                    need -= k
            out.append(x)

        def wait(l=None, v=None):
            parts = []
            if v is not None:
                v = min(v, 63)
                if len(vm) > v:
                    parts.append(f"vmcnt({v})")
                    del vm[: len(vm) - v]
                    stats["vm"] += 1
            if l is not None:
                l = min(l, 15)
                if smem:
                    l = 0
                if len(lg) > l or smem:
                    parts.append(f"lgkmcnt({l})")
                    del lg[: len(lg) - l]
                    del smem[:]
                    stats["lgkm"] += 1
            if parts:
                out.append(Ins("s_waitcnt " + " ".join(parts)))

        for x in ins:
            if x.kind == "pseudo":
                a = x.text.split()
                if x.op == "RESET":
                    del lg[:]; del vm[:]; del smem[:]
                elif x.op == "KEEP":
                    self.keep = int(a[1])
                elif x.op == "WAITLGKM":
                    wait(l=0)
                elif x.op == "WAITLG":
                    tags = set(a[1:])
                    waited |= tags
                    idx = [i for i, (p, _) in enumerate(lg) if p.tag in tags]
                    if idx:
                        wait(l=len(lg) - 1 - idx[-1])
                elif x.op == "WAITVM":
                    if a[1] == "ALL":
                        wait(v=0)
                    else:
                        tags = set(a[1:])
                        waited |= tags
                        idx = [i for i, (p, _) in enumerate(vm) if p.tag in tags]
                        if idx:
                            wait(v=len(vm) - 1 - idx[-1])
                continue
            if x.kind == "wait":
                m = re.search(r"vmcnt\((\d+)\)", x.text)
                if m:
                    n = int(m.group(1)); del vm[: max(0, len(vm) - n)]
                m = re.search(r"lgkmcnt\((\d+)\)", x.text)
                if m:
                    n = int(m.group(1)); del lg[: max(0, len(lg) - n)]
                    if n == 0:
                        del smem[:]
                out.append(x)
                continue
            assert x.tag is None or x.tag not in waited, f"tag {x.tag} issued after its wait: {x.text}"
            seen.add(id(x))
            for d in x.after:
                assert id(d) in seen, f"{x.text} placed before {d.text}"
            for d in x.deps:
                for r in d.writes & x.reads:
                    assert lastw.get(r) is d, f"bad producer for {r} in {x.text}: want {d.text}, have {lastw.get(r) and lastw[r].text}"
            for r in x.writes:
                lastw[r] = x
            touch = x.reads | x.writes
            lw = vw = None
            idx = [i for i, (p, _) in enumerate(lg) if p.writes & touch]
            if idx:
                i = idx[-1]
                while i + 1 < len(lg) - self.keep and pos() - lg[i + 1][1] >= self.lgkm_age:
                    i += 1
                lw = len(lg) - 1 - i
            if any(p.writes & touch for p in smem):
                lw = 0
            idx = [i for i, (p, _) in enumerate(vm) if p.writes & touch]
            if idx:
                vw = len(vm) - 1 - idx[-1]
            if lw is not None and vw is None and x.kind == "mfma" and self.hoist and not smem:
                k = len(out)
                while k > 0 and out[k - 1].kind in ("valu", "dsr"):
                    k -= 1
                nds = sum(1 for y in out[k:] if y.kind == "dsr")
                if 0 < len(out) - k <= 3 and k > 0 and out[k - 1].kind == "mfma" and nds <= lw and lw <= 15:
                    out.insert(k, Ins(f"s_waitcnt lgkmcnt({lw - nds})"))
                    del lg[: len(lg) - lw]
                    stats["lgkm"] += 1
                    lw = None
            if lw is not None or vw is not None:
                wait(l=lw, v=vw)
            emit(x)
            if x.kind in ("dsr", "dsw"):
                lg.append((x, pos()))
            elif x.kind in ("dma", "vload", "vstore"):
                vm.append((x, pos()))
                assert len(vm) <= 63 or True
            elif x.kind == "smem":
                smem.append(x)
        self.stats = stats
        return out


def sched(mf, streams, cap=2, flush=True):
    out = []
    heads = [0] * len(streams)
    capf = cap if callable(cap) else (lambda g: cap)
    L = lambda it: it if isinstance(it, list) else [it]
    dl = []
    for st in streams:
        d, m = [0] * len(st), 1 << 30
        for i in range(len(st) - 1, -1, -1):
            if len(st[i]) > 2:
                m = min(m, st[i][2])
            d[i] = m
        dl.append(d)
    for g, m in enumerate(mf):
        out.append(m)
        full = budget = capf(g)
        progress = True
        while progress:
            progress = False
            for si, st in enumerate(streams):
                if heads[si] >= len(st) or st[heads[si]][0] > g:
                    continue
                items = L(st[heads[si]][1])
                c = sum(i.cost for i in items)
                if c <= budget or (budget == full and c > full) or c == 0:
                    out.extend(items)
                    budget -= c
                    heads[si] += 1
                    progress = True
                    break
        for si, st in enumerate(streams):
            while heads[si] < len(st) and dl[si][heads[si]] <= g:
                assert st[heads[si]][0] <= g, f"deadline before earliest: {L(st[heads[si]][1])[0].text}"
                out.extend(L(st[heads[si]][1]))
                heads[si] += 1
    left = []
    for si, st in enumerate(streams):
        rest = st[heads[si]:]
        if flush:
            for it in rest:
                out.extend(L(it[1]))
        left.append(rest)
    return out if flush else (out, left)


SCALAR = ("salu", "wait", "nop", "barrier", "branch", "pseudo", "smem", "label", "dir")
VMEMK = ("dma", "vload", "vstore")


def sched2(mf, streams, vsep=4, state=None):
    out = []
    heads = [0] * len(streams)
    L = lambda it: it if isinstance(it, list) else [it]
    dl = []
    for st in streams:
        d, m = [0] * len(st), 1 << 30
        for i in range(len(st) - 1, -1, -1):
            if len(st[i]) > 2:
                m = min(m, st[i][2])
            d[i] = m
        dl.append(d)
    state = state if state is not None else {}
    last_vm = state.get("vm", -99)
    ds_free = state.get("ds", -99)

    def cls(it):
        items = L(it)
        if all(x.kind in SCALAR for x in items):
            return "s"
        if len(items) > 1:
            return "g"
        k = items[0].kind
        return "m" if k in VMEMK else "r" if k == "dsr" else "w" if k == "dsw" else "v"

    def head(si, g):
        if heads[si] < len(streams[si]) and streams[si][heads[si]][0] <= g:
            return streams[si][heads[si]]
        return None

    def note(items, g):
        nonlocal last_vm, ds_free
        for x in items:
            if x.kind in VMEMK:
                last_vm = g
            if x.kind == "dsw":
                ds_free = g + (4 if "b128" in x.op else 2 if "b64" in x.op or "write2" in x.op else 1)

    def take(si, g):
        items = L(streams[si][heads[si]][1])
        heads[si] += 1
        out.extend(items)
        note(items, g)
        return items

    def find(g, kinds):
        for si in range(len(streams)):
            h = head(si, g)
            if h and cls(h[1]) in kinds:
                return si
        return None

    for g, m in enumerate(mf):
        out.append(m)
        h0 = head(0, g)
        si = find(g, "m") if g - last_vm >= vsep else None
        if si is not None and not (h0 and si != 0 and (cls(h0[1]) != "r" or g - h0[0] >= 1)):
            take(si, g)
        else:
            budget, scal = 2, False
            si = find(g, "s")
            if si is not None:
                budget -= max(0, sum(x.cost for x in take(si, g)) - 1)
                scal = True
            si = find(g, "rw") if g >= ds_free else None
            if si is not None and budget > 0:
                c = cls(head(si, g)[1])
                if c == "w" and budget == 2:
                    take(si, g)
                    budget = 0
                elif c == "r":
                    mark = len(out)
                    take(si, g)
                    budget -= 1
                    si = find(g, "r")
                    if si is not None and budget > 0 and g - head(si, g)[0] >= 2:
                        if not scal:
                            out.insert(mark, Ins("s_nop 0"))
                        take(si, g)
                        budget -= 1
            while True:
                for si in range(len(streams)):
                    h = head(si, g)
                    if h and cls(h[1]) in "vsg":
                        c = sum(x.cost for x in L(h[1]))
                        if c <= budget or (budget == 2 and c > 2):
                            take(si, g)
                            budget -= c
                            break
                else:
                    break
        for si, st in enumerate(streams):
            while heads[si] < len(st) and dl[si][heads[si]] <= g:
                assert st[heads[si]][0] <= g, f"deadline before earliest: {L(st[heads[si]][1])[0].text}"
                take(si, g)
    for si, st in enumerate(streams):
        while heads[si] < len(st):
            take(si, len(mf) - 1)
    state["vm"], state["ds"] = last_vm - len(mf), ds_free - len(mf)
    return out


def text_of(ins):
    return "\n".join(("" if x.kind in ("label", "dir") else "    ") + x.text for x in ins)


import subprocess
_size_cache = {}


def inst_sizes(ins):
    for x in ins:
        if x.kind == "salu" and "L_" in x.text:
            _size_cache[x.text] = 8
    todo = sorted({x.text for x in ins if x.kind not in ("label", "dir", "branch") and x.text not in _size_cache})
    if todo:
        r = subprocess.run(["llvm-mc", "-triple=amdgcn-amd-amdhsa", "-mcpu=gfx950", "-show-encoding"],
                           input="\n".join(todo) + "\n", capture_output=True, text=True)
        assert r.returncode == 0, r.stderr
        enc = [l for l in r.stdout.split("\n") if "encoding:" in l]
        assert len(enc) == len(todo)
        for t, l in zip(todo, enc):
            _size_cache[t] = l.split("encoding:")[1].count("0x")
    return [0 if x.kind in ("label", "dir") else 4 if x.kind == "branch" else _size_cache[x.text] for x in ins]


NOPROMOTE = ("v_readfirstlane", "v_dot2c", "v_permlane", "v_nop", "v_accvgpr", "v_fmac")


def promotable(x, sz):
    return x.kind == "valu" and sz == 4 and not x.op.startswith(NOPROMOTE) and not x.op.endswith("_e64")


def layout(ins, start=0, pad_prefix=None, pad_stride=4, pad_ret=None, align=True):
    sz = inst_sizes(ins)
    out, osz = [], []
    off = start
    npad = 0
    st = {"promo": 0, "nop": 0}
    slot = None
    cand = None
    for i, (x, s) in enumerate(zip(ins, sz)):
        if s and pad_prefix and off % 4096 == 0:
            out.append(Ins(f"{pad_prefix}{npad}:")); osz.append(0)
            out.append(Ins(f"s_cbranch_execz @PAD{npad + pad_stride}")); osz.append(4)
            npad += 1
            off += 4
            cand = slot = None
        if s == 8 and off % 32 == 28 and (align or (off + 4) % 4096 == 0):
            if cand is not None:
                y = out[cand]
                z = Ins(y.op + "_e64" + y.text[len(y.op):], y.tag, y.cost)
                out[cand] = z; osz[cand] = 8
                st["promo"] += 1
            elif slot is not None:
                out.insert(slot, Ins("s_nop 0")); osz.insert(slot, 4)
                st["free"] = st.get("free", 0) + 1
            else:
                out.append(Ins("s_nop 0")); osz.append(4)
                st["nop"] += 1
            off += 4
            cand = slot = None
            if pad_prefix and off % 4096 == 0:
                out.append(Ins(f"{pad_prefix}{npad}:")); osz.append(0)
                out.append(Ins(f"s_cbranch_execz @PAD{npad + pad_stride}")); osz.append(4)
                npad += 1
                off += 4
        if off % 32 == 0:
            cand = slot = None
            if out and out[-1].kind == "mfma" and out[-1].passes == 4 and x.kind in ("mfma", "valu", "dsr", "dsw"):
                slot = len(out)
        out.append(x); osz.append(s)
        if x.kind == "mfma" and x.passes == 4 and i + 1 < len(ins) and ins[i + 1].kind in ("mfma", "valu", "dsr", "dsw"):
            slot = len(out)
        if promotable(x, s):
            cand = len(out) - 1
        off += s
    res = []
    for x in out:
        if "@PAD" in x.text:
            k = int(x.text.split("@PAD")[1])
            res.append(Ins(f"s_cbranch_execz {pad_prefix + str(k) if k < npad else pad_ret}"))
        else:
            res.append(x)
    return res, npad, off - start, st
```

```python
import sys
import struct
from asmlib import *

NAME = "gated_mix__sliding_local_dilated__dense_activation_squared_relu__prompt"
OPT = dict(stamp=0, warm=1, touch=0, align=1, ctouch=1, tfirst=2, slack=8, look=6, sig=3, pdist=44,
           bg0=20, bg1=8, cap=11, capa=13, npro=8, nproa=7, tdist=4, sleep=0, ar="-1,-1,-1,2", stg=8, stga=6, verbose=0, dflav='', bgn=0, bgv=24, rotg=3, w1pre=0, nost=0, stflav='sc1', nochk=0, nosig=0, age=10, ct2=1, vsig=0, pol='probe', pg0=14, pg1=33, pgs=3, nrace=4, prb=0x1a0000, t8=0, b0=128, dbl='8,12', udist=8, s2=1, capd=8, dbla=11, est='A8+F7,F8', esta='F5,A8+F6,F7,F8', achk=-1, ain='25:3', alag=2, b2t=1, wot=13, bperm=1, lastpm=1, rg='5,96', xb=8, xa=16, split3=1, npre=4, nprea=3, fastst=1, attfirst=1)
for a in sys.argv[1:]:
    k, v = a.split("=")
    assert k in OPT, k
    OPT[k] = int(v) if v.lstrip("-").isdigit() else v

PG = 0x200000
SRCS = 32768
O_CNT, O_Z, O_PRB = 0x180000, 0x190000, OPT['prb']
FST = 256
WS_STAMP = 0x9000000
WS_SIZE = 0xa000000
MF = "v_mfma_f32_16x16x32_bf16"
MF4 = "v_mfma_f32_4x4x4_16b_bf16"
OOB = "0x80000000"

SX, SWA, SWB, SSM, SWS, SOUT, SB2 = 28, 32, 36, 40, 44, 48, 52
SDBG = 4
sW, sMT, sSRC = 56, 57, 58
sCH = 70
sFL, sMB, sSPIN, sMASK = 79, 80, 81, 84
sPG = 0
sG, sWB = 90, 91
vL16, vPST, vFW, vCON = 23, 24, 26, 28
srd = lambda n: f"s[{n}:{n + 3}]"
f2u = lambda x: struct.unpack("<I", struct.pack("<f", x))[0]
VM = ("dma", "vload", "vstore")


class P(list):
    def __call__(self, text, tag=None, cost=None):
        for t in text.split("\n"):
            t = t.strip()
            if t:
                self.append(I(t, tag, cost))
        return self


def flat(items):
    o = []
    for it in items:
        o.extend(it if isinstance(it, list) else [it])
    return o


def srd_const(p, n, size):
    p(f"s_mov_b32 s{n + 2}, {size}\ns_mov_b32 s{n + 3}, 0x20000")


def srd_ptr(p, n, ptr, bias=0):
    if bias:
        p(f"s_sub_u32 s{n}, s{ptr}, {bias}\ns_subb_u32 s{n + 1}, s{ptr + 1}, 0")
    else:
        p(f"s_mov_b64 s[{n}:{n + 1}], s[{ptr}:{ptr + 1}]")


class Addr:
    def __init__(self, regs):
        self.regs = regs

    def at(self, off):
        return f"v{self.regs[off >> 16]} offset:{off & 0xffff}"

    def wr(self, off, data):
        return f"v{self.regs[off >> 16]}, {data} offset:{off & 0xffff}"


nstamp = [0]
stnames = {}
cur = {"role": None, "vst": None}


def stamp_ins(name, lvl=1):
    if not (OPT["stamp"] and (OPT["stamp"] >= lvl or name == "end")):
        return []
    n = nstamp[0]
    nstamp[0] += 1
    assert n < 31
    stnames.setdefault(cur["role"], []).append(name)
    v = cur["vst"]
    return [I("s_memrealtime s[86:87]"), I("s_memtime s[88:89]"), I("s_waitcnt lgkmcnt(0)"),
            I(f"v_writelane_b32 v{v}, s86, {2 * n}"), I(f"v_writelane_b32 v{v}, s88, {2 * n + 1}")]


def stamp(p, name, lvl=1):
    p.extend(stamp_ins(name, lvl))


def stamp_begin(p, role, v):
    cur["role"], cur["vst"] = role, v
    nstamp[0] = 1
    stnames[role] = ["start"]
    if OPT["stamp"]:
        p(f"v_mov_b32 v{v}, 0\ns_waitcnt lgkmcnt(0)\nv_writelane_b32 v{v}, s86, 0\nv_writelane_b32 v{v}, s88, 1")


def stamp_out(p):
    if OPT["stamp"]:
        p("s_waitcnt vmcnt(0)")
        stamp(p, "end")
        p(f"s_lshl_b32 s59, s2, 2\ns_add_u32 s59, s59, s{sW}\ns_lshl_b32 s59, s59, 8\ns_add_u32 s59, s59, {WS_STAMP}")
        p(f"v_lshlrev_b32 v1, 2, v0\nv_writelane_b32 v{cur['vst']}, s{sSPIN}, 63")
        p(f"buffer_store_dword v{cur['vst']}, v1, {srd(SWS)}, s59 offen")


stubs = {}
sCNT, sDB, sINC, sP0, sP1 = 92, 94, 96, 97, 98
sNEED = {"F": "s99", "A": "s100", "FA": "s101", "init": "15"}
PGS = [0, 1, 61]


nskip = [0]
lastpoll, lastchk = {}, {}


def wave0(items):
    nskip[0] += 1
    return [I(f"s_cbranch_vccz L_skip{nskip[0]}")] + items + [I(f"L_skip{nskip[0]}:")]


def poll_load(t, reg=sP0, bare=False):
    if t == "init" and not bare:
        x = I(f"s_load_dword s{reg}, s[{sDB}:{sDB + 1}], 0x0")
        x.kind = "salu"
        lastpoll[reg] = (t, x)
        lastchk.clear()
        return [[x]]
    base, off = (sDB, 0) if t == "init" else (sCNT, t * FST)
    o = [I(f"s_mov_b32 s{reg}, 0", cost=0), I(f"s_atomic_add s{reg}, s[{base}:{base + 1}], {hex(off)} glc")]
    if not bare:
        o[0].after = lastchk.get(reg, [])
        lastpoll[reg] = (t, o[1])
    return [o if bare else wave0(o)]


def poll_check(role, t, what, reg=sP0, wait=True):
    st = stubs.setdefault(role, P())
    n = sum(1 for x in st if x.kind == "label")
    lab = f"L_{role}_spin{n}"
    st(f"{lab}:")
    if OPT["sleep"]:
        st(f"s_sleep {OPT['sleep']}")
    st.extend(flat(poll_load(t, reg, True)))
    st(f"""
    s_sub_u32 s{sSPIN}, s{sSPIN}, 1
    s_waitcnt lgkmcnt(0)
    s_cmp_lt_i32 s{sSPIN}, 0
    s_cbranch_scc1 {lab}r
    s_andn2_b32 s85, {sNEED[what]}, s{reg}
    s_cbranch_scc1 {lab}
    s_branch {lab}r
    """)
    c = I(f"s_andn2_b32 s85, {sNEED[what]}, s{reg}")
    assert lastpoll[reg][0] == t
    c.after = [lastpoll.pop(reg)[1]]
    lastchk[reg] = [c]
    return [[I("s_waitcnt lgkmcnt(0)")][:wait] + [c, I(f"s_cbranch_scc1 {lab}"), I(f"{lab}r:")]]


def signal(t):
    if OPT["vsig"]:
        return vsignal(t)
    return [wave0([I(f"s_atomic_add s{sINC}, s[{sCNT}:{sCNT + 1}], {hex(t * FST)}")])]


def vsignal(t):
    return [I(f"buffer_atomic_add v{vFD}, v{vFW}, {srd(SWS)}, s{sFL} offen offset:{t * FST}")]


def handoff_setup(base_sgpr, inc):
    o = [I(f"s_and_b32 s85, s{sMT}, 7"), I("s_lshl_b32 s85, s85, 7")]
    for t in range(9):
        o.append(I(f"s_add_u32 s{sCH + t}, s85, s{base_sgpr}"))
        if t < 8:
            o.append(I("s_add_u32 s85, s85, 128"))
            o.append([I("s_cmp_eq_u32 s85, 1152"), I("s_cselect_b32 s85, 0, s85")])
    o += P()(f"""
    s_sub_u32 s85, 0, s26
    s_and_b32 s85, s85, {PG - 1}
    s_lshl_b32 s{sMB}, s{sMT}, 23
    s_add_u32 s{sMB}, s{sMB}, s85
    s_mov_b32 s{sSPIN}, 0x10000
    s_lshl_b32 s3, s{sMT}, 2
    s_lshr_b32 s{sMASK}, 1, s{sW}
    s_lshl_b32 {sNEED['F']}, s{sMASK}, 4
    s_lshl_b32 {sNEED['A']}, s{sMASK}, 10
    s_mul_i32 {sNEED['FA']}, s{sMASK}, 0x410
    s_mov_b32 s{sINC}, {inc}
    v_bfe_u32 v{vPST}, v0, 2, 2
    v_lshlrev_b32 v{vPST}, 8, v{vPST}
    v_lshrrev_b32 v{vCON}, 4, v0
    v_lshl_add_u32 v{vPST}, v{vCON}, 6, v{vPST}
    v_and_b32 v{vFW}, 3, v0
    v_lshl_add_u32 v{vPST}, v{vFW}, 4, v{vPST}
    v_and_b32 v{vFW}, 15, v0
    v_mul_u32_u24 v{vCON}, {SRCS}, v{vCON}
    v_lshl_add_u32 v{vCON}, v{vFW}, 4, v{vCON}
    s_lshl_b32 s85, s{sSRC}, 8
    v_add_u32 v{vCON}, s85, v{vCON}
    s_mul_i32 s85, s{sSRC}, {SRCS}
    v_add_u32 v{vPST}, s85, v{vPST}
    s_mov_b32 vcc_lo, s{sMASK}
    s_mov_b32 vcc_hi, 0
    """)
    o += [[I(f"s_add_u32 s{sDB}, s24, s3"), I(f"s_addc_u32 s{sDB + 1}, s25, 0")]]
    return o


def page_setup():
    o = P()(f"""
    s_lshr_b32 s85, s{sW}, 1
    s_mul_i32 s85, s85, {16384 - 8192}
    s_lshl_b32 s3, s{sW}, 12
    s_add_u32 s3, s3, s85
    s_add_u32 s3, s3, s{sMB}
    """)
    for k in range(3):
        if OPT["pol"] == "probe":
            o(f"s_bfe_u32 s85, s{sP0}, {hex(0x10004 + k)}")
        elif OPT["pol"] == "inv":
            o(f"s_bfe_u32 s85, s{sP0}, {hex(0x10004 + k)}\ns_xor_b32 s85, s85, 1")
        elif OPT["pol"] in ("fix0", "fix1"):
            o(f"s_lshr_b32 s85, s{sMT}, 3\ns_xor_b32 s85, s85, {(k ^ int(OPT['pol'][3])) & 1}")
        else:
            o(f"s_and_b32 s85, s{sMT}, 1")
        o("s_lshl_b32 s85, s85, 13")
        if k == 0:
            o(f"s_add_u32 s{sFL}, s85, s{sMB}\ns_add_u32 s{sFL}, s{sFL}, {O_CNT}")
        o(f"s_add_u32 s85, s85, s3")
        o(f"s_add_u32 s{PGS[k]}, s85, {k * PG}")
    return list(o) + [[I(f"s_add_u32 s{sCNT}, s26, s{sFL}"), I(f"s_addc_u32 s{sCNT + 1}, s27, 0")]]


def counter_init(tmp):
    a = P()(f"""
    s_min_u32 s85, s{sW}, 1
    s_lshl_b32 s85, s85, 31
    v_and_b32 v{tmp}, 15, v0
    v_lshlrev_b32 v{tmp}, 8, v{tmp}
    v_bfe_u32 v{tmp + 1}, v0, 4, 1
    v_lshl_add_u32 v{tmp}, v{tmp + 1}, 13, v{tmp}
    v_lshrrev_b32 v{tmp + 1}, 5, v0
    v_or_b32 v{tmp + 1}, s67, v{tmp + 1}
    v_min_u32 v{tmp + 1}, 1, v{tmp + 1}
    v_lshl_or_b32 v{tmp}, v{tmp + 1}, 31, v{tmp}
    v_or_b32 v{tmp}, s85, v{tmp}
    v_lshrrev_b32 v{tmp + 1}, 3, v0
    v_lshlrev_b32 v{tmp + 1}, 12, v{tmp + 1}
    v_and_b32 v{tmp + 2}, 7, v0
    v_lshl_add_u32 v{tmp + 1}, v{tmp + 2}, 3, v{tmp + 1}
    v_or_b32 v{tmp + 1}, s85, v{tmp + 1}
    v_mov_b32 v{tmp + 2}, 4
    v_mov_b32 v{tmp + 3}, 4
    s_add_u32 s85, s{sMB}, {O_CNT}
    """)
    a(f"buffer_store_dword v{tmp + 2}, v{tmp}, {srd(SWS)}, s85 offen sc1", tag="FI")
    a(f"s_lshl_b32 s85, s67, 21\ns_add_u32 s85, s85, s{sMB}\ns_add_u32 s85, s85, {O_PRB}")
    a(f"buffer_store_dwordx2 {vr(tmp + 2, 2)}, v{tmp + 1}, {srd(SWS)}, s85 offen sc1", tag="FI")
    a = list(a) + [[I("s_add_u32 s16, s26, s85"), I("s_addc_u32 s17, s27, 0")], I("s_mov_b32 s14, 0")]

    def race(n):
        blk = [0x0, 0x1000, 0x4000, 0x5000][n % 4]
        ld = [I(f"s_load_dword s{8 + c}, s[16:17], {hex(blk + 0x2000 * c)} glc", cost=0) for c in ((0, 1) if n % 2 == 0 else (1, 0))]
        for x in ld:
            x.kind = "salu"
        o = [(2, [I("s_mov_b64 s[8:9], 0")] + wave0(ld))]
        smp = ["s_add_u32 s14, s14, s8", "s_sub_u32 s14, s14, s9"]
        for g in range(OPT["pg0"], OPT["pg1"], OPT["pgs"]):
            o.append((2 + g, [I(t) for t in (smp if n % 2 == 0 else smp[::-1])]))
        return o

    pub = [[I("s_cmp_lt_i32 s14, 0"), I("s_cselect_b32 s15, 17, 1")], I("s_lshl_b32 s15, s15, s67"),
           wave0([I(f"s_atomic_or s15, s[{sDB}:{sDB + 1}], 0x0")])]
    if OPT["stamp"]:
        pub += [[I("s_ashr_i32 s15, s14, 2"), I("s_and_b32 s15, s15, 0xff")], [I("s_lshl_b32 s14, s67, 3"), I("s_lshl_b32 s15, s15, s14")],
                wave0([I(f"s_atomic_or s15, s[{sDB}:{sDB + 1}], 0x40")])]
    return a, race, pub


def touch(vreg, sr, base, off, force=False):
    a = I(f"s_add_u32 s60, s{base}, {off}")
    x = I(f"buffer_load_dword a255, v{vreg}, {srd(sr)}, s60 offen", tag="T")
    x.writes = set()
    return [a, x] if OPT["touch"] or force else []


def x_touch_addr(p, reg, tmp):
    p(f"""
    s_lshr_b32 s59, s2, 6
    s_lshl_b32 s59, s59, 2
    s_add_u32 s59, s59, s{sW}
    s_mul_i32 s59, s59, {8 * 1152}
    v_and_b32 v{tmp}, 7, v0
    v_mul_u32_u24 v{reg}, 1152, v{tmp}
    v_bfe_u32 v{tmp}, v0, 3, 1
    v_lshl_add_u32 v{reg}, v{tmp}, 7, v{reg}
    v_lshrrev_b32 v{tmp}, 4, v0
    v_min_u32 v{tmp}, 1, v{tmp}
    v_lshlrev_b32 v{tmp}, 31, v{tmp}
    v_add3_u32 v{reg}, v{reg}, v{tmp}, s59
    """)


def code_touch(p, role, tmp):
    p(f"s_and_b32 s68, s{sMT}, 7\ns_lshl_b32 s68, s68, 2\ns_add_u32 s68, s68, s{sW}")
    if OPT["ctouch"]:
        p(f"""
        s_getpc_b64 s[82:83]
        L_{role}_pc:
        s_add_u32 s82, s82, L_{role}_body-L_{role}_pc
        s_addc_u32 s83, s83, 0
        s_lshl_b32 s59, s68, 7
        v_min_u32 v{tmp}, @LASTPAGE_{role}, v0
        v_lshl_add_u32 v{tmp}, v{tmp}, 12, s59
        """)
        x = I(f"global_load_dword a255, v{tmp}, s[82:83]")
        x.writes = set()
        p.append(x)


def code_touch2(role, tmp):
    if not OPT["ct2"]:
        return []
    x = I(f"global_load_dword a255, v{tmp}, s[10:11]", tag="T")
    x.writes = set()
    return [[I("s_getpc_b64 s[10:11]"), I(f"L_{role}_pc2:"), I(f"s_sub_u32 s10, s10, L_{role}_pc2-L_{role}_body"), I("s_subb_u32 s11, s11, 0")], x]


def warm(p, role):
    if OPT["warm"]:
        p("s_mov_b64 exec, 0")
        for w in range(3):
            p(f"s_cmp_eq_u32 s{sW}, {w}\ns_cbranch_scc1 L_{role}_pad{w}")
        p(f"s_branch L_{role}_pad3\nL_{role}_ret:\ns_mov_b64 exec, -1")


def bit_of(mask, reg):
    if mask == 0:
        return f"s_mov_b32 s{reg}, 0"
    if mask & (mask - 1) == 0:
        return f"s_bfe_u32 s{reg}, s2, {hex(0x10000 + mask.bit_length() - 1)}"
    return f"s_and_b32 s{reg}, s2, {mask}\ns_bcnt1_i32_b32 s{reg}, s{reg}\ns_and_b32 s{reg}, s{reg}, 1"


def split_vm(items, n):
    k = 0
    while n > 0 and k < len(items):
        n -= items[k].kind in VM
        k += 1
    return k


def x_soff(J, base):
    if J == 8:
        return [I(f"s_add_u32 s60, {base}, 1024")]
    return [I(f"s_xor_b32 s60, s{sG}, {J}"), I("s_lshl_b32 s60, s60, 7"), I(f"s_add_u32 s60, s60, {base}")]


def w_block(j, base, pitch):
    if j % 2:
        return []
    if j == 16:
        return [I(f"s_add_u32 s{sWB}, s{base}, {512 * pitch}")]
    return [I(f"s_xor_b32 s{sWB}, s{sG}, {j // 2}"), I(f"s_mul_i32 s{sWB}, s{sWB}, {64 * pitch}"), I(f"s_add_u32 s{sWB}, s{sWB}, s{base}")]


def pace(groups, nsteps, cap, ngap, bgap, npro):
    q = [(e, x) for e, g in groups for x in g]
    res = []
    for j in range(-1, nsteps):
        d, n = [], 0
        lim = npro if j < 0 else 99 if j == nsteps - 1 else cap(j) if callable(cap) else cap
        while q and q[0][0] <= j and n < lim:
            e, x = q.pop(0)
            d.append((e == j, x))
            n += x.kind in VM
        k, o = 0, []
        for dep, it in d:
            vm = it.kind in VM
            g = 1 + (ngap * k) // max(n, 1) + (2 if vm else 0)
            o.append((max(g, bgap(j) + 1) if dep else g, it))
            k += vm
        res.append(o)
    assert not q
    if OPT["verbose"]:
        for j, o in enumerate(res):
            sys.stderr.write(f"  step {j - 1}: " + " ".join((x.tag or "t") for _, x in o if x.kind in VM) + "\n")
    return [x for _, x in res[0]], res[1:]


def first_touches(p, tw, tx, wmask):
    if OPT["tfirst"] == 1:
        p.extend(tw(0) + tx(0))
        return 4, 2
    if OPT["tfirst"] == 2 and OPT["touch"]:
        a, b = tw(0), tx(0)
        p(f"s_mov_b64 exec, {wmask}")
        p.extend(a)
        p("s_mov_b64 exec, 0xff")
        p.extend(b)
        p("s_mov_b64 exec, -1")
        return 2, 1
    return 1, 1


def add_touches(groups_after, j, TW, TX, tw, tx):
    o = []
    for k in range(1, 5):
        if j == max(1, TW + 4 * k - OPT["tdist"]):
            if TW + 4 * k < 18:
                o += tw(TW + 4 * k)
            if TX + 2 * k < 9:
                o += tx(TX + 2 * k)
    if o:
        groups_after.append((-1, o))


BG = lambda j: OPT["bg0"] if j == 0 else OPT["bg1"] if j == 1 else OPT["bgv"] if j < OPT["bgn"] else 0


sstate = {}


def gemm_step(p, j, mf, tags, rds, dma, side, first=(), hi=(), wait_end=True):
    bg = BG(j)
    s_rd = [(bg, [I("WAITLGKM", cost=0), I(f"WAITVM {tags}", cost=1), I("s_barrier")])] + list(first)
    r0 = max([bg] + [g for g, _ in first])
    span = len(mf) - 6 - r0
    for i, x in enumerate(rds):
        s_rd.append((r0 + 2 + min(2 * i, (span * i) // len(rds)), x))
    if wait_end:
        s_rd.append((len(mf) - 1, I("WAITLGKM", cost=1), len(mf) - 1))
    if OPT["s2"]:
        p.extend(sched2(mf, [s_rd, list(hi), dma, side], state=sstate))
    else:
        p.extend(sched(mf, [list(hi), s_rd, dma, side]))


def phase_b(units, hreg, hdep, trB, st_gap, mf):
    frags = []
    for ui, u in enumerate(units):
        for qi, k in enumerate(u["ks"]):
            frags.append((ui, qi, k))
    ntile_ks = {}
    for ui, qi, k in frags:
        ntile_ks.setdefault(units[ui]["tile"], []).append(k)
    rdc = {}

    def rd(fi):
        if fi not in rdc:
            ui, qi, (ks, off, hoff) = frags[fi]
            w = 48 + 4 * (fi % 4)
            rdc[fi] = [I(f"ds_read_b64_tr_b16 {vr(w, 2)}, {trB(qi).at(off)}"),
                       I(f"ds_read_b64_tr_b16 {vr(w + 2, 2)}, {trB(qi).at(off + hoff)}", tag=f"f{fi}")]
        return rdc[fi]

    s_rd, s_dma, s_ep = [], [], []
    seen = {}
    for fi, (ui, qi, (ks, off, hoff)) in enumerate(frags):
        u = units[ui]
        t = u["tile"]
        first = t not in seen
        seen[t] = seen.get(t, 0) + 1
        g0 = len(mf)
        w = 48 + 4 * (fi % 4)
        for b in range(8):
            c = 64 + 32 * (t % 2) + 4 * b
            mf.append(I(f"{MF} {vr(c, 4)}, {vr(w, 4)}, {hreg(ks, b)}, {'0' if first else vr(c, 4)}"))
            mf[-1].deps = rd(fi) + hdep(ks, b)
        nf = fi + 2
        if qi == len(u["ks"]) - 2:
            tags = u.get("wtags", [])
            if nf < len(frags):
                tags = [units[ui + 1]["tag"]] + tags
            chk = u.get("chk", [])
            for it in chk:
                s_rd.append((g0 - 1, it))
            if tags or chk or u.get("pre"):
                bi = I("s_barrier")
                u["bar"] = bi
                s_rd.append((g0, [I("WAITLG none " + u.get("ltag", ""), cost=0), I("WAITVM none " + " ".join(tags), cost=1), bi]))
                for x in flat(u.get("pre", []) + u.get("dma", [])):
                    x.after = [bi]
            for it in u.get("pre", []):
                s_rd.append((g0 + 1, it))
            items = u.get("dma", [])
            nv = sum(1 for x in items if x.kind in VM)
            k = 0
            for it in items:
                vm = it.kind in VM
                s_dma.append((g0 + 4 + (8 * len(u["ks"]) * k) // nv + (1 if vm else 0), it))
                k += vm
        if nf < len(frags):
            r = rd(nf)
            s_rd.append((g0 + 1, r[0]))
            s_rd.append((g0 + 3, r[1]))
        if OPT["s2"] and fi + 1 < len(frags) and not (qi == len(u["ks"]) - 3 and u.get("chk")):
            s_rd.append((g0 + 7, I(f"WAITLG f{fi + 1}", cost=1)))
        if seen[t] == len(ntile_ks[t]):
            if t < (8 if OPT["stamp"] == 2 else 3) and OPT["stamp"] >= 2:
                s_rd.append((len(mf) - 1, stamp_ins(f"t{t}", 2)))
            e = len(mf) + 1
            if t == 8 and OPT["lastpm"]:
                tail = mf[-16:]
                mf[-16:] = [tail[8 * k + 2 * pp + bb] for pp in range(4) for k in range(2) for bb in range(2)]
                lastw = tail[8:]
                e, st_gap = len(mf) - 16 + 6, 4
            else:
                lastw = mf[-8:]
            s_ep.append((e - 2, I(f"s_add_u32 s62, s{PGS[t // 3]}, {(t % 3) * 16 * SRCS}")))
            for pp in range(4):
                c = 64 + 32 * (t % 2) + 8 * pp
                for i in range(4):
                    s_ep.append((e + pp * st_gap, I(f"v_cvt_pk_bf16_f32 v{32 + 4 * pp + i}, v{c + 2 * i}, v{c + 2 * i + 1}")))
                    s_ep[-1][1].deps = lastw
                if not OPT["nost"]:
                    s_ep.append((e + pp * st_gap + (5 if st_gap > 4 else 2),
                                 I(f"buffer_store_dwordx4 {vr(32 + 4 * pp, 4)}, v{vPST}, {srd(SWS)}, s62 offen offset:{1024 * pp} {OPT['stflav'].replace('plain', '')}", tag=f"P{t}")))
    return rd(0) + rd(1), s_rd, s_dma, s_ep


FRV = lambda r, i: vr(128 + 12 * r + 4 * i, 4)


def f_loads(r, FR):
    o = []
    for i in range(3):
        o += [I(f"s_add_u32 s60, s{PGS[r // 3]}, {((r % 3) * 16 + 4 * i) * SRCS}"),
              I(f"buffer_load_dwordx4 {FR(r, i)}, v{vCON}, {srd(SWS)}, s60 offen sc1")]
    return o


def a_load(r):
    return [I(f"s_add_u32 s60, s{PGS[r // 3]}, {((r % 3) * 16 + 12) * SRCS}"),
            I(f"buffer_load_dwordx4 {vr(4 * r, 4, 'a')}, v{vCON}, {srd(SWS)}, s60 offen sc1")]


def b2_touch(tmp):
    o = P()
    srd_ptr(o, SB2, 18); srd_const(o, SB2, 1152)
    if OPT["b2t"]:
        o(f"v_lshlrev_b32 v{tmp}, 7, v0")
        o(f"buffer_load_dword a255, v{tmp}, {srd(SB2)}, 0 offen", tag="T")
        o[-1].writes = set()
    return o


def b2_addr(reg, tmp):
    return P()(f"""
    s_and_b32 s85, s{sMT}, 7
    v_lshrrev_b32 v{reg}, 1, v0
    v_min_u32 v{reg}, 9, v{reg}
    v_add_u32 v{reg}, s85, v{reg}
    v_subrev_u32 v{tmp}, 9, v{reg}
    v_min_u32 v{reg}, v{reg}, v{tmp}
    v_and_b32 v{tmp}, 1, v0
    v_lshlrev_b32 v{tmp}, 4, v{tmp}
    v_lshl_add_u32 v{reg}, v{reg}, 7, v{tmp}
    s_lshl_b32 s85, s{sW}, 5
    v_add_u32 v{reg}, s85, v{reg}
    """)


def b2_dma(reg, lds):
    return [I(f"s_add_u32 m0, s65, {lds}"), I(f"buffer_load_dwordx4 v{reg}, {srd(SB2)}, 0 offen lds", tag="FD")]


SEL, COL, vZA = 12, [8, 9, 10, 11, 25], 29


def end_setup():
    p = P()
    srd_ptr(p, SOUT, 22); srd_const(p, SOUT, 2048 * 1152)
    t = SEL
    a, b = ("2, 2", "0, 2") if OPT["bperm"] else ("0, 2", "2, 2")
    p(f"""
    s_lshr_b32 s82, s{sSRC}, 2
    s_lshl_b32 s82, s82, 5
    s_and_b32 s83, s{sSRC}, 3
    s_lshl_b32 s83, s83, 2
    s_add_u32 s82, s82, s83
    v_bfe_u32 v{t}, v0, 4, 1
    v_lshl_add_u32 v{t}, v{t}, 4, s82
    v_and_b32 v{t + 1}, 3, v0
    v_add_u32 v{t + 1}, v{t}, v{t + 1}
    v_lshlrev_b32 v{vZA}, 2, v{t + 1}
    v_mul_u32_u24 v{t + 1}, 1152, v{t + 1}
    v_bfe_u32 v{t + 2}, v0, 2, 2
    v_lshl_add_u32 v{t + 1}, v{t + 2}, 3, v{t + 1}
    v_bfe_u32 v{t + 2}, v0, {a}
    v_add_u32 v{t}, v{t}, v{t + 2}
    v_mul_u32_u24 v{t}, 1152, v{t}
    v_bfe_u32 v{t + 2}, v0, {b}
    v_lshl_add_u32 v{t}, v{t + 2}, 3, v{t}
    v_lshrrev_b32 v{t + 2}, 5, v0
    v_lshl_add_u32 v{t + 1}, v{t + 2}, 31, v{t + 1}
    s_and_b32 s82, s{sMT}, 7
    v_add_u32 v{t + 2}, s82, v{t + 2}
    s_mul_i32 s64, s{sMT}, 147456
    s_lshl_b32 s82, s{sW}, 5
    s_add_u32 s64, s64, s82
    s_add_u32 s63, s{sFL}, {O_Z - O_CNT}
    """)
    for q in range(5):
        p(f"""
        v_add_u32 v{t + 3}, {2 * q}, v{t + 2}
        v_subrev_u32 v{t + 4}, 9, v{t + 3}
        v_min_u32 v{t + 3}, v{t + 3}, v{t + 4}
        v_lshl_add_u32 v{COL[q]}, v{t + 3}, 7, v{t + (q == 4)}
        """)
    p(f"""
    v_bfe_u32 v{t + 6}, v0, 1, 3
    v_and_b32 v{t + 7}, 1, v0
    v_lshlrev_b32 v{t + 7}, 4, v{t + 7}
    s_movk_i32 s82, 0x3f80
    v_lshlrev_b32 v{t + 7}, v{t + 7}, s82
    """)
    for i in range(8):
        p(f"v_cmp_eq_u32 s[{8 + 2 * (i % 4)}:{9 + 2 * (i % 4)}], {i}, v{t + 6}")
        if i % 4 == 3:
            for k in range(4):
                p(f"v_cndmask_b32 v{t + i - 3 + k}, 0, v{t + 7}, s[{8 + 2 * k}:{9 + 2 * k}]")
    return p


def end_phase(p, role, FR, nin, nchk, nain, nachk, pre, lds_rd, spec, b2lds):
    DF = lambda q: 96 + 4 * q
    DA = lambda q: 236 + 4 * q
    OUT = lambda q: 72 + 2 * q
    stages = [[(x[0], int(x[1:])) for x in g.split("+")] for g in spec.split(",")]
    stages = [[(k, t) for k, t in g if t >= (nchk if k == "F" else nachk)] for g in stages]
    stages = [g for g in stages if g]
    preg = lambda k, i: 70 + 2 * (k % 2) + i
    polls = lambda k: flat([y for i, (kind, t) in enumerate(stages[k]) for y in poll_load(t, preg(k, i))])
    zl = f"buffer_load_dword v56, v{vZA}, {srd(SWS)}, s63 offen sc1"
    done = dict(f=0, a=0, q=0, g=False, st=0)

    def mf_f(r):
        q = r // 2
        return [I(f"{MF} {vr(DF(q), 4)}, {vr(SEL + 4 * (r % 2), 4)}, {FR(r, i)}, {'0' if i == 0 and r % 2 == 0 else vr(DF(q), 4)}") for i in range(3)]

    def mf_a(r):
        q = r // 2
        return [I(f"{MF} {vr(DA(q), 4)}, {vr(SEL + 4 * (r % 2), 4)}, {vr(4 * r, 4, 'a')}, {'0' if r % 2 == 0 else vr(DA(q), 4)}")]

    def fin(q):
        t = 64 + 4 * (q % 2)
        for i in range(2):
            p(f"v_lshlrev_b32 v{t + 2 * i}, 16, v{116 + 2 * q + i}\nv_and_b32 v{t + 2 * i + 1}, 0xffff0000, v{116 + 2 * q + i}")
        for i in (0, 2):
            p(f"v_pk_add_f32 {vr(t + i, 2)}, {vr(t + i, 2)}, {vr(DF(q) + i, 2)}")
        for i in (0, 2):
            p(f"v_pk_mul_f32 {vr(t + i, 2)}, {vr(t + i, 2)}, v[56:57] op_sel:[0,1]")
        for i in (0, 2):
            p(f"v_pk_fma_f32 {vr(t + i, 2)}, {vr(DA(q) + i, 2)}, v[56:57], {vr(t + i, 2)} op_sel_hi:[1,0,1]")
        p(f"v_cvt_pk_bf16_f32 v{OUT(q)}, v{t}, v{t + 1}\nv_cvt_pk_bf16_f32 v{OUT(q) + 1}, v{t + 2}, v{t + 3}")
        if q < 4 and OPT["bperm"]:
            p(f"ds_bpermute_b32 v{OUT(q)}, v6, v{OUT(q)}\nds_bpermute_b32 v{OUT(q) + 1}, v6, v{OUT(q) + 1}")

    def stores():
        for q in range(done["st"], done["q"]):
            p(f"buffer_store_dwordx2 {vr(OUT(q), 2)}, v{COL[q]}, {srd(SOUT)}, s64 offen")
        done["st"] = done["q"]

    def work(nf, na):
        for r in range(done["a"], na):
            p.extend(mf_a(r))
        for r in range(done["f"], nf):
            p.extend(mf_f(r))
        done["f"], done["a"] = max(nf, done["f"]), max(na, done["a"])
        if na and not done["g"]:
            p("v_mul_f32 v56, 0xbfb8aa3b, v56\nv_exp_f32 v56, v56\ns_nop 0\nv_add_f32 v56, 1.0, v56\nv_rcp_f32 v56, v56\ns_nop 0\nv_sub_f32 v57, 1.0, v56")
            done["g"] = True
        while done["q"] < 5 and min(2 * done["q"] + 2, 9) <= min(nf, na):
            fin(done["q"])
            done["q"] += 1

    if nachk:
        p(zl)
    for r in range(nin, nchk):
        p.extend(f_loads(r, FR))
    for r in range(nain, nachk):
        p.extend(a_load(r))
    p.extend(polls(0))
    p(f"""
    v_lshrrev_b32 v5, 5, v0
    v_bfe_u32 v7, v0, 2, 2
    v_lshlrev_b32 v6, 3, v7
    v_lshl_add_u32 v5, v5, 5, v6
    s_add_u32 s59, s65, {b2lds}
    v_add_u32 v5, s59, v5
    v_and_b32 v6, 3, v0
    v_lshl_add_u32 v6, v6, 2, v7
    v_and_or_b32 v6, v0, 48, v6
    v_lshlrev_b32 v6, 2, v6
    """)
    p.extend(pre)
    p("WAITVM FD")
    rd = list(lds_rd) + [I(f"ds_read_b64 {vr(116 + 2 * q, 2)}, v5 offset:{64 * q}") for q in range(5)]
    if lds_rd:
        mf = [x for r in range(nin) for x in mf_f(r)] + [x for r in range(nain) for x in mf_a(r)]
        for x, y in zip(mf, lds_rd):
            x.deps = [y]
        p("KEEP 6")
        p.extend(rd[:10])
        p.extend(sched2(mf, [list(enumerate(rd[10:]))]))
        p("KEEP 2")
        done["f"], done["a"] = nin, nain
    else:
        p.extend(rd)
    stamp(p, "e_setup")
    p("s_waitcnt lgkmcnt(0)\nWAITVM P8\ns_barrier")
    p.extend(flat(signal(8)))
    nf, na = nchk, nachk
    for k, g in enumerate(stages):
        for i, (kind, t) in enumerate(g):
            p.extend(flat(poll_check(role, t, kind, preg(k, i), k > 0 and i == 0)))
        if k + 1 < len(stages) and k > 0:
            p.extend(polls(k + 1))
        p("s_barrier")
        if k >= len(stages) - 2 or k == 0:
            stamp(p, "e_" + "".join(f"{kind}{t}" for kind, t in g))
        pf, pa = nf, na
        for kind, t in g:
            if kind == "F":
                for r in range(nf, t + 1):
                    p.extend(f_loads(r, FR))
                nf = t + 1
            else:
                if na == 0:
                    p(zl)
                for r in range(na, t + 1):
                    p.extend(a_load(r))
                na = t + 1
        if k + 1 < len(stages) and k == 0:
            p.extend(polls(k + 1))
        stores()
        work(pf, pa)
    assert nf == 9 and na == 9
    stores()
    work(9, 9)
    stores()
    stamp_out(p)
    p("s_endpgm")
    p.extend(stubs[role])


def role_ffn():
    p = P()
    XR = 98304
    p(f"L_ffn:\ns_mul_i32 s{sSRC}, s59, 3\ns_add_u32 s{sSRC}, s{sSRC}, s60\ns_sub_u32 s{sSRC}, s{sSRC}, 1")
    code_touch(p, "ffn", 38)
    p(f"""
    v_lshrrev_b32 v32, 3, v0
    v_and_b32 v33, 7, v0
    s_mul_i32 s59, s{sW}, {32 * 1152}
    v_mul_u32_u24 v34, 1152, v32
    v_add_u32 v34, s59, v34
    v_lshrrev_b32 v35, 1, v32
    v_xor_b32 v35, v33, v35
    v_lshlrev_b32 v35, 4, v35
    v_add_u32 v1, v34, v35
    v_xor_b32 v35, 64, v35
    v_add_u32 v2, v34, v35
    v_add_u32 v2, 8192, v2
    v_add_u32 v3, 16384, v1
    v_add_u32 v4, 16384, v2
    s_and_b32 s69, s{sW}, 1
    s_lshl_b32 s59, s69, 2
    v_and_or_b32 v35, v32, 2, s59
    v_xor_b32 v35, v33, v35
    s_mul_i32 s59, s{sW}, {8 * 9216}
    s_add_u32 s59, s59, 2048
    v_mul_u32_u24 v36, 9216, v32
    v_lshl_add_u32 v36, v35, 4, v36
    v_add_u32 v5, s59, v36
    v_subrev_u32 v6, 896, v5
    v_subrev_u32 v7, 1792, v5
    v_lshlrev_b32 v{vL16}, 4, v0
    s_mul_i32 s62, s{sMT}, 147456
    s_mul_i32 s63, s{sSRC}, 768
    s_lshl_b32 s65, s{sW}, 12
    s_mul_i32 s66, s{sW}, 6144
    {bit_of(OPT["xa"], 59)}
    {bit_of(OPT["xb"], 85)}
    s_mul_i32 s60, s59, 3072
    s_sub_u32 s67, s66, s60
    s_add_u32 s67, s67, 3072
    s_add_u32 s66, s66, s60
    s_mul_i32 s59, s59, 384
    s_mul_i32 s60, s85, {32 * 9216}
    s_add_u32 s48, s60, s59
    s_sub_u32 s49, s60, s59
    s_add_u32 s49, s49, 384
    """)
    srd_const(p, SX, 2048 * 1152)
    srd_const(p, SWA, 576 * 9216 + 2048)
    srd_const(p, SSM, 4608 * 2)
    lt = P()
    srd_const(lt, SWB, 4608 * 1152)
    srd_const(lt, SWS, WS_SIZE)
    lt(f"""
    s_sub_u32 s50, {32 * 9216 + 384}, s49
    s_sub_u32 s51, {32 * 9216 + 384}, s48
    s_mul_i32 s64, s{sSRC}, {384 * 1152}
    v_and_b32 v35, 6, v32
    v_xor_b32 v35, v33, v35
    v_lshl_add_u32 v8, v35, 4, v34
    v_and_b32 v32, 3, v32
    v_and_b32 v33, 3, v0
    v_lshlrev_b32 v33, 3, v33
    v_lshrrev_b32 v34, 4, v0
    v_bfe_u32 v35, v0, 2, 2
    s_lshl_b32 s59, s69, 1
    v_xor_b32 v12, s59, v32
    v_lshl_add_u32 v12, v12, 5, v33
    v_lshl_add_u32 v12, v35, 7, v12
    v_mul_u32_u24 v13, 6144, v34
    s_lshr_b32 s59, s{sW}, 1
    s_lshl_b32 s59, s59, 10
    v_add3_u32 v12, v12, v13, s59
    v_xor_b32 v13, 32, v12
    v_add_u32 v14, 0x10000, v12
    v_add_u32 v15, 0x10000, v13
    v_xor_b32 v22, s{sW}, v32
    v_lshl_add_u32 v22, v22, 5, v33
    v_lshrrev_b32 v35, 2, v0
    v_lshl_add_u32 v22, v35, 7, v22
    v_and_b32 v32, 15, v0
    v_lshrrev_b32 v33, 1, v32
    v_xor_b32 v33, v33, v34
    v_lshlrev_b32 v33, 4, v33
    v_lshl_add_u32 v16, v32, 7, v33
    v_add_u32 v16, {XR}, v16
    s_lshl_b32 s59, s85, 6
    v_xor_b32 v16, s59, v16
    v_xor_b32 v17, 64, v16
    s_mul_i32 s59, s{sW}, {4096 + 64}
    s_add_u32 s59, s59, {XR + 3 * 16384}
    v_lshl_add_u32 v39, v34, 3, s59
    """)
    p("s_branch L_ffn_mid\nL_ffn_mid:" if OPT["split3"] else "L_ffn_mid:")
    p("WAITLGKM")
    stamp_begin(p, "ffn", 20)
    stamp(p, "karg", 2)
    srd_ptr(p, SWA, 12, 2048)
    srd_ptr(p, SX, 4)

    def dma4(base, soff, regs, sr, tag, half=None):
        o = [I(f"s_add_u32 m0, s65, {base}")] + soff
        for q in (range(4) if half is None else (2 * half, 2 * half + 1)):
            o.append(I(f"buffer_load_dwordx4 v{regs[q]}, {srd(sr)}, s60 offen offset:{1024 * q} lds", tag=tag))
        return o

    dma_x = lambda J, half=None: dma4(XR + (J % 4) * 16384, x_soff(J, "s62"), [1, 2, 3, 4], SX, f"R{J}", half)
    dma_w2 = lambda n, base: dma4(base, [I(f"s_add_u32 s60, s{sCH + n // 3}, {(n % 3) * 147456}")], [8, 9, 10, 11], SWB, f"U{n}")

    def dma_w1(j):
        o = w_block(j, 63, 9216)
        for h in range(2):
            o.append(I(f"s_add_u32 m0, s{66 + h}, {(j % 4) * 24576}"))
            o.append(I(f"s_add_u32 s60, s{sWB}, s{48 + 2 * (j % 2) + h}"))
            for q in range(3):
                o.append(I(f"buffer_load_dwordx4 v{5 + q}, {srd(SWA)}, s60 offen offset:{1024 * q} lds", tag=f"W{j}"))
        return o

    p.extend(dma_x(0) + dma_w1(0))
    srd_ptr(p, SSM, 14)
    p(f"s_add_u32 m0, s65, {XR + 3 * 16384}")
    srd_ptr(p, SWB, 16)
    p(f"buffer_load_dwordx4 v{vL16}, {srd(SSM)}, s63 offen lds", tag="W0")
    stamp(p, "d0", 2)
    p("s_branch L_ffn_late\nL_ffn_late:")
    srd_ptr(p, SWS, 26)
    p.extend(lt)
    warm(p, "ffn")
    stamp(p, "warm", 2)
    p("s_branch L_ffn_body\nL_ffn_body:")
    p.extend(dma_w1(1))
    stamp(p, "d1", 2)
    dbl = [int(x) for x in OPT["dbl"].split(",")]
    rho, st = {0: -1}, 1
    for j in range(15):
        for _ in range(2 if j in dbl else 1):
            rho[st] = j
            st += 1
    assert rho[17] == 14
    free_at = lambda sg: rho[sg] + 1 if sg >= 0 else -1
    groups = []
    for j in range(2, 18):
        if j == 2:
            groups.append((-1, dma_x(1)))
        elif j < 17:
            J = (j + 1) // 2
            groups.append((max(free_at(2 * J - 7), 0 if J == 3 else -1), dma_x(J, (j + 1) % 2)))
        groups.append((free_at(j - 4), dma_w1(j)))
    groups.append((12, touch(31, SWB, 64, 1024, True)))
    xslot = lambda st: XR + (st % 4) * 16384
    uslot = {n: xslot(9 + n) for n in range(4)}
    groups += [(free_at(2 * n + 11), dma_w2(n, uslot[n])) for n in range(2)]

    trA = [Addr([12, 14]), Addr([13, 15])]
    xr = [Addr([16]), Addr([17])]
    hw = Addr([18, 19])
    hr = {i: Addr([30 + 2 * i, 31 + 2 * i]) for i in (1, 2, 3)}
    trBs = [Addr([22, 21, 26]), Addr([1, 2, 3]), Addr([4, 5, 6]), Addr([7, 27, 30])]
    xf = lambda j, b: 32 * (j % 4) + 4 * b
    wf = lambda j, t: 128 + 32 * (t // 2) + 8 * (j % 4) + 4 * (t % 2)
    acc = lambda t, b: [160, 64, 192, 128, 224, 96][t] + 4 * b
    rdc = {}

    def reads(j):
        o = []
        for t in range(6):
            off = (j % 4) * 24576 + (t // 2) * 2048
            w = wf(j, t)
            o.append([I(f"ds_read_b64_tr_b16 {vr(w, 2, 'a')}, {trA[t % 2].at(off)}"),
                      I(f"ds_read_b64_tr_b16 {vr(w + 2, 2, 'a')}, {trA[t % 2].at(off + 512)}")])
        xs = [I(f"ds_read_b128 {vr(xf(j, b), 4, 'a')}, {xr[j % 2].at(((j // 2) % 4) * 16384 + b * 2048)}") for b in range(8)]
        rdc[j] = (o, xs)
        if j == 17:
            return o[0] + o[1] + xs + [y for x in o[2:] for y in x]
        return o[0] + xs + [y for x in o[1:] for y in x]

    def mfa(j, t, b):
        x = I(f"{MF} {vr(acc(t, b), 4)}, {vr(wf(j, t), 4, 'a')}, {vr(xf(j, b), 4, 'a')}, {vr(40 + 4 * t if j == 0 else acc(t, b), 4)}")
        x.deps = rdc[j][0][t] + [rdc[j][1][b]]
        return x

    pro, paced = pace(groups, 14, lambda j: OPT["capd"] if j in dbl else OPT["cap"], 44, BG, OPT["npro"])
    k = split_vm(pro, OPT["npre"])
    p.extend(pro[:k])
    p("WAITVM R0 W0")
    for t in range(6):
        p(f"ds_read_b64 {vr(244 + 2 * t, 2)}, v39 offset:{(t // 2) * 256 + (t % 2) * 32}")
    stamp(p, "land", 2)
    p("s_barrier")
    p.extend(reads(0))
    p.extend(pro[k:])
    for t in range(6):
        for i in range(2):
            p(f"v_lshlrev_b32 v{40 + 4 * t + 2 * i}, 16, v{244 + 2 * t + i}")
            p(f"v_and_b32 v{41 + 4 * t + 2 * i}, 0xffff0000, v{244 + 2 * t + i}")
    if not OPT["fastst"]:
        p("WAITLGKM")
    stamp(p, "A0")

    hs = handoff_setup(64, 1)
    addr13 = P()
    for i in (1, 2, 3, 0):
        r = trBs[i].regs
        addr13(f"s_xor_b32 s85, s{sW}, {i}\ns_lshl_b32 s85, s85, 12\nv_add_u32 v{r[0]}, s85, v22")
        addr13(f"v_add_u32 v{r[1]}, 0x10000, v{r[0]}\nv_add_u32 v{r[2]}, 0x20000, v{r[0]}")
    addr11 = P()
    for i in (1, 2, 3):
        addr11(f"s_xor_b32 s85, s{sW}, {i}\ns_lshl_b32 s85, s85, 13\nv_add_u32 v{30 + 2 * i}, s85, v{vL16}\nv_add_u32 v{31 + 2 * i}, 0x10000, v{30 + 2 * i}")
    late = {5: hs[:27], 6: hs[27:46], 7: hs[46:],
            9: P()(f"""
            v_add_u32 v9, 8192, v8
            v_add_u32 v10, 16384, v8
            v_add_u32 v11, 24576, v8
            s_lshl_b32 s85, s{sW}, 13
            v_add_u32 v18, s85, v{vL16}
            v_add_u32 v19, 0x10000, v18
            """),
            10: code_touch2("ffn", 38) + P()(f"""
            s_mul_i32 s85, s68, {12 * 1152}
            v_min_u32 v31, 11, v0
            v_mul_u32_u24 v31, 1152, v31
            v_add_u32 v31, s85, v31
            """),
            11: b2_touch(39) + addr11, 13: addr13}
    assert not any(("v", r) in x.reads for r in (1, 2, 3, 4, 5, 6, 7, 30) for _, x in paced[13])
    assert not any(("v", 31) in x.reads for j in (10, 11) for _, x in paced[j])
    for j in range(14):
        mf = [mfa(j, t, b) for t in range(6) for b in range(8)]
        sts = [k for k in rho if rho[k] == j]
        tags = " ".join(f"W{k} R{k // 2}" for k in sts)
        gemm_step(p, j, mf, tags, [x for k in sts for x in reads(k)], paced[j], [(4, x) for x in late.get(j, [])])
        p("WAITLGKM")
        if j in (0, 1, 3, 8):
            stamp(p, f"A{j + 1}", 2)
        if j in (10, 11, 12):
            stamp(p, f"A{j + 1}", 3)
    stamp(p, "A14")

    r17 = reads(17)
    uns = [(u, b) for u in range(3) for b in range(8)]
    mf, done = [], {}
    mf += [mfa(j, e, b) for j in (14, 15, 16) for b in range(3) for e in range(2)]
    for u, b in uns:
        mf += [mfa(j, 2 * u + e, b) for j in ((17,) if u == 0 and b < 3 else (14, 15, 16, 17)) for e in range(2)]
        done[u, b] = (len(mf) - 1, mf[-2:])
    G = len(mf)
    B0 = OPT["b0"]
    bar_b, bar_0 = I("s_barrier"), I("s_barrier")
    t_rd = [(0, [I("WAITVM W17 R8 T", cost=1), I("s_barrier")])] + [(1, x) for x in r17]
    t_rd.append((16, [I("WAITLGKM", cost=1), bar_b]))
    if OPT["stamp"] >= 3:
        t_rd += [(g, stamp_ins(f"g{g}")) for g in (17, 32, 64, 120)]
    t_dma = []
    for k, x in enumerate(dma_w2(2, uslot[2]) + dma_w2(3, uslot[3])):
        x.after = [bar_b]
        t_dma.append((17 + OPT["udist"] * k, x))
    own, s_h2 = {}, []
    dead = {0: B0 - 3, 1: G + 13, 2: G + 45}
    items = []
    for u, b in uns:
        c, d = acc(2 * u, b), acc(2 * u + 1, b)
        o = [I(f"v_mul_f32 v{r + i}, v{r + i}, |v{r + i}|") for r in (c, d) for i in range(4)]
        for x in o:
            x.deps = done[u, b][1]
        o += [I(f"v_cvt_pk_bf16_f32 v{c + i}, v{r}, v{r + 1}") for i, r in enumerate((c, c + 2, d, d + 2))]
        own[u, b] = [I(f"v_pk_max_i16 v{c + i}, v{c + i}, 0") for i in range(4)]
        w = I(f"ds_write_b128 {hw.wr(u * 32768 + b * 1024, vr(c, 4))}", tag=f"H{u}")
        w.after = [bar_b]
        items += [(done[u, b][0] + 4, x, u) for x in o + own[u, b] + [w]]
    g_first = items[0][0]
    for n, (e, x, u) in enumerate(items):
        s_h2.append((e, x, max(e, min(dead[u], g_first + 2 + (n * (dead[2] - g_first - 2)) // len(items)))))
    land = {(0, 1): "a224", (0, 2): "a128", (0, 3): "a160", (1, 1): "v128", (1, 2): "a0", (1, 3): "a32",
            (2, 1): "a64", (2, 2): "a96", (2, 3): "a192"}

    def hreg(ks, b):
        u, i = divmod(ks, 4)
        if i == 0:
            return vr(acc(2 * u, b), 4)
        return vr(int(land[u, i][1:]) + 4 * b, 4, land[u, i][0])

    hrd = {(4 * u + i, b): I(f"ds_read_b128 {hreg(4 * u + i, b)}, {hr[i].at(u * 32768 + b * 1024)}") for u, i in land for b in range(8)}
    hdep = lambda ks, b: own[ks // 4, b] if ks % 4 == 0 else [hrd[ks, b]]
    t_hook = [(B0 - 50, x) for x in poll_load("init")]
    t_rd += [(B0 - 1, x) for x in poll_check("ffn", "init", "init")]
    t_rd.append((B0, [I("WAITLG H0", cost=0), I("WAITVM U0", cost=1), bar_0]))
    if OPT["stamp"] >= 1:
        t_rd.append((G - 18, stamp_ins("A18m")))
    t_hook += [(G + 50, x, G + 92) for x in page_setup()] + [(G + 130, x) for x in b2_addr(31, 13)]
    SL = OPT["slack"]
    chk_at = {3 * r + SL: r for r in range(9) if 3 * r + SL <= 26}
    assert SL > 3 + OPT["sig"]
    nchk = len(chk_at)
    nin = sum(1 for n in chk_at if n < 25)
    sig_at = {min(3 * t + 3 + OPT["sig"], 26): t for t in range(8)}
    ain = dict(tuple(int(y) for y in x.split(":")) for x in OPT["ain"].split(",") if x)
    nain = 0
    units, hooks, free, fslot = [], [], [], {}
    issued = 4
    for n in range(27):
        u = dict(tile=n // 3, tag=f"U{n}", wtags=[], pre=[], dma=[])
        if n >= 1:
            free.append(uslot[n - 1])
        if n == 3:
            free += [16384 * i for i in range(6)]
        fd = []
        if n in sig_at:
            if not OPT["nosig"]:
                u["wtags"].append(f"P{sig_at[n]}")
            u["pre"] += signal(sig_at[n])
        if n in chk_at:
            r = chk_at[n]
            if not OPT["nochk"]:
                hooks += [(G + 32 * n + 16 - OPT["pdist"], y) for y in poll_load(r)]
                u["chk"] = poll_check("ffn", r, "F")
            if n == 26 and OPT["achk"] >= 0:
                hooks += [(G + 32 * n + 18 - OPT["pdist"], y) for y in poll_load(OPT["achk"], sP1)]
                u["chk"] = [flat(u["chk"] + poll_check("ffn", OPT["achk"], "A", sP1))]
            if r < nin:
                fslot[r] = free.pop(0)
                fd = [I(f"s_add_u32 m0, s65, {fslot[r]}")]
                for i in range(3):
                    fd += [I(f"s_add_u32 s60, s{PGS[r // 3]}, {((r % 3) * 16 + 4 * i) * SRCS - 1024 * i}"),
                           I(f"buffer_load_dwordx4 v{vCON}, {srd(SWS)}, s60 offen offset:{1024 * i} sc1 lds", tag="FD")]
        if n in ain:
            assert n not in chk_at
            hooks += [(G + 32 * n + 16 - min(OPT["pdist"], 30), y) for y in poll_load(ain[n], sP1)]
            u["chk"] = poll_check("ffn", ain[n], "A", sP1)
            for r in range(nain, ain[n] + 1):
                fd += [I(f"s_add_u32 m0, s65, {fslot[r] + 3072}"), I(f"s_add_u32 s60, s{PGS[r // 3]}, {((r % 3) * 16 + 12) * SRCS}"),
                       I(f"buffer_load_dwordx4 v{vCON}, {srd(SWS)}, s60 offen sc1 lds", tag="FD")]
            nain = ain[n] + 1
        if n == 24:
            b2lds = free.pop(0)
            fd += b2_dma(31, b2lds)
        k = 0
        while issued < 27 and issued <= n + OPT["look"] and free and k < (1 if fd else 2):
            uslot[issued] = free.pop(0)
            u["dma"] += dma_w2(issued, uslot[issued])
            issued += 1
            k += 1
        assert issued >= min(27, n + 3)
        u["dma"] += fd
        units.append(u)
    for n, u in enumerate(units):
        u["ks"] = [(4 * (n % 3) + q, uslot[n], 2048) for q in range(4)]
    units[0]["ltag"], units[1]["ltag"] = "H1", "H2"
    r0, s_rd, s_dma, s_ep = phase_b(units, hreg, hdep, lambda qi: trBs[qi], OPT["stg"], mf)
    t_rd += [(G - 15 + 4 * k, x) for k, x in enumerate(r0)]
    s_end = [(G + 32 * 24, x) for x in end_setup()]
    s_end[0][1].after = [[x for x in flat([u["dma"] for u in units]) if x.tag == "U26"][-1]]
    s_h = []
    for u in range(3):
        bar = [bar_0, units[0]["bar"], units[1]["bar"]][u]
        g0 = [max(B0, 128) + 1, G + 17, G + 49][u]
        for n in range(24):
            x = hrd[4 * u + 1 + n // 8, n % 8]
            x.after = [bar]
            e = g0 + (2 * n if u == 0 else n)
            s_h.append((e, x, max(e, G + 32 * u + 8 + n - 8)))
    p.extend((sched2 if OPT["s2"] else sched)(mf, [t_rd + s_rd, s_h, s_ep, t_dma + s_dma, t_hook + sorted(hooks, key=lambda h: h[0]), s_h2 + s_end]))
    stamp(p, "Bend")
    pre = P()(f"v_add_u32 v2, s65, v{vL16}\nv_add_u32 v3, 0x10000, v2\nv_add_u32 v4, 0x20000, v2")
    fa = Addr([2, 3, 4])
    rd = [I(f"ds_read_b128 {FRV(r, i)}, {fa.at(fslot[r] + i * 1024)}") for r in range(nin) for i in range(3)]
    rd += [I(f"ds_read_b128 {vr(4 * r, 4, 'a')}, {fa.at(fslot[r] + 3072)}") for r in range(nain)]
    end_phase(p, "ffn", FRV, nin, nchk, nain, max(nain, OPT["achk"] + 1), pre, rd, OPT["est"], b2lds)
    return p


def role_att():
    p = P()
    WSL, XR, XSL, GT, ZT = 28672, 114688, 20480, 155648, 162304
    EO, RO, OB = 64512, 20736, 4736
    WO = [129024, 64512, 84992, 41472, 105984]
    p(f"L_att:\ns_add_u32 s{sSRC}, s59, 12")
    code_touch(p, "att", 39)
    p(f"""
    s_sub_u32 s67, s{sSRC}, 12
    v_lshrrev_b32 v32, 3, v0
    v_and_b32 v33, 7, v0
    s_mul_i32 s63, s{sMT}, 147456
    s_and_b32 s69, s{sW}, 1
    s_lshr_b32 s60, s{sW}, 1
    s_mul_i32 s59, s69, 64
    s_add_u32 s59, s59, s60
    s_mul_i32 s59, s59, 1152
    s_add_u32 s59, s59, s63
    v_lshrrev_b32 v35, 1, v32
    v_xor_b32 v35, v33, v35
    v_lshlrev_b32 v35, 4, v35
    v_mul_u32_u24 v34, 2304, v32
    v_add3_u32 v1, v34, v35, s59
    v_xor_b32 v36, 64, v35
    s_add_u32 s59, s59, {16 * 1152 - 1024}
    v_add3_u32 v2, v34, v36, s59
    v_add_u32 v3, {32 * 1152 - 2048}, v1
    v_add_u32 v4, {32 * 1152 - 2048}, v2
    s_sub_u32 s59, s{sW}, 16
    s_mul_i32 s59, s59, 1152
    s_add_u32 s59, s59, s63
    s_cmp_eq_u32 s{sMT}, 0
    s_cselect_b32 s62, 0, 2
    s_cmp_ge_u32 s{sW}, s62
    s_cselect_b32 s59, {OOB}, s59
    s_lshl_b32 s62, s69, 6
    v_xor_b32 v36, s62, v35
    v_add3_u32 v5, v34, v36, s59
    s_lshl_b32 s59, s69, 2
    v_and_or_b32 v38, v32, 2, s59
    v_xor_b32 v38, v33, v38
    s_mul_i32 s59, s{sW}, {8 * 3456}
    s_add_u32 s59, s59, 2048
    v_mul_u32_u24 v36, 3456, v32
    v_add_u32 v36, s59, v36
    v_lshl_add_u32 v6, v38, 4, v36
    v_subrev_u32 v7, 896, v6
    v_subrev_u32 v8, 1792, v6
    v_lshrrev_b32 v35, 1, v38
    v_subrev_u32 v37, s67, v35
    v_and_b32 v37, 256, v37
    v_add_u32 v6, v6, v37
    v_subrev_u32 v27, 896, v6
    v_mul_u32_u24 v37, 1152, v35
    v_add_u32 v35, 1, v35
    v_lshrrev_b32 v35, 2, v35
    v_lshl_add_u32 v36, v35, 31, v36
    v_and_b32 v35, 1, v38
    v_lshl_add_u32 v37, v35, 4, v37
    s_lshl_b32 s59, s67, 5
    s_sub_u32 s59, s59, {2048 - 256}
    v_add3_u32 v9, v37, v36, s59
    s_lshl_b32 s64, s67, 8
    s_lshl_b32 s65, s{sW}, 12
    s_mul_i32 s66, s{sW}, 7168
    s_lshl_b32 s82, s{sW}, 10
    {bit_of(OPT["xb"], 85)}
    s_mul_i32 s48, s85, {32 * 3456}
    """)
    srd_const(p, SX, 2048 * 1152)
    srd_const(p, SWA, 576 * 3456 + 2048)
    p("s_branch L_att_mid\nL_att_mid:" if OPT["split3"] else "L_att_mid:")
    p("WAITLGKM")
    stamp_begin(p, "att", 47)
    stamp(p, "karg", 2)
    srd_ptr(p, SWA, 6, 2048)
    srd_ptr(p, SX, 4)

    def dma5(base, regs, sr, soff, tag):
        o = [I(f"s_add_u32 m0, s65, {base}")] + soff
        for q in range(4):
            o.append(I(f"buffer_load_dwordx4 v{regs[q]}, {srd(sr)}, s60 offen offset:{1024 * q} lds", tag=tag))
        o.append(I(f"s_add_u32 m0, s82, {base + 16384}"))
        o.append(I(f"buffer_load_dwordx4 v{regs[4]}, {srd(sr)}, s60 offen lds", tag=tag))
        return o

    dma_x = lambda J: dma5(XR + (J % 2) * XSL, [1, 2, 3, 4, 5], SX, x_soff(J, "0")[:2 if J < 8 else 1], f"R{J}")
    dma_wo = lambda t: dma5(WO[t % 5], [15, 16, 17, 18, 19], SWB, [I(f"s_mov_b32 s60, s{sCH + t}")], f"O{t}")

    def dma_w(j):
        tg = f"W{j}"
        o = w_block(j, 64, 3456) + [I(f"s_add_u32 m0, s66, {(j % 4) * WSL}"), I(f"s_add_u32 s60, s{sWB}, s{48 + j % 2}")]
        for q, r in ((1, 7), (3, 8), (0, 6), (2, 27)):
            o.append(I(f"buffer_load_dwordx4 v{r}, {srd(SWA)}, s60 offen offset:{1024 * q} lds", tag=tg))
        o.append(I(f"s_add_u32 m0, s66, {(j % 4) * WSL + 4096}"))
        o.append(I("s_add_u32 s59, s60, 2304"))
        o.append(I(f"buffer_load_dwordx4 v9, {srd(SWA)}, s60 offen offset:2048 lds", tag=tg))
        o.append(I(f"buffer_load_dwordx4 v6, {srd(SWA)}, s59 offen lds", tag=tg))
        o.append(I(f"buffer_load_dwordx4 v7, {srd(SWA)}, s59 offen offset:1024 lds", tag=tg))
        return o

    p.extend(dma_x(0) + dma_w(0))
    stamp(p, "d0", 2)
    p("s_branch L_att_late\nL_att_late:")
    p(f"""
    s_lshl_b32 s59, s{sW}, 6
    v_add_u32 v42, s59, v0
    v_lshlrev_b32 v43, 1, v42
    s_lshl_b32 s59, s85, 6
    v_xor_b32 v43, s59, v43
    s_lshl_b32 s59, s{sG}, 7
    v_xor_b32 v44, s59, v43
    v_xor_b32 v45, 512, v44
    s_sub_u32 s49, {32 * 3456}, s48
    """)
    srd_ptr(p, SSM, 20); srd_const(p, SSM, 576 * 2)
    for i in range(3):
        p(f"buffer_load_ushort v{48 + 2 * i}, v{[44, 45, 43][i]}, {srd(SSM)}, 0 offen offset:{[0, 0, 1024][i]}")
    srd_ptr(p, SWB, 8); srd_const(p, SWB, 576 * 1152)
    srd_ptr(p, SWS, 26); srd_const(p, SWS, WS_SIZE)
    p(f"""
    v_and_b32 v34, 3, v42
    v_lshlrev_b32 v34, 3, v34
    v_bfe_u32 v35, v42, 2, 1
    v_lshl_add_u32 v34, v35, 9, v34
    v_bfe_u32 v35, v42, 3, 4
    v_lshl_add_u32 v34, v35, 5, v34
    v_lshrrev_b32 v35, 7, v42
    v_lshl_add_u32 v34, v35, 10, v34
    v_add_u32 v43, {GT}, v34
    v_and_b32 v36, 3, v32
    v_and_b32 v37, 3, v0
    v_lshlrev_b32 v37, 3, v37
    v_lshrrev_b32 v34, 4, v0
    v_bfe_u32 v35, v0, 2, 2
    v_xor_b32 v36, s{sW}, v36
    v_lshl_add_u32 v36, v36, 5, v37
    v_lshl_add_u32 v36, v35, 7, v36
    v_mul_u32_u24 v10, 7168, v34
    v_add_u32 v10, v10, v36
    v_lshl_add_u32 v20, v34, 10, v36
    v_add_u32 v12, 6144, v10
    s_cmp_lt_u32 s{sW}, s67
    s_cselect_b32 s59, 1024, 0
    s_sub_u32 s60, 1024, s59
    v_add_u32 v25, s60, v10
    v_add_u32 v10, s59, v10
    v_add_u32 v11, 0x10000, v10
    v_add_u32 v29, 0x10000, v25
    v_lshlrev_b32 v37, 5, v34
    v_lshl_add_u32 v37, v35, 3, v37
    v_add_u32 v37, {GT}, v37
    s_cmp_eq_u32 s{sW}, 3
    s_cselect_b64 vcc, -1, 0
    s_mov_b32 s62, {WSL}
    s_mov_b32 s83, {-3 * WSL}
    s_cselect_b32 s62, 128, s62
    s_cselect_b32 s83, 640, s83
    v_cndmask_b32 v12, v12, v37, vcc
    v_and_b32 v36, 15, v0
    v_lshrrev_b32 v37, 1, v36
    v_xor_b32 v37, v37, v34
    v_lshlrev_b32 v37, 4, v37
    v_lshl_add_u32 v13, v36, 7, v37
    v_add_u32 v13, {XR}, v13
    s_lshl_b32 s59, s85, 6
    v_xor_b32 v13, s59, v13
    v_xor_b32 v14, 64, v13
    s_mul_i32 s68, s67, {144 * 1152}
    """)
    warm(p, "att")
    stamp(p, "warm", 2)
    p("s_branch L_att_body\nL_att_body:")
    p.extend(dma_w(1))
    rho, st = {0: -1}, 1
    for j in range(16):
        for _ in range(2 if j == OPT["dbla"] else 1):
            rho[st] = j
            st += 1
    assert rho[17] == 15
    free_at = lambda sg: rho[sg] + 1 if sg >= 0 else -1
    groups = [(-1, dma_x(1)), (-1, dma_w(2)), (-1, dma_w(3))]
    rest = [(free_at(2 * J - 3), 0, dma_x, J) for J in range(2, 9)] + [(max(free_at(j - 4), 1), 1, dma_w, j) for j in range(4, 18)]
    groups += [(e, f(k)) for e, _, f, k in sorted(rest, key=lambda r: (r[0], r[1], r[3]))]
    trA = [Addr([10, 11]), Addr([25, 29])]
    xr = [Addr([13]), Addr([14])]
    xf = lambda j, b: vr(36 * (j % 3) + 4 * b, 4, "a")
    wf = lambda j, t: 108 + 28 * (j % 3) + 4 * t
    nb = [8, 8, 9, 9, 9, 9, 9]
    accbase = [48, 80, 112, 148, 184, 220]
    A6 = 192
    acc = lambda t, b: vr(accbase[t] + 4 * b, 4) if t < 6 else vr(A6 + 4 * b, 4, "a")
    rdc = {}

    def reads(j):
        o = []
        for t in range(7):
            w = wf(j, t)
            if t < 6:
                off = (j % 4) * WSL + (t // 2) * 2048
                a0, a1 = trA[t % 2].at(off), trA[t % 2].at(off + 512)
            else:
                a0, a1 = "v12", "v12 offset:512"
            o.append([I(f"ds_read_b64_tr_b16 {vr(w, 2, 'a')}, {a0}"), I(f"ds_read_b64_tr_b16 {vr(w + 2, 2, 'a')}, {a1}")])
        xs = [I(f"ds_read_b128 {xf(j, b)}, {xr[j % 2].at(((j // 2) % 2) * XSL + b * 2048)}") for b in range(9)]
        rdc[j] = (o, xs)
        return o[0] + xs + [y for x in o[1:] for y in x] + [I(f"v_add_u32 v12, s{83 if j % 4 == 3 else 62}, v12")]

    def mfa(j, t, b):
        x = I(f"{MF} {acc(t, b)}, {vr(wf(j, t), 4, 'a')}, {xf(j, b)}, {'0' if j == 0 else acc(t, b)}")
        x.deps = rdc[j][0][t] + [rdc[j][1][b]]
        return x

    pro, paced = pace(groups, 15, OPT["capa"], 56, BG, OPT["nproa"])
    k = split_vm(pro, OPT["nprea"])
    p.extend(pro[:k])
    for i in range(3):
        p(f"v_lshl_or_b32 v{48 + 2 * i}, v{48 + 2 * i}, 16, v{48 + 2 * i}\nv_mov_b32 v{49 + 2 * i}, v{48 + 2 * i}")
        p(f"ds_write_b64 v43, {vr(48 + 2 * i, 2)} offset:{2048 * i}")
    p("WAITVM R0 W0\nWAITLGKM")
    stamp(p, "land", 2)
    p("s_barrier")
    p.extend(reads(0))
    p.extend(pro[k:])
    if not OPT["fastst"]:
        p("WAITLGKM")
    stamp(p, "A0")

    hs = handoff_setup(68, 0x100)
    ci_a, race, pub = counter_init(42)
    wo_addr = P()(f"""
    s_mul_i32 s85, s{sW}, {36 * 1152}
    v_mul_u32_u24 v34, 1152, v32
    v_add_u32 v34, s85, v34
    v_and_b32 v35, 2, v32
    v_xor_b32 v35, v33, v35
    v_lshlrev_b32 v35, 4, v35
    v_add_u32 v15, v34, v35
    v_xor_b32 v35, 64, v35
    v_add_u32 v16, v34, v35
    v_add_u32 v16, 8192, v16
    v_add_u32 v17, 16384, v15
    v_add_u32 v18, 16384, v16
    v_lshrrev_b32 v34, 2, v32
    v_lshl_add_u32 v34, v34, 5, v32
    s_mul_i32 s85, s{sW}, 72
    v_add3_u32 v34, v34, s85, 32
    v_mul_u32_u24 v34, 1152, v34
    v_lshl_add_u32 v34, v38, 4, v34
    s_lshl_b32 s85, s{sW}, 30
    s_and_b32 s85, s85, {OOB}
    v_add_u32 v19, s85, v34
    v_add_u32 v21, 0x10000, v20
    v_add_u32 v22, 0x20000, v20
    """)
    ep_addr = P()(f"""
    v_and_b32 v40, 15, v0
    v_lshrrev_b32 v41, 4, v0
    v_mul_u32_u24 v30, 576, v41
    v_lshl_add_u32 v30, v40, 3, v30
    s_sub_u32 s17, s{sW}, s67
    s_and_b32 s17, s17, 3
    s_mul_i32 s85, s17, 2304
    v_add_u32 v30, s85, v30
    v_add_u32 v31, {EO}, v30
    v_lshrrev_b32 v42, 3, v40
    v_mul_u32_u24 v42, {EO - 64}, v42
    v_add_u32 v32, v30, v42
    s_mul_i32 s85, s{sW}, 9
    s_add_u32 s85, s85, 8
    s_min_u32 s85, s85, 27
    s_sub_u32 s85, s85, s17
    s_mul_i32 s85, s85, 2304
    v_add_u32 v33, s85, v30
    v_add_u32 v34, s85, v31
    v_add_u32 v35, s85, v32
    s_mul_i32 s85, s{sW}, {9 * 576}
    v_lshl_add_u32 v36, v0, 3, s85
    v_add_u32 v37, {EO}, v36
    v_and_b32 v42, 3, v0
    v_lshl_add_u32 v42, v41, 2, v42
    v_bfe_u32 v43, v0, 2, 2
    v_lshl_add_u32 v42, v42, 2, v43
    v_lshl_add_u32 v38, v42, 3, s85
    v_add_u32 v39, {EO}, v38
    s_add_u32 s85, s{sW}, 1
    s_and_b32 s85, s85, 4
    s_lshl_b32 s85, s85, 7
    s_sub_u32 s85, {ZT + 512}, s85
    v_lshl_add_u32 v46, v40, 3, s85
    s_lshl_b32 s85, s{sMT}, 6
    v_add_u32 v42, s85, v0
    v_mov_b32 v43, {hex(f2u(-2.0 ** 100))}
    v_cmp_gt_u32 s[8:9], 8, v42
    v_cmp_gt_u32 s[10:11], 4, v42
    """)
    for i in range(8):
        ep_addr(f"v_cndmask_b32 v{2 + i}, 0, v43, s[{8 + 2 * (i // 4)}:{9 + 2 * (i // 4)}]")

    def epi(t, b, n):
        tmp = 40 + 2 * (n % 3)
        o = []
        if t < 6:
            c = accbase[t] + 4 * b
            base, off = 30, (9 * (t // 2) + 4 * (t % 2)) * 2304
        else:
            c = 48 + 4 * b
            base, off = 33, 0
            if b < 8:
                o.append(I(f"ds_write_b32 v46, a{A6 + 4 * b} offset:{128 * (b % 4) + 4 * (b // 4)}"))
            o += [I(f"v_accvgpr_read_b32 v{c + i}, a{A6 + 4 * b + i}") for i in range(4)]
        o += [I(f"v_cvt_pk_bf16_f32 v{tmp}, v{c}, v{c + 1}"), I(f"v_cvt_pk_bf16_f32 v{tmp + 1}, v{c + 2}, v{c + 3}")]
        o.append(I(f"ds_write_b64 v{base + b // 4}, {vr(tmp, 2)} offset:{off + (128 * (b % 4) + 64 if b < 8 else 0)}"))
        return o

    late = {1: hs[27:46], 2: ci_a, 3: hs[46:], 9: hs[:27], 10: wo_addr,
            12: code_touch2("att", 39) + b2_touch(46), 14: page_setup() + ep_addr}
    wo_t = P()(f"""
    s_bfe_u32 s85, s2, 0x30003
    s_lshl_b32 s85, s85, 2
    s_add_u32 s85, s85, s{sW}
    s_mul_i32 s85, s85, {5 * 1152}
    v_min_u32 v23, 4, v0
    v_mul_u32_u24 v23, 1152, v23
    v_add_u32 v23, s85, v23
    """)
    wo_t(f"buffer_load_dword a255, v23, {srd(SWB)}, s68 offen offset:1024")
    wo_t[-1].writes = set()
    assert not paced[14]
    tbs = [(t, b) for t in range(7) for b in range(nb[t])]
    for j in range(15):
        mf = [mfa(j, t, b) for t, b in tbs]
        sts = [k for k in rho if rho[k] == j]
        tags = " ".join(f"W{k} R{k // 2}" for k in sts)
        if j == 4:
            tags += " FI"
        side = [(4, x) for x in late.get(j, [])]
        hi = []
        if j == 4:
            hi = race(1)[:1]
        if 5 <= j < 5 + OPT["nrace"]:
            hi = race(j - 5)
        if j == 5 + OPT["nrace"]:
            side = [(2, x) for x in pub] + side
        if j == 13:
            side += [(1, x) for x in poll_load("init")]
        if j == 13:
            side += [(4, x) for x in wo_t[:-1]]
        gemm_step(p, j, mf, tags, [x for k in sts for x in reads(k)], paced[j], side, (), hi)
        if j == 13:
            p.extend(flat(poll_check("att", "init", "init")))
        p("WAITLGKM")
        if j in (0, 1, 3, 8):
            stamp(p, f"A{j + 1}", 2)
    stamp(p, "A15")
    r17 = reads(17)[:-1]
    N0 = 14
    mf = [mfa(j, t, b) for j in (15, 16) for t, b in tbs[:N0]]
    done = {}
    for n in range(0, len(tbs), 2):
        for j in ((17,) if n < N0 else (15, 16, 17)):
            for tb in tbs[n:n + 2]:
                mf.append(mfa(j, *tb))
                done[tb] = len(mf) - 1
    bar_b = I("s_barrier")
    t_rd = [(0, [I("WAITVM W17 R8", cost=1), I("s_barrier")])] + [(1 + i, x) for i, x in enumerate(r17)]
    t_rd.append((29, [I("WAITLGKM", cost=1), bar_b]))
    misc = P()(f"""
    v_lshlrev_b32 v27, 3, v0
    v_add_u32 v1, {ZT}, v27
    s_min_u32 s59, s{sW}, 1
    s_lshl_b32 s59, s59, 31
    v_add_u32 v27, s59, v27
    s_lshl_b32 s16, s67, 9
    s_add_u32 s16, s16, s{sFL}
    s_add_u32 s16, s16, {O_Z - O_CNT}
    s_mov_b32 s8, 0x11111111
    s_mov_b32 s9, s8
    s_mov_b32 s10, 0x33333333
    s_mov_b32 s11, s10
    s_mov_b32 s12, 0x77777777
    s_mov_b32 s13, s12
    v_mov_b32 v40, 0xffff0000
    v_mov_b32 v41, 0xffff
    v_cndmask_b32 v23, 0, v40, s[8:9]
    v_cndmask_b32 v26, 0, v41, s[10:11]
    v_cndmask_b32 v40, 0, v40, s[12:13]
    v_or_b32 v26, v26, v40
    s_mov_b32 s14, {hex(f2u((18 ** -0.5) * 1.4426950408889634))}
    s_mov_b32 s15, s14
    v_lshrrev_b32 v40, 3, v0
    v_mul_u32_u24 v40, {OB}, v40
    v_and_b32 v41, 7, v0
    v_mul_u32_u24 v41, 288, v41
    v_add_u32 v40, v40, v41
    v_bfe_u32 v42, v0, 1, 3
    v_mul_u32_u24 v42, 288, v42
    v_and_b32 v43, 1, v0
    v_mul_u32_u24 v43, 2432, v43
    v_add_u32 v42, v42, v43
    v_lshrrev_b32 v43, 4, v0
    v_and_b32 v44, 1, v43
    """)
    misc2 = P()(f"""
    s_lshl_b32 s59, s{sW}, 6
    v_add_u32 v10, s59, v40
    s_lshl_b32 s59, s{sW}, 3
    v_add_u32 v11, s59, v40
    v_lshl_add_u32 v13, v43, 4, v42
    v_lshl_add_u32 v14, v44, 4, v42
    """)
    for x in misc2:
        x.after = [r17[-1]]
    t_ep = [(1, x) for x in wo_t[-1:] * bool(OPT["wot"]) + misc] + [(25, x) for x in misc2]
    for n, tb in enumerate(tbs):
        for x in epi(*tb, n):
            if x.kind == "dsw":
                x.after = [bar_b]
            if x.reads & mf[done[tb]].writes:
                x.deps = [mf[done[tb]]]
            t_ep.append((max(done[tb] + 4, 30), x))
    t_dma = []
    for k, x in enumerate(dma_wo(0)):
        x.after = [bar_b]
        t_dma.append((30 + 6 * k, x))
    p.extend(sched2(mf, [t_rd, t_dma, t_ep], state=sstate))
    stamp(p, "Aend")
    p("v_mov_b32 v145, 0\nv_mov_b32 v146, 0\nv_mov_b32 v149, 0\nv_mov_b32 v150, 0")
    AR = [int(x) for x in str(OPT["ar"]).split(",")]
    FRA = lambda r, i: vr(164 + 12 * r + 4 * i, 4, "a") if r < 7 else FRV(r, i)
    if AR[0] >= 0:
        p.extend(flat(poll_load(AR[0])))
    p("WAITLGKM\ns_barrier")
    stamp(p, "join", 2)

    S = lambda u, z: 48 + 12 * u + 4 * z
    grp = [(e, lq) for e in range(2) for lq in range(9)]

    def kq_rd(gi):
        e, lq = grp[gi]
        kb = 112 + 8 * (gi % 4)
        o = [I(f"ds_read_b64 {vr(kb + 2 * z, 2)}, v{36 + e} offset:{RO + lq * 576 + 32 * z}") for z in range(3)]
        if lq == 4:
            o += [I(f"ds_read_b32 v{144 + 4 * e}, v{36 + e} offset:{lq * 576 + 64}"),
                  I(f"ds_read_b32 v{147 + 4 * e}, v{36 + e} offset:{lq * 576 + 68}")]
        else:
            o.append(I(f"ds_read_b64 {vr(kb + 6, 2)}, v{36 + e} offset:{lq * 576 + 64}"))
        return o

    p.extend(kq_rd(0) + kq_rd(1) + kq_rd(2))
    VA = lambda lq, z, e: 12 * lq + 4 * z + 2 * e
    vrd = [I(f"ds_read_b64_tr_b16 {vr(VA(lq, z, e), 2, 'a')}, v{38 + e} offset:{2 * RO + lq * 576 + 32 * z}")
           for lq in range(9) for z in range(3) for e in range(2)]
    tail_rd = [I("ds_read_b64 v[96:97], v1")] + vrd[:12]
    for gi, (e, lq) in enumerate(grp):
        kb = 112 + 8 * (gi % 4)
        nx = kq_rd(gi + 3) if gi + 3 < 18 else []
        for hh in ([0] if lq < 4 else [0, 1] if lq == 4 else [1]):
            u = 2 * e + hh
            q = vr(144 + 4 * e + 2 * hh, 2) if lq == 4 else vr(kb + 6, 2)
            for z in range(3):
                c = vr(S(u, z), 4) if lq != 4 * hh else ["v[2:5]", "v[6:9]", "0"][z]
                p(f"{MF4} {vr(S(u, z), 4)}, {vr(kb + 2 * z, 2)}, {q}, {c}")
                if nx:
                    p.append(nx.pop(0))
                elif gi >= 15:
                    p.append(tail_rd.pop(0))
        p.extend(nx)
    p.extend(tail_rd)
    stamp(p, "qk", 2)
    if AR[0] >= 0:
        p.extend(flat(poll_check("att", AR[0], "F")))
    p("s_barrier")

    sm = P()
    B = lambda u: S(u, 0)
    U4 = range(4)
    for r in (1, 2, 3):
        for u in U4:
            sm(f"v_cndmask_b32 v{B(u) + 8 + r}, v{B(u) + 8 + r}, v{B(u) + r}, s[{6 + 2 * r}:{7 + 2 * r}]")
    for u in U4:
        sm(f"v_max3_f32 v{B(u)}, v{B(u) + 4}, v{B(u) + 5}, v{B(u) + 6}")
    for k in (7, 9):
        for u in U4:
            sm(f"v_max3_f32 v{B(u)}, v{B(u)}, v{B(u) + k}, v{B(u) + k + 1}")
    for u in U4:
        sm(f"v_max_f32 v{B(u)}, v{B(u)}, v{B(u) + 11}")
    for u in U4:
        sm(f"v_mul_f32 v{B(u)}, s14, v{B(u)}")
    for u in U4:
        for k in (4, 6, 8, 10):
            sm(f"v_pk_fma_f32 {vr(B(u) + k, 2)}, {vr(B(u) + k, 2)}, s[14:15], {vr(B(u), 2)} op_sel_hi:[1,1,0] neg_lo:[0,0,1] neg_hi:[0,0,1]")
    for u in U4:
        for k in range(4, 12):
            sm(f"v_exp_f32 v{B(u) + k}, v{B(u) + k}")
    for u in U4:
        sm(f"v_pk_add_f32 {vr(B(u), 2)}, {vr(B(u) + 4, 2)}, {vr(B(u) + 6, 2)}")
        sm(f"v_pk_add_f32 {vr(B(u) + 2, 2)}, {vr(B(u) + 8, 2)}, {vr(B(u) + 10, 2)}")
    for u in U4:
        sm(f"v_pk_add_f32 {vr(B(u), 2)}, {vr(B(u), 2)}, {vr(B(u) + 2, 2)}")
    for u in U4:
        sm(f"v_add_f32 v{B(u)}, v{B(u)}, v{B(u) + 1}")
    for u in U4:
        sm(f"v_rcp_f32 v{B(u)}, v{B(u)}")
    for u in U4:
        for k in (4, 6, 8, 10):
            sm(f"v_pk_mul_f32 {vr(B(u) + k, 2)}, {vr(B(u) + k, 2)}, {vr(B(u), 2)} op_sel_hi:[1,0]")
    for u in U4:
        for k in (4, 8):
            sm(f"v_cvt_pk_bf16_f32 v{B(u) + k}, v{B(u) + k}, v{B(u) + k + 1}")
            sm(f"v_cvt_pk_bf16_f32 v{B(u) + k + 1}, v{B(u) + k + 2}, v{B(u) + k + 3}")
    for u in U4:
        for i in range(2):
            sm(f"v_and_b32 v{B(u) + i}, v{[23, 26][i]}, v{B(u) + 8 + i}")
            sm(f"v_bfi_b32 v{B(u) + 8 + i}, v{[23, 26][i]}, 0, v{B(u) + 8 + i}")
    vmq = [I(f"buffer_store_dwordx2 v[96:97], v27, {srd(SWS)}, s16 offen sc1")] + dma_wo(1) + dma_wo(2) + [y for r in range(AR[0] + 1) for y in f_loads(r, FRA)]
    nv = sum(1 for x in vmq if x.kind in VM)
    step = max(1, len(sm) // (nv + 1))
    for i, x in enumerate(sm):
        p.append(x)
        if i % step == step - 1:
            while vmq:
                y = vmq.pop(0)
                p.append(y)
                if y.kind in VM:
                    break
    p.extend(vmq)
    if AR[1] > AR[0]:
        p.extend(flat(poll_load(AR[1])))
    stamp(p, "smax", 2)
    po = lambda e, d: 192 + 20 * e + d
    D = lambda lq, hh, e: 100 + 8 * (lq + hh) + 4 * e
    m4, cv = [], []
    for lq in range(9):
        hhs = [0] if lq < 4 else [0, 1] if lq == 4 else [1]
        for z in range(3):
            for hh in hhs:
                for e in range(2):
                    d = vr(D(lq, hh, e), 4)
                    m4.append(I(f"{MF4} {d}, {vr(VA(lq, z, e), 2, 'a')}, {vr(S(2 * e + hh, z), 2)}, {d if z else '0'}"))
                    m4[-1].deps = [vrd[6 * lq + 2 * z + e]]
    for g in range(5):
        for e in range(2):
            c = []
            for lq in ((2 * g, 2 * g + 1) if g < 4 else (8,)):
                lo, hi_ = D(lq, int(lq > 4), e), D(lq, int(lq >= 4), e)
                c += [I(f"v_cvt_pk_bf16_f32 v{po(e, 2 * lq)}, v{lo}, v{lo + 1}"), I(f"v_cvt_pk_bf16_f32 v{po(e, 2 * lq + 1)}, v{hi_ + 2}, v{hi_ + 3}")]
            w = I(f"ds_write_b128 v10, {vr(po(e, 4 * g), 4)} offset:{e * 2432 + 16 * g}") if g < 4 else \
                I(f"ds_write_b64 v11, {vr(po(e, 16), 2)} offset:{e * 2432 + 256}")
            cv.append((c, w))
    for x, y in zip(m4[:42], vrd[12:]):
        p.extend([x, y])
    rest = m4[42:]
    for c, w in cv:
        for x in c:
            if rest and x is not c[0]:
                p.append(rest.pop(0))
            p.append(x)
        if rest:
            p.append(rest.pop(0))
        p.append(w)
    assert not rest
    stamp(p, "core")
    if OPT["stamp"]:
        p("v_mov_b32 v30, v47")
        cur["vst"] = 30
    if AR[1] > AR[0]:
        p.extend(flat(poll_check("att", AR[1], "F")))
    p("WAITVM O0\nWAITLGKM\ns_barrier")
    oreg = lambda ks, b: vr(4 * (ks * 8 + b), 4, "a")
    ord_ = [I(f"ds_read_b128 {oreg(ks, b)}, v{13 if ks < 4 else 14} offset:{b * OB + 64 * ks}") for ks in range(5) for b in range(8)]
    units, hooks = [], []
    rounds = {3: (AR[1] + 1, AR[2]), 6: (AR[2] + 1, AR[3])}
    asig = [int(x[1:]) for x in (OPT["est"] + "," + OPT["esta"] + f",A{OPT['achk']}").replace("+", ",").split(",") if x[0] == "A"]
    asig += [int(x.split(":")[1]) for x in OPT["ain"].split(",") if x]
    AL = OPT["alag"]
    hooks += [(50, x) for x in b2_addr(31, 1)]
    for t in range(9):
        u = dict(tile=t, tag=f"O{t}", wtags=[], pre=[], dma=[], ks=[(q, WO[t % 5] + q * 4096, 512) for q in range(5)])
        if t == 0:
            u["dma"] += dma_wo(3)
        if t + 4 < 9:
            u["dma"] += dma_wo(t + 4)
        if t == 1:
            u["dma"] += [y for r in range(AR[0] + 1, AR[1] + 1) for y in f_loads(r, FRA)]
        if t >= AL and t - AL in asig:
            u["wtags"].append(f"P{t - AL}")
            u["pre"] += signal(t - AL)
        if t == 6:
            u["dma"] += b2_dma(31, 0)
        if t in rounds and rounds[t][1] >= rounds[t][0]:
            r0, r1 = rounds[t]
            hooks += [(40 * t + 24 - OPT["pdist"], y) for y in poll_load(r1)]
            u["chk"] = poll_check("att", r1, "F")
            u["dma"] += [y for r in range(r0, r1 + 1) for y in f_loads(r, FRA)]
        units.append(u)
    mf = []
    r0, s_rd, s_dma, s_ep = phase_b(units, oreg, lambda ks, b: [ord_[ks * 8 + b]], lambda qi: Addr([20, 21, 22]), OPT["stga"], mf)
    s_end = [(40 * 7, x) for x in end_setup()]
    s_end[0][1].after = [[x for x in flat([u["dma"] for u in units]) if x.tag == "O8"][-1]]
    p.extend(r0 + ord_[:10])
    p.extend((sched2 if OPT["s2"] else sched)(mf, [s_rd, [(i, x, i + 4) for i, x in enumerate(ord_[10:])], s_ep, s_dma, sorted(hooks, key=lambda h: h[0]), s_end]))
    stamp(p, "Bend")
    pre = P()
    for t in range(9 - AL, 8):
        if t in asig:
            pre(f"WAITVM P{t}\ns_barrier")
            pre.extend(flat(signal(t)))
    end_phase(p, "att", FRA, AR[3] + 1, AR[3] + 1, 0, 0, pre, [], OPT["esta"], 0)
    return p


def head():
    p = P()
    p("s_cmp_ge_u32 s2, 256\ns_cbranch_scc1 L_exit")
    p("s_load_dwordx16 s[4:19], s[0:1], 0\ns_load_dwordx8 s[20:27], s[0:1], 64")
    if OPT["stamp"]:
        p("s_memrealtime s[86:87]\ns_memtime s[88:89]")
    ms = [int(x) for x in str(OPT["rg"]).split(",")][::-1]
    rot = bit_of(ms[0], sG)
    for m in ms[1:]:
        rot += "\n" + bit_of(m, 59) + f"\ns_lshl1_add_u32 s{sG}, s{sG}, s59"
    p(f"""
    v_lshrrev_b32 v1, 6, v0
    v_and_b32 v0, 63, v0
    v_readfirstlane_b32 s{sW}, v1
    s_bfe_u32 s59, s2, 0x10002
    s_lshl_b32 s59, s59, 3
    s_bfe_u32 s{sMT}, s2, 0x30003
    s_add_u32 s{sMT}, s{sMT}, s59
    @ROT
    s_and_b32 s59, s2, 3
    s_lshr_b32 s60, s2, 6
    {"s_cbranch_scc1 L_ffn" if OPT["attfirst"] else "s_cbranch_scc0 L_att"}
    """.replace("@ROT", rot))
    return p


def desc(name, nv, acc):
    return f""".amdhsa_kernel {name}
  .amdhsa_next_free_vgpr {nv}
  .amdhsa_next_free_sgpr 102
  .amdhsa_accum_offset {acc}
  .amdhsa_group_segment_fixed_size 0
  .amdhsa_kernarg_size 96
  .amdhsa_user_sgpr_count 2
  .amdhsa_user_sgpr_kernarg_segment_ptr 1
  .amdhsa_system_sgpr_workgroup_id_x 1
.end_amdhsa_kernel"""


def main():
    fin = Finalizer(OPT["age"])
    fin.hoist = bool(OPT["s2"])
    hd = head()
    parts = {}
    for role, fn in (("att", role_att), ("ffn", role_ffn)):
        code = fin.run(hd + fn())
        i0 = next(i for i, x in enumerate(code) if x.text == f"L_{role}:")
        i1 = next(i for i, x in enumerate(code) if x.text == f"L_{role}_body:")
        body, npad, nb, st = layout(code[i1:], 0, f"L_{role}_pad" if OPT["warm"] else None, 4, f"L_{role}_ret", OPT["align"])
        pro = [I(x.text.replace(f"@LASTPAGE_{role}", str((nb - 1) // 4096))) for x in code[i0:i1]]
        i2 = next(i for i, x in enumerate(pro) if x.text == f"L_{role}_late:")
        i3 = next(i for i, x in enumerate(pro) if x.text == f"L_{role}_mid:") if OPT["split3"] else i2
        parts[role] = (code[:i0], pro[:i3], body, pro[i3:i2], pro[i2:])
        sys.stderr.write(f"{role}: {len(code)} ins {fin.stats} body {nb} B pads {npad} {st} prologue {sum(inst_sizes(pro[:i2]))}+{sum(inst_sizes(pro[i2:]))} B\n")
    ref = open(f"cdna_kernels/{NAME}.s.ref").read().split("\n")
    hdr = [l for l in ref if l.startswith(";") and "@launch" not in l]
    if OPT["stamp"]:
        hdr += [f"; stamps {r} " + " ".join(n) for r, n in stnames.items()]
    o = hdr + ["; @launch grid=(256,1,1) block=(256,1,1) lds=163840",
               '.amdgcn_target "amdgcn-amd-amdhsa--gfx950"', ".text",
               f".globl {NAME}_kernel", ".p2align 12", ".p2align 8", f".type {NAME}_kernel,@function", f"{NAME}_kernel:",
               text_of(parts["ffn"][0]), *[text_of(parts[r][k]) for k in (1, 3, 4) for r in (("att", "ffn") if OPT["attfirst"] else ("ffn", "att"))], "L_exit:", "    s_endpgm",
               ".p2align 12", text_of(parts["ffn"][2]), ".p2align 12", text_of(parts["att"][2]), ".p2align 12",
               '.section .rodata,"a"', ".p2align 6", desc(f"{NAME}_kernel", 512, 256)]
    txt = "\n".join(o)
    if OPT["dflav"]:
        import re
        txt = re.sub(r"(s\[(?:28:31|32:35)\].*) lds$", lambda m: m.group(1) + " " + OPT["dflav"].replace("+", " ") + " lds", txt, flags=re.M)
    print(txt)


main()
```

```python
import sys
import struct
from asmlib import *

NAME = "gated_mix__sliding_local_dilated__dense_activation_squared_relu__prompt"
OPT = dict(stamp=0, warm=1, touch=0, align=1, ctouch=1, tfirst=2, slack=8, look=6, sig=3, pdist=44,
           bg0=20, bg1=8, cap=11, capa=13, npro=8, nproa=7, tdist=4, sleep=0, ar="-1,-1,3", stg=8, stga=6, verbose=0, dflav='', bgn=0, bgv=24, rotg=3, w1pre=0, nost=0, stflav='sc1', nochk=0, nosig=0, age=10, ct2=1, vsig=0, pol='probe', pg0=14, pg1=33, pgs=3, nrace=4, prb=0x1a0000, t8=0, b0=128, dbl='8,12', udist=8, s2=1, capd=8, dbla=11, est='A10+F7,F8', esta='F6,A10+F7,F8', achk=-1, ain='25:3', alag=2, b2t=1, wot=13, bperm=1, lastpm=1, rg='5,96', xb=8, xa=16, split3=1, npre=4, nprea=3, fastst=1, attfirst=1, amap=0, rga='', osep=8, npo=8, early=1, cogap=20, ring=8, dist=6, wosm=8, d89late=1, ktail=3)
for a in sys.argv[1:]:
    k, v = a.split("=")
    assert k in OPT, k
    OPT[k] = int(v) if v.lstrip("-").isdigit() else v

PG = 0x200000
SRCS = 32768
O_CNT, O_Z, O_PRB = 0x180000, 0x190000, OPT['prb']
O_OM, O_OT, O_A = 0, 0x40000, 0x80000
CO, CA = 9, 10
FST = 256
WS_STAMP = 0x9000000
WS_SIZE = 0xa000000
MF = "v_mfma_f32_16x16x32_bf16"
MF4 = "v_mfma_f32_4x4x4_16b_bf16"
OOB = "0x80000000"

SX, SWA, SWB, SSM, SWS, SOUT, SB2 = 28, 32, 36, 40, 44, 48, 52
SDBG = 4
sW, sMT, sSRC = 56, 57, 58
sCH = 70
sFL, sMB, sSPIN, sMASK = 79, 80, 81, 84
sPG = 0
sG, sWB = 90, 91
vL16, vPST, vFW, vCON = 23, 24, 26, 28
srd = lambda n: f"s[{n}:{n + 3}]"
f2u = lambda x: struct.unpack("<I", struct.pack("<f", x))[0]
VM = ("dma", "vload", "vstore")


class P(list):
    def __call__(self, text, tag=None, cost=None):
        for t in text.split("\n"):
            t = t.strip()
            if t:
                self.append(I(t, tag, cost))
        return self


def flat(items):
    o = []
    for it in items:
        o.extend(it if isinstance(it, list) else [it])
    return o


def srd_const(p, n, size):
    p(f"s_mov_b32 s{n + 2}, {size}\ns_mov_b32 s{n + 3}, 0x20000")


def srd_ptr(p, n, ptr, bias=0):
    if bias:
        p(f"s_sub_u32 s{n}, s{ptr}, {bias}\ns_subb_u32 s{n + 1}, s{ptr + 1}, 0")
    else:
        p(f"s_mov_b64 s[{n}:{n + 1}], s[{ptr}:{ptr + 1}]")


class Addr:
    def __init__(self, regs):
        self.regs = regs

    def at(self, off):
        return f"v{self.regs[off >> 16]} offset:{off & 0xffff}"

    def wr(self, off, data):
        return f"v{self.regs[off >> 16]}, {data} offset:{off & 0xffff}"


nstamp = [0]
stnames = {}
cur = {"role": None, "vst": None}


def stamp_ins(name, lvl=1):
    if not (OPT["stamp"] and (OPT["stamp"] >= lvl or name == "end")):
        return []
    n = nstamp[0]
    nstamp[0] += 1
    assert n < 31
    stnames.setdefault(cur["role"], []).append(name)
    v = cur["vst"]
    return [I("s_memrealtime s[86:87]"), I("s_memtime s[88:89]"), I("s_waitcnt lgkmcnt(0)"),
            I(f"v_writelane_b32 v{v}, s86, {2 * n}"), I(f"v_writelane_b32 v{v}, s88, {2 * n + 1}")]


def stamp(p, name, lvl=1):
    p.extend(stamp_ins(name, lvl))


def stamp_begin(p, role, v):
    cur["role"], cur["vst"] = role, v
    nstamp[0] = 1
    stnames[role] = ["start"]
    if OPT["stamp"]:
        p(f"v_mov_b32 v{v}, 0\ns_waitcnt lgkmcnt(0)\nv_writelane_b32 v{v}, s86, 0\nv_writelane_b32 v{v}, s88, 1")


def stamp_out(p):
    if OPT["stamp"]:
        p("s_waitcnt vmcnt(0)")
        stamp(p, "end")
        p(f"s_lshl_b32 s59, s2, 2\ns_add_u32 s59, s59, s{sW}\ns_lshl_b32 s59, s59, 8\ns_add_u32 s59, s59, {WS_STAMP}")
        p(f"v_lshlrev_b32 v1, 2, v0\nv_writelane_b32 v{cur['vst']}, s{sSPIN}, 63")
        p(f"buffer_store_dword v{cur['vst']}, v1, {srd(SWS)}, s59 offen")


stubs = {}
sCNT, sDB, sINC, sP0, sP1 = 92, 94, 96, 97, 98
sNEED = {"F": "s99", "A": "s100", "FA": "s101", "init": "15"}
PGS = [0, 1, 61, 4]


nskip = [0]
lastpoll, lastchk = {}, {}


def wave0(items):
    nskip[0] += 1
    return [I(f"s_cbranch_vccz L_skip{nskip[0]}")] + items + [I(f"L_skip{nskip[0]}:")]


def poll_load(t, reg=sP0, bare=False):
    if t == "init" and not bare:
        x = I(f"s_load_dword s{reg}, s[{sDB}:{sDB + 1}], 0x0")
        x.kind = "salu"
        lastpoll[reg] = (t, x)
        lastchk.clear()
        return [[x]]
    base, off = (sDB, 0) if t == "init" else (sCNT, t * FST)
    o = [I(f"s_mov_b32 s{reg}, 0", cost=0), I(f"s_atomic_add s{reg}, s[{base}:{base + 1}], {hex(off)} glc")]
    if not bare:
        o[0].after = lastchk.get(reg, [])
        lastpoll[reg] = (t, o[1])
    return [o if bare else wave0(o)]


def poll_check(role, t, what, reg=sP0, wait=True):
    st = stubs.setdefault(role, P())
    n = sum(1 for x in st if x.kind == "label")
    lab = f"L_{role}_spin{n}"
    st(f"{lab}:")
    if OPT["sleep"]:
        st(f"s_sleep {OPT['sleep']}")
    st.extend(flat(poll_load(t, reg, True)))
    st(f"""
    s_sub_u32 s{sSPIN}, s{sSPIN}, 1
    s_waitcnt lgkmcnt(0)
    s_cmp_lt_i32 s{sSPIN}, 0
    s_cbranch_scc1 {lab}r
    s_andn2_b32 s89, {sNEED[what]}, s{reg}
    s_cbranch_scc1 {lab}
    s_branch {lab}r
    """)
    c = I(f"s_andn2_b32 s89, {sNEED[what]}, s{reg}")
    assert lastpoll[reg][0] == t
    c.after = [lastpoll.pop(reg)[1]]
    lastchk[reg] = [c]
    return [[I("s_waitcnt lgkmcnt(0)")][:wait] + [c, I(f"s_cbranch_scc1 {lab}"), I(f"{lab}r:")]]


def signal(t):
    if OPT["vsig"]:
        return vsignal(t)
    return [wave0([I(f"s_atomic_add s{sINC}, s[{sCNT}:{sCNT + 1}], {hex(t * FST)}")])]


def vsignal(t):
    return [I(f"buffer_atomic_add v{vFD}, v{vFW}, {srd(SWS)}, s{sFL} offen offset:{t * FST}")]


def handoff_setup(base_sgpr, inc):
    o = [I(f"s_and_b32 s85, s{sMT}, 7"), I("s_lshl_b32 s85, s85, 7")]
    for t in range(9):
        o.append(I(f"s_add_u32 s{sCH + t}, s85, s{base_sgpr}"))
        if t < 8:
            o.append(I("s_add_u32 s85, s85, 128"))
            o.append([I("s_cmp_eq_u32 s85, 1152"), I("s_cselect_b32 s85, 0, s85")])
    o += P()(f"""
    s_sub_u32 s85, 0, s26
    s_and_b32 s85, s85, {PG - 1}
    s_lshl_b32 s{sMB}, s{sMT}, 23
    s_add_u32 s{sMB}, s{sMB}, s85
    s_mov_b32 s{sSPIN}, 0x10000
    s_lshl_b32 s3, s{sMT}, 2
    s_lshr_b32 s{sMASK}, 1, s{sW}
    s_lshl_b32 {sNEED['F']}, s{sMASK}, 4
    s_lshl_b32 {sNEED['A']}, s{sMASK}, 10
    s_mul_i32 {sNEED['FA']}, s{sMASK}, 0x410
    s_mov_b32 s{sINC}, {inc}
    v_bfe_u32 v{vPST}, v0, 2, 2
    v_lshlrev_b32 v{vPST}, 8, v{vPST}
    v_lshrrev_b32 v{vCON}, 4, v0
    v_lshl_add_u32 v{vPST}, v{vCON}, 6, v{vPST}
    v_and_b32 v{vFW}, 3, v0
    v_lshl_add_u32 v{vPST}, v{vFW}, 4, v{vPST}
    v_and_b32 v{vFW}, 15, v0
    v_mul_u32_u24 v{vCON}, {SRCS}, v{vCON}
    v_lshl_add_u32 v{vCON}, v{vFW}, 4, v{vCON}
    s_lshl_b32 s85, s{sSRC}, 8
    v_add_u32 v{vCON}, s85, v{vCON}
    s_mul_i32 s85, s{sSRC}, {SRCS}
    v_add_u32 v{vPST}, s85, v{vPST}
    s_mov_b32 vcc_lo, s{sMASK}
    s_mov_b32 vcc_hi, 0
    """)
    o += [[I(f"s_add_u32 s{sDB}, s24, s3"), I(f"s_addc_u32 s{sDB + 1}, s25, 0")]]
    return o


def page_setup():
    o = P()(f"""
    s_lshr_b32 s85, s{sW}, 1
    s_mul_i32 s85, s85, {16384 - 8192}
    s_lshl_b32 s3, s{sW}, 12
    s_add_u32 s3, s3, s85
    s_add_u32 s3, s3, s{sMB}
    """)
    for k in range(4):
        if OPT["pol"] == "probe":
            o(f"s_bfe_u32 s85, s{sP0}, {hex(0x10004 + k)}")
        elif OPT["pol"] == "inv":
            o(f"s_bfe_u32 s85, s{sP0}, {hex(0x10004 + k)}\ns_xor_b32 s85, s85, 1")
        elif OPT["pol"] in ("fix0", "fix1"):
            o(f"s_lshr_b32 s85, s{sMT}, 3\ns_xor_b32 s85, s85, {(k ^ int(OPT['pol'][3])) & 1}")
        else:
            o(f"s_and_b32 s85, s{sMT}, 1")
        o("s_lshl_b32 s85, s85, 13")
        if k == 0:
            o(f"s_add_u32 s{sFL}, s85, s{sMB}\ns_add_u32 s{sFL}, s{sFL}, {O_CNT}")
        if k == 3:
            o(f"s_add_u32 s4, s85, s{sMB}\ns_add_u32 s4, s4, {k * PG}")
        o(f"s_add_u32 s85, s85, s3")
        o(f"s_add_u32 s{PGS[k] + (k == 3)}, s85, {k * PG + (O_A if k == 3 else 0)}")
    return list(o) + [[I(f"s_add_u32 s{sCNT}, s26, s{sFL}"), I(f"s_addc_u32 s{sCNT + 1}, s27, 0")]]


def counter_init(tmp):
    a = P()(f"""
    s_min_u32 s85, s{sW}, 1
    s_lshl_b32 s85, s85, 31
    v_and_b32 v{tmp}, 15, v0
    v_lshlrev_b32 v{tmp}, 8, v{tmp}
    v_bfe_u32 v{tmp + 1}, v0, 4, 1
    v_lshl_add_u32 v{tmp}, v{tmp + 1}, 13, v{tmp}
    v_lshrrev_b32 v{tmp + 1}, 5, v0
    v_or_b32 v{tmp + 1}, s67, v{tmp + 1}
    v_min_u32 v{tmp + 1}, 1, v{tmp + 1}
    v_lshl_or_b32 v{tmp}, v{tmp + 1}, 31, v{tmp}
    v_or_b32 v{tmp}, s85, v{tmp}
    v_lshrrev_b32 v{tmp + 1}, 3, v0
    v_lshlrev_b32 v{tmp + 1}, 12, v{tmp + 1}
    v_and_b32 v{tmp + 2}, 7, v0
    v_lshl_add_u32 v{tmp + 1}, v{tmp + 2}, 3, v{tmp + 1}
    v_or_b32 v{tmp + 1}, s85, v{tmp + 1}
    v_mov_b32 v{tmp + 2}, 4
    v_mov_b32 v{tmp + 3}, 4
    s_add_u32 s85, s{sMB}, {O_CNT}
    """)
    a(f"buffer_store_dword v{tmp + 2}, v{tmp}, {srd(SWS)}, s85 offen sc1", tag="FI")
    a(f"s_lshl_b32 s85, s67, 21\ns_add_u32 s85, s85, s{sMB}\ns_add_u32 s85, s85, {O_PRB}")
    a(f"buffer_store_dwordx2 {vr(tmp + 2, 2)}, v{tmp + 1}, {srd(SWS)}, s85 offen sc1", tag="FI")
    a = list(a) + [[I("s_add_u32 s16, s26, s85"), I("s_addc_u32 s17, s27, 0")], I("s_mov_b32 s14, 0")]

    def race(n):
        blk = [0x0, 0x1000, 0x4000, 0x5000][n % 4]
        ld = [I(f"s_load_dword s{8 + c}, s[16:17], {hex(blk + 0x2000 * c)} glc", cost=0) for c in ((0, 1) if n % 2 == 0 else (1, 0))]
        for x in ld:
            x.kind = "salu"
        o = [(2, [I("s_mov_b64 s[8:9], 0")] + wave0(ld))]
        smp = ["s_add_u32 s14, s14, s8", "s_sub_u32 s14, s14, s9"]
        for g in range(OPT["pg0"], OPT["pg1"], OPT["pgs"]):
            o.append((2 + g, [I(t) for t in (smp if n % 2 == 0 else smp[::-1])]))
        return o

    pub = [[I("s_cmp_lt_i32 s14, 0"), I("s_cselect_b32 s15, 17, 1")], I("s_lshl_b32 s15, s15, s67"),
           wave0([I(f"s_atomic_or s15, s[{sDB}:{sDB + 1}], 0x0")])]
    if OPT["stamp"]:
        pub += [[I("s_ashr_i32 s15, s14, 2"), I("s_and_b32 s15, s15, 0xff")], [I("s_lshl_b32 s14, s67, 3"), I("s_lshl_b32 s15, s15, s14")],
                wave0([I(f"s_atomic_or s15, s[{sDB}:{sDB + 1}], 0x40")])]
    return a, race, pub


def touch(vreg, sr, base, off, force=False):
    a = I(f"s_add_u32 s60, s{base}, {off}")
    x = I(f"buffer_load_dword a255, v{vreg}, {srd(sr)}, s60 offen", tag="T")
    x.writes = set()
    return [a, x] if OPT["touch"] or force else []


def x_touch_addr(p, reg, tmp):
    p(f"""
    s_lshr_b32 s59, s2, 6
    s_lshl_b32 s59, s59, 2
    s_add_u32 s59, s59, s{sW}
    s_mul_i32 s59, s59, {8 * 1152}
    v_and_b32 v{tmp}, 7, v0
    v_mul_u32_u24 v{reg}, 1152, v{tmp}
    v_bfe_u32 v{tmp}, v0, 3, 1
    v_lshl_add_u32 v{reg}, v{tmp}, 7, v{reg}
    v_lshrrev_b32 v{tmp}, 4, v0
    v_min_u32 v{tmp}, 1, v{tmp}
    v_lshlrev_b32 v{tmp}, 31, v{tmp}
    v_add3_u32 v{reg}, v{reg}, v{tmp}, s59
    """)


def code_touch(p, role, tmp):
    p(f"s_bfe_u32 s68, s2, 0x30003\ns_lshl_b32 s68, s68, 2\ns_add_u32 s68, s68, s{sW}")
    if OPT["ctouch"]:
        p(f"""
        s_getpc_b64 s[82:83]
        L_{role}_pc:
        s_add_u32 s82, s82, L_{role}_body-L_{role}_pc
        s_addc_u32 s83, s83, 0
        s_lshl_b32 s59, s68, 7
        v_min_u32 v{tmp}, @LASTPAGE_{role}, v0
        v_lshl_add_u32 v{tmp}, v{tmp}, 12, s59
        """)
        x = I(f"global_load_dword a255, v{tmp}, s[82:83]")
        x.writes = set()
        p.append(x)


def code_touch2(role, tmp):
    if not OPT["ct2"]:
        return []
    x = I(f"global_load_dword a255, v{tmp}, s[10:11]", tag="T")
    x.writes = set()
    return [[I("s_getpc_b64 s[10:11]"), I(f"L_{role}_pc2:"), I(f"s_sub_u32 s10, s10, L_{role}_pc2-L_{role}_body"), I("s_subb_u32 s11, s11, 0")], x]


def warm(p, role):
    if OPT["warm"]:
        p("s_mov_b64 exec, 0")
        for w in range(3):
            p(f"s_cmp_eq_u32 s{sW}, {w}\ns_cbranch_scc1 L_{role}_pad{w}")
        p(f"s_branch L_{role}_pad3\nL_{role}_ret:\ns_mov_b64 exec, -1")


def bit_of(mask, reg):
    if mask == 0:
        return f"s_mov_b32 s{reg}, 0"
    if mask & (mask - 1) == 0:
        return f"s_bfe_u32 s{reg}, s2, {hex(0x10000 + mask.bit_length() - 1)}"
    return f"s_and_b32 s{reg}, s2, {mask}\ns_bcnt1_i32_b32 s{reg}, s{reg}\ns_and_b32 s{reg}, s{reg}, 1"


def split_vm(items, n):
    k = 0
    while n > 0 and k < len(items):
        n -= items[k].kind in VM
        k += 1
    return k


def x_soff(J, base):
    if J == 8:
        return [I(f"s_add_u32 s60, {base}, 1024")]
    return [I(f"s_xor_b32 s60, s{sG}, {J}"), I("s_lshl_b32 s60, s60, 7"), I(f"s_add_u32 s60, s60, {base}")]


def w_block(j, base, pitch):
    if j % 2:
        return []
    if j == 16:
        return [I(f"s_add_u32 s{sWB}, s{base}, {512 * pitch}")]
    return [I(f"s_xor_b32 s{sWB}, s{sG}, {j // 2}"), I(f"s_mul_i32 s{sWB}, s{sWB}, {64 * pitch}"), I(f"s_add_u32 s{sWB}, s{sWB}, s{base}")]


def pace(groups, nsteps, cap, ngap, bgap, npro):
    q = [(e, x) for e, g in groups for x in g]
    res = []
    for j in range(-1, nsteps):
        d, n = [], 0
        lim = npro if j < 0 else 99 if j == nsteps - 1 else cap(j) if callable(cap) else cap
        while q and q[0][0] <= j and n < lim:
            e, x = q.pop(0)
            d.append((e == j, x))
            n += x.kind in VM
        k, o = 0, []
        for dep, it in d:
            vm = it.kind in VM
            g = 1 + (ngap * k) // max(n, 1) + (2 if vm else 0)
            o.append((max(g, bgap(j) + 1) if dep else g, it))
            k += vm
        res.append(o)
    assert not q
    if OPT["verbose"]:
        for j, o in enumerate(res):
            sys.stderr.write(f"  step {j - 1}: " + " ".join((x.tag or "t") for _, x in o if x.kind in VM) + "\n")
    return [x for _, x in res[0]], res[1:]


def first_touches(p, tw, tx, wmask):
    if OPT["tfirst"] == 1:
        p.extend(tw(0) + tx(0))
        return 4, 2
    if OPT["tfirst"] == 2 and OPT["touch"]:
        a, b = tw(0), tx(0)
        p(f"s_mov_b64 exec, {wmask}")
        p.extend(a)
        p("s_mov_b64 exec, 0xff")
        p.extend(b)
        p("s_mov_b64 exec, -1")
        return 2, 1
    return 1, 1


def add_touches(groups_after, j, TW, TX, tw, tx):
    o = []
    for k in range(1, 5):
        if j == max(1, TW + 4 * k - OPT["tdist"]):
            if TW + 4 * k < 18:
                o += tw(TW + 4 * k)
            if TX + 2 * k < 9:
                o += tx(TX + 2 * k)
    if o:
        groups_after.append((-1, o))


BG = lambda j: OPT["bg0"] if j == 0 else OPT["bg1"] if j == 1 else OPT["bgv"] if j < OPT["bgn"] else 0


sstate = {}


def gemm_step(p, j, mf, tags, rds, dma, side, first=(), hi=(), wait_end=True):
    bg = BG(j)
    s_rd = [(bg, [I("WAITLGKM", cost=0), I(f"WAITVM {tags}", cost=1), I("s_barrier")])] + list(first)
    r0 = max([bg] + [g for g, _ in first])
    span = len(mf) - 6 - r0
    for i, x in enumerate(rds):
        s_rd.append((r0 + 2 + min(2 * i, (span * i) // len(rds)), x))
    if wait_end:
        s_rd.append((len(mf) - 1, I("WAITLGKM", cost=1), len(mf) - 1))
    if OPT["s2"]:
        p.extend(sched2(mf, [s_rd, list(hi), dma, side], state=sstate))
    else:
        p.extend(sched(mf, [list(hi), s_rd, dma, side]))


def phase_b(units, hreg, hdep, trB, st_gap, mf):
    frags = []
    for ui, u in enumerate(units):
        for qi, k in enumerate(u["ks"]):
            frags.append((ui, qi, k))
    ntile_ks = {}
    for ui, qi, k in frags:
        ntile_ks.setdefault(units[ui]["tile"], []).append(k)
    rdc = {}

    def rd(fi):
        if fi not in rdc:
            ui, qi, (ks, off, hoff) = frags[fi]
            w = 48 + 4 * (fi % 4)
            rdc[fi] = [I(f"ds_read_b64_tr_b16 {vr(w, 2)}, {trB(qi).at(off)}"),
                       I(f"ds_read_b64_tr_b16 {vr(w + 2, 2)}, {trB(qi).at(off + hoff)}", tag=f"f{fi}")]
        return rdc[fi]

    s_rd, s_dma, s_ep = [], [], []
    seen = {}
    for fi, (ui, qi, (ks, off, hoff)) in enumerate(frags):
        u = units[ui]
        t = u["tile"]
        first = t not in seen
        seen[t] = seen.get(t, 0) + 1
        g0 = len(mf)
        w = 48 + 4 * (fi % 4)
        for b in range(8):
            c = 64 + 32 * (t % 2) + 4 * b
            mf.append(I(f"{MF} {vr(c, 4)}, {vr(w, 4)}, {hreg(ks, b)}, {'0' if first else vr(c, 4)}"))
            mf[-1].deps = rd(fi) + hdep(ks, b)
        nf = fi + 2
        if qi == len(u["ks"]) - 2:
            tags = u.get("wtags", [])
            if nf < len(frags):
                tags = [units[ui + 1]["tag"]] + tags
            chk = u.get("chk", [])
            for it in chk:
                s_rd.append((g0 - 1, it))
            if tags or chk or u.get("pre"):
                bi = I("s_barrier")
                u["bar"] = bi
                s_rd.append((g0, [I("WAITLG none " + u.get("ltag", ""), cost=0), I("WAITVM none " + " ".join(tags), cost=1), bi]))
                for x in flat(u.get("pre", []) + u.get("dma", [])):
                    x.after = [bi]
            for it in u.get("pre", []):
                s_rd.append((g0 + 1, it))
            items = u.get("dma", [])
            nv = sum(1 for x in items if x.kind in VM)
            k = 0
            for it in items:
                vm = it.kind in VM
                s_dma.append((g0 + 4 + (8 * len(u["ks"]) * k) // nv + (1 if vm else 0), it))
                k += vm
        if nf < len(frags):
            r = rd(nf)
            s_rd.append((g0 + 1, r[0]))
            s_rd.append((g0 + 3, r[1]))
        if OPT["s2"] and fi + 1 < len(frags) and not (qi == len(u["ks"]) - 3 and u.get("chk")):
            s_rd.append((g0 + 7, I(f"WAITLG f{fi + 1}", cost=1)))
        if seen[t] == len(ntile_ks[t]):
            if t < (8 if OPT["stamp"] == 2 else 3) and OPT["stamp"] >= 2:
                s_rd.append((len(mf) - 1, stamp_ins(f"t{t}", 2)))
            e = len(mf) + 1
            if t == 8 and OPT["lastpm"]:
                tail = mf[-16:]
                mf[-16:] = [tail[8 * k + 2 * pp + bb] for pp in range(4) for k in range(2) for bb in range(2)]
                lastw = tail[8:]
                e, st_gap = len(mf) - 16 + 6, 4
            else:
                lastw = mf[-8:]
            s_ep.append((e - 2, I(f"s_add_u32 s62, s{PGS[t // 3]}, {(t % 3) * 16 * SRCS}")))
            for pp in range(4):
                c = 64 + 32 * (t % 2) + 8 * pp
                for i in range(4):
                    s_ep.append((e + pp * st_gap, I(f"v_cvt_pk_bf16_f32 v{32 + 4 * pp + i}, v{c + 2 * i}, v{c + 2 * i + 1}")))
                    s_ep[-1][1].deps = lastw
                if not OPT["nost"]:
                    s_ep.append((e + pp * st_gap + (5 if st_gap > 4 else 2),
                                 I(f"buffer_store_dwordx4 {vr(32 + 4 * pp, 4)}, v{vPST}, {srd(SWS)}, s62 offen offset:{1024 * pp} {OPT['stflav'].replace('plain', '')}", tag=f"P{t}")))
    return rd(0) + rd(1), s_rd, s_dma, s_ep


FRV = lambda r, i: vr(128 + 12 * r + 4 * i, 4)


def f_loads(r, FR, so=60):
    o = []
    for i in range(3):
        o += [I(f"s_add_u32 s{so}, s{PGS[r // 3]}, {((r % 3) * 16 + 4 * i) * SRCS}"),
              I(f"buffer_load_dwordx4 {FR(r, i)}, v{vCON}, {srd(SWS)}, s{so} offen sc1")]
    return o


def a_loads():
    return [I(f"buffer_load_dwordx4 {vr(4 * i, 4, 'a')}, v{82 + i}, {srd(SWS)}, s5 offen sc1") for i in range(3)]


def b2_touch(tmp):
    o = P()
    srd_ptr(o, SB2, 18); srd_const(o, SB2, 1152)
    if OPT["b2t"]:
        o(f"v_lshlrev_b32 v{tmp}, 7, v0")
        o(f"buffer_load_dword a255, v{tmp}, {srd(SB2)}, 0 offen", tag="T")
        o[-1].writes = set()
    return o


def b2_addr(reg, tmp):
    return P()(f"""
    s_and_b32 s85, s{sMT}, 7
    v_lshrrev_b32 v{reg}, 1, v0
    v_min_u32 v{reg}, 9, v{reg}
    v_add_u32 v{reg}, s85, v{reg}
    v_subrev_u32 v{tmp}, 9, v{reg}
    v_min_u32 v{reg}, v{reg}, v{tmp}
    v_and_b32 v{tmp}, 1, v0
    v_lshlrev_b32 v{tmp}, 4, v{tmp}
    v_lshl_add_u32 v{reg}, v{reg}, 7, v{tmp}
    s_lshl_b32 s85, s{sW}, 5
    v_add_u32 v{reg}, s85, v{reg}
    """)


def b2_dma(reg, lds):
    return [I(f"s_add_u32 m0, s65, {lds}"), I(f"buffer_load_dwordx4 v{reg}, {srd(SB2)}, 0 offen lds", tag="FD")]


ENDREG = dict(ffn=(12, [8, 9, 10, 11, 25], 29), att=(208, [216, 217, 218, 219, 220], 221))


def end_setup(role):
    SEL, COL, vZA = ENDREG[role]
    p = P()
    srd_ptr(p, SOUT, 22); srd_const(p, SOUT, 2048 * 1152)
    t = SEL
    a, b = ("2, 2", "0, 2") if OPT["bperm"] else ("0, 2", "2, 2")
    p(f"""
    s_lshr_b32 s82, s{sSRC}, 2
    s_lshl_b32 s82, s82, 5
    s_and_b32 s83, s{sSRC}, 3
    s_lshl_b32 s83, s83, 2
    s_add_u32 s82, s82, s83
    v_bfe_u32 v{t}, v0, 4, 1
    v_lshl_add_u32 v{t}, v{t}, 4, s82
    v_and_b32 v{t + 1}, 3, v0
    v_add_u32 v{t + 1}, v{t}, v{t + 1}
    v_lshlrev_b32 v{vZA}, 2, v{t + 1}
    v_mul_u32_u24 v{t + 1}, 1152, v{t + 1}
    v_bfe_u32 v{t + 2}, v0, 2, 2
    v_lshl_add_u32 v{t + 1}, v{t + 2}, 3, v{t + 1}
    v_bfe_u32 v{t + 2}, v0, {a}
    v_add_u32 v{t}, v{t}, v{t + 2}
    v_mul_u32_u24 v{t}, 1152, v{t}
    v_bfe_u32 v{t + 2}, v0, {b}
    v_lshl_add_u32 v{t}, v{t + 2}, 3, v{t}
    v_lshrrev_b32 v{t + 2}, 5, v0
    v_lshl_add_u32 v{t + 1}, v{t + 2}, 31, v{t + 1}
    s_and_b32 s82, s{sMT}, 7
    v_add_u32 v{t + 2}, s82, v{t + 2}
    s_mul_i32 s68, s{sMT}, 147456
    s_lshl_b32 s82, s{sW}, 5
    s_add_u32 s68, s68, s82
    s_add_u32 s83, s{sFL}, {O_Z - O_CNT}
    """)
    for q in range(5):
        p(f"""
        v_add_u32 v{t + 3}, {2 * q}, v{t + 2}
        v_subrev_u32 v{t + 4}, 9, v{t + 3}
        v_min_u32 v{t + 3}, v{t + 3}, v{t + 4}
        v_lshl_add_u32 v{COL[q]}, v{t + 3}, 7, v{t + (q == 4)}
        """)
    p(f"""
    v_bfe_u32 v{t + 6}, v0, 1, 3
    v_and_b32 v{t + 7}, 1, v0
    v_lshlrev_b32 v{t + 7}, 4, v{t + 7}
    s_movk_i32 s82, 0x3f80
    v_lshlrev_b32 v{t + 7}, v{t + 7}, s82
    """)
    for i in range(8):
        p(f"v_cmp_eq_u32 s[{8 + 2 * (i % 4)}:{9 + 2 * (i % 4)}], {i}, v{t + 6}")
        if i % 4 == 3:
            for k in range(4):
                p(f"v_cndmask_b32 v{t + i - 3 + k}, 0, v{t + 7}, s[{8 + 2 * k}:{9 + 2 * k}]")
    return p


def end_phase(p, role, FR, nin, nchk, pre, lds_rd, spec, b2lds, last_tag, last_cnt):
    SEL, COL, vZA = ENDREG[role]
    DF = lambda q: 96 + 4 * q
    DA = lambda q: 236 + 4 * q
    OUT = lambda q: 72 + 2 * q
    stages = [[(x[0], int(x[1:])) for x in g.split("+")] for g in spec.split(",")]
    stages = [[(k, t) for k, t in g if t >= nchk] for g in stages]
    stages = [g for g in stages if g]
    preg = lambda k, i: 70 + 2 * (k % 2) + i
    polls = lambda k: flat([y for i, (kind, t) in enumerate(stages[k]) for y in poll_load(t, preg(k, i))])
    zl = f"buffer_load_dword v56, v{vZA}, {srd(SWS)}, s83 offen sc1"
    done = dict(f=0, a=0, q=0, g=False, st=0)

    def mf_f(r):
        q = r // 2
        return [I(f"{MF} {vr(DF(q), 4)}, {vr(SEL + 4 * (r % 2), 4)}, {FR(r, i)}, {'0' if i == 0 and r % 2 == 0 else vr(DF(q), 4)}") for i in range(3)]

    def mf_a(q):
        return [I(f"{MF} {vr(DA(q), 4)}, {vr(48 + 4 * (q % 2), 4)}, {vr(4 * (q // 2), 4, 'a')}, 0")]

    def fin(q):
        t = 64 + 4 * (q % 2)
        for i in range(2):
            p(f"v_lshlrev_b32 v{t + 2 * i}, 16, v{116 + 2 * q + i}\nv_and_b32 v{t + 2 * i + 1}, 0xffff0000, v{116 + 2 * q + i}")
        for i in (0, 2):
            p(f"v_pk_add_f32 {vr(t + i, 2)}, {vr(t + i, 2)}, {vr(DF(q) + i, 2)}")
        for i in (0, 2):
            p(f"v_pk_mul_f32 {vr(t + i, 2)}, {vr(t + i, 2)}, v[56:57] op_sel:[0,1]")
        for i in (0, 2):
            p(f"v_pk_fma_f32 {vr(t + i, 2)}, {vr(DA(q) + i, 2)}, v[56:57], {vr(t + i, 2)} op_sel_hi:[1,0,1]")
        p(f"v_cvt_pk_bf16_f32 v{OUT(q)}, v{t}, v{t + 1}\nv_cvt_pk_bf16_f32 v{OUT(q) + 1}, v{t + 2}, v{t + 3}")
        if q < 4 and OPT["bperm"]:
            p(f"ds_bpermute_b32 v{OUT(q)}, v6, v{OUT(q)}\nds_bpermute_b32 v{OUT(q) + 1}, v6, v{OUT(q) + 1}")

    def stores():
        for q in range(done["st"], done["q"]):
            p(f"buffer_store_dwordx2 {vr(OUT(q), 2)}, v{COL[q]}, {srd(SOUT)}, s68 offen")
        done["st"] = done["q"]

    def work(nf, na):
        if na and not done["a"]:
            for q in range(5):
                p.extend(mf_a(q))
        for r in range(done["f"], nf):
            p.extend(mf_f(r))
        done["f"], done["a"] = max(nf, done["f"]), max(na, done["a"])
        if na and not done["g"]:
            p("v_mul_f32 v56, 0xbfb8aa3b, v56\nv_exp_f32 v56, v56\ns_nop 0\nv_add_f32 v56, 1.0, v56\nv_rcp_f32 v56, v56\ns_nop 0\nv_sub_f32 v57, 1.0, v56")
            done["g"] = True
        while done["q"] < 5 and min(2 * done["q"] + 2, 9) <= min(nf, na):
            fin(done["q"])
            done["q"] += 1

    for r in range(nin, nchk):
        p.extend(f_loads(r, FR))
    p.extend(polls(0))
    p(f"""
    v_lshrrev_b32 v5, 5, v0
    v_bfe_u32 v7, v0, 2, 2
    v_lshlrev_b32 v6, 3, v7
    v_lshl_add_u32 v5, v5, 5, v6
    s_add_u32 s59, s65, {b2lds}
    v_add_u32 v5, s59, v5
    v_and_b32 v6, 3, v0
    v_lshl_add_u32 v6, v6, 2, v7
    v_and_or_b32 v6, v0, 48, v6
    v_lshlrev_b32 v6, 2, v6
    """)
    sa = P()(f"""
    v_lshrrev_b32 v85, 4, v0
    s_and_b32 s59, s{sMT}, 7
    v_add_u32 v86, s59, v85
    v_and_b32 v87, 15, v0
    s_lshl_b32 s59, s{sSRC}, 8
    v_lshl_add_u32 v87, v87, 4, s59
    """)
    for i in range(3):
        sa(f"""
        v_add_u32 v88, {4 * i}, v86
        v_subrev_u32 v89, 9, v88
        v_min_u32 v88, v88, v89
        v_lshl_add_u32 v{82 + i}, v88, 15, v87
        """)
    sa("v_min_u32 v88, 1, v85\nv_lshl_add_u32 v84, v88, 31, v84")
    sb = P()("v_bfe_u32 v88, v0, 3, 1\nv_sub_u32 v88, v85, v88\nv_cmp_eq_u32 s[8:9], 0, v88\nv_cmp_eq_u32 s[10:11], 2, v88")
    for k in range(4):
        sb(f"v_or_b32 v89, v{SEL + k}, v{SEL + 4 + k}\nv_cndmask_b32 v{48 + k}, 0, v89, s[8:9]\nv_cndmask_b32 v{52 + k}, 0, v89, s[10:11]")
    p.extend(pre)
    p("WAITVM FD")
    rd = list(lds_rd) + [I(f"ds_read_b64 {vr(116 + 2 * q, 2)}, v5 offset:{64 * q}") for q in range(5)]
    if lds_rd:
        mf = [x for r in range(nin) for x in mf_f(r)]
        for x, y in zip(mf, lds_rd):
            x.deps = [y]
        p("KEEP 6")
        p.extend(rd[:10])
        p.extend(sched2(mf, [list(enumerate(rd[10:])), [(0, x) for x in sa]]))
        p("KEEP 2")
        done["f"] = nin
    else:
        p.extend(rd + sa)
    stamp(p, "e_setup")
    p(f"s_waitcnt lgkmcnt(0)\nWAITVM {last_tag}\ns_barrier")
    p.extend(flat(signal(last_cnt)))
    nf, na = nchk, 0
    for k, g in enumerate(stages):
        for i, (kind, t) in enumerate(g):
            p.extend(flat(poll_check(role, t, kind, preg(k, i), k > 0 and i == 0)))
        if k + 1 < len(stages) and k > 0:
            p.extend(polls(k + 1))
        p("s_barrier")
        if k >= len(stages) - 2 or k == 0:
            stamp(p, "e_" + "".join(f"{kind}{t}" for kind, t in g))
        pf, pa = nf, na
        for kind, t in g:
            if kind == "F":
                for r in range(nf, t + 1):
                    p.extend(f_loads(r, FR))
                nf = t + 1
            else:
                p(zl)
                p.extend(a_loads())
                na = 9
        if k + 1 < len(stages) and k == 0:
            p.extend(polls(k + 1))
        if k == 0:
            p.extend(sb)
        stores()
        work(pf, pa)
    assert nf == 9 and na == 9
    stores()
    work(9, 9)
    stores()
    stamp_out(p)
    p("s_endpgm")
    p.extend(stubs[role])


def role_ffn():
    p = P()
    XR = 98304
    p(f"L_ffn:\ns_mul_i32 s{sSRC}, s59, 3\ns_add_u32 s{sSRC}, s{sSRC}, s60\ns_sub_u32 s{sSRC}, s{sSRC}, 1")
    code_touch(p, "ffn", 38)
    p(f"""
    v_lshrrev_b32 v32, 3, v0
    v_and_b32 v33, 7, v0
    s_mul_i32 s59, s{sW}, {32 * 1152}
    v_mul_u32_u24 v34, 1152, v32
    v_add_u32 v34, s59, v34
    v_lshrrev_b32 v35, 1, v32
    v_xor_b32 v35, v33, v35
    v_lshlrev_b32 v35, 4, v35
    v_add_u32 v1, v34, v35
    v_xor_b32 v35, 64, v35
    v_add_u32 v2, v34, v35
    v_add_u32 v2, 8192, v2
    v_add_u32 v3, 16384, v1
    v_add_u32 v4, 16384, v2
    s_and_b32 s69, s{sW}, 1
    s_lshl_b32 s59, s69, 2
    v_and_or_b32 v35, v32, 2, s59
    v_xor_b32 v35, v33, v35
    s_mul_i32 s59, s{sW}, {8 * 9216}
    s_add_u32 s59, s59, 2048
    v_mul_u32_u24 v36, 9216, v32
    v_lshl_add_u32 v36, v35, 4, v36
    v_add_u32 v5, s59, v36
    v_subrev_u32 v6, 896, v5
    v_subrev_u32 v7, 1792, v5
    v_lshlrev_b32 v{vL16}, 4, v0
    s_mul_i32 s62, s{sMT}, 147456
    s_mul_i32 s63, s{sSRC}, 768
    s_lshl_b32 s65, s{sW}, 12
    s_mul_i32 s66, s{sW}, 6144
    {bit_of(OPT["xa"], 59)}
    {bit_of(OPT["xb"], 85)}
    s_mul_i32 s60, s59, 3072
    s_sub_u32 s67, s66, s60
    s_add_u32 s67, s67, 3072
    s_add_u32 s66, s66, s60
    s_mul_i32 s59, s59, 384
    s_mul_i32 s60, s85, {32 * 9216}
    s_add_u32 s48, s60, s59
    s_sub_u32 s49, s60, s59
    s_add_u32 s49, s49, 384
    """)
    srd_const(p, SX, 2048 * 1152)
    srd_const(p, SWA, 576 * 9216 + 2048)
    srd_const(p, SSM, 4608 * 2)
    lt = P()
    srd_const(lt, SWB, 4608 * 1152)
    srd_const(lt, SWS, WS_SIZE)
    lt(f"""
    s_sub_u32 s50, {32 * 9216 + 384}, s49
    s_sub_u32 s51, {32 * 9216 + 384}, s48
    s_mul_i32 s64, s{sSRC}, {384 * 1152}
    v_and_b32 v35, 6, v32
    v_xor_b32 v35, v33, v35
    v_lshl_add_u32 v8, v35, 4, v34
    v_and_b32 v32, 3, v32
    v_and_b32 v33, 3, v0
    v_lshlrev_b32 v33, 3, v33
    v_lshrrev_b32 v34, 4, v0
    v_bfe_u32 v35, v0, 2, 2
    s_lshl_b32 s59, s69, 1
    v_xor_b32 v12, s59, v32
    v_lshl_add_u32 v12, v12, 5, v33
    v_lshl_add_u32 v12, v35, 7, v12
    v_mul_u32_u24 v13, 6144, v34
    s_lshr_b32 s59, s{sW}, 1
    s_lshl_b32 s59, s59, 10
    v_add3_u32 v12, v12, v13, s59
    v_xor_b32 v13, 32, v12
    v_add_u32 v14, 0x10000, v12
    v_add_u32 v15, 0x10000, v13
    v_xor_b32 v22, s{sW}, v32
    v_lshl_add_u32 v22, v22, 5, v33
    v_lshrrev_b32 v35, 2, v0
    v_lshl_add_u32 v22, v35, 7, v22
    v_and_b32 v32, 15, v0
    v_lshrrev_b32 v33, 1, v32
    v_xor_b32 v33, v33, v34
    v_lshlrev_b32 v33, 4, v33
    v_lshl_add_u32 v16, v32, 7, v33
    v_add_u32 v16, {XR}, v16
    s_lshl_b32 s59, s85, 6
    v_xor_b32 v16, s59, v16
    v_xor_b32 v17, 64, v16
    s_mul_i32 s59, s{sW}, {4096 + 64}
    s_add_u32 s59, s59, {XR + 3 * 16384}
    v_lshl_add_u32 v39, v34, 3, s59
    """)
    p("s_branch L_ffn_mid\nL_ffn_mid:" if OPT["split3"] else "L_ffn_mid:")
    p("WAITLGKM")
    stamp_begin(p, "ffn", 20)
    stamp(p, "karg", 2)
    srd_ptr(p, SWA, 12, 2048)
    srd_ptr(p, SX, 4)

    def dma4(base, soff, regs, sr, tag, half=None):
        o = [I(f"s_add_u32 m0, s65, {base}")] + soff
        for q in (range(4) if half is None else (2 * half, 2 * half + 1)):
            o.append(I(f"buffer_load_dwordx4 v{regs[q]}, {srd(sr)}, s60 offen offset:{1024 * q} lds", tag=tag))
        return o

    dma_x = lambda J, half=None: dma4(XR + (J % 4) * 16384, x_soff(J, "s62"), [1, 2, 3, 4], SX, f"R{J}", half)
    dma_w2 = lambda n, base: dma4(base, [I(f"s_add_u32 s60, s{sCH + n // 3}, {(n % 3) * 147456}")], [8, 9, 10, 11], SWB, f"U{n}")

    def dma_w1(j):
        o = w_block(j, 63, 9216)
        for h in range(2):
            o.append(I(f"s_add_u32 m0, s{66 + h}, {(j % 4) * 24576}"))
            o.append(I(f"s_add_u32 s60, s{sWB}, s{48 + 2 * (j % 2) + h}"))
            for q in range(3):
                o.append(I(f"buffer_load_dwordx4 v{5 + q}, {srd(SWA)}, s60 offen offset:{1024 * q} lds", tag=f"W{j}"))
        return o

    p.extend(dma_x(0) + dma_w1(0))
    srd_ptr(p, SSM, 14)
    p(f"s_add_u32 m0, s65, {XR + 3 * 16384}")
    srd_ptr(p, SWB, 16)
    p(f"buffer_load_dwordx4 v{vL16}, {srd(SSM)}, s63 offen lds", tag="W0")
    stamp(p, "d0", 2)
    p("s_branch L_ffn_late\nL_ffn_late:")
    srd_ptr(p, SWS, 26)
    p.extend(lt)
    warm(p, "ffn")
    stamp(p, "warm", 2)
    p("s_branch L_ffn_body\nL_ffn_body:")
    p.extend(dma_w1(1))
    stamp(p, "d1", 2)
    dbl = [int(x) for x in OPT["dbl"].split(",")]
    rho, st = {0: -1}, 1
    for j in range(15):
        for _ in range(2 if j in dbl else 1):
            rho[st] = j
            st += 1
    assert rho[17] == 14
    free_at = lambda sg: rho[sg] + 1 if sg >= 0 else -1
    groups = []
    for j in range(2, 18):
        if j == 2:
            groups.append((-1, dma_x(1)))
        elif j < 17:
            J = (j + 1) // 2
            groups.append((max(free_at(2 * J - 7), 0 if J == 3 else -1), dma_x(J, (j + 1) % 2)))
        groups.append((free_at(j - 4), dma_w1(j)))
    groups.append((12, touch(31, SWB, 64, 1024, True)))
    xslot = lambda st: XR + (st % 4) * 16384
    uslot = {n: xslot(9 + n) for n in range(4)}
    groups += [(free_at(2 * n + 11), dma_w2(n, uslot[n])) for n in range(2)]

    trA = [Addr([12, 14]), Addr([13, 15])]
    xr = [Addr([16]), Addr([17])]
    hw = Addr([18, 19])
    hr = {i: Addr([30 + 2 * i, 31 + 2 * i]) for i in (1, 2, 3)}
    trBs = [Addr([22, 21, 26]), Addr([1, 2, 3]), Addr([4, 5, 6]), Addr([7, 27, 30])]
    xf = lambda j, b: 32 * (j % 4) + 4 * b
    wf = lambda j, t: 128 + 32 * (t // 2) + 8 * (j % 4) + 4 * (t % 2)
    acc = lambda t, b: [160, 64, 192, 128, 224, 96][t] + 4 * b
    rdc = {}

    def reads(j):
        o = []
        for t in range(6):
            off = (j % 4) * 24576 + (t // 2) * 2048
            w = wf(j, t)
            o.append([I(f"ds_read_b64_tr_b16 {vr(w, 2, 'a')}, {trA[t % 2].at(off)}"),
                      I(f"ds_read_b64_tr_b16 {vr(w + 2, 2, 'a')}, {trA[t % 2].at(off + 512)}")])
        xs = [I(f"ds_read_b128 {vr(xf(j, b), 4, 'a')}, {xr[j % 2].at(((j // 2) % 4) * 16384 + b * 2048)}") for b in range(8)]
        rdc[j] = (o, xs)
        if j == 17:
            return o[0] + o[1] + xs + [y for x in o[2:] for y in x]
        return o[0] + xs + [y for x in o[1:] for y in x]

    def mfa(j, t, b):
        x = I(f"{MF} {vr(acc(t, b), 4)}, {vr(wf(j, t), 4, 'a')}, {vr(xf(j, b), 4, 'a')}, {vr(40 + 4 * t if j == 0 else acc(t, b), 4)}")
        x.deps = rdc[j][0][t] + [rdc[j][1][b]]
        return x

    pro, paced = pace(groups, 14, lambda j: OPT["capd"] if j in dbl else OPT["cap"], 44, BG, OPT["npro"])
    k = split_vm(pro, OPT["npre"])
    p.extend(pro[:k])
    p("WAITVM R0 W0")
    for t in range(6):
        p(f"ds_read_b64 {vr(244 + 2 * t, 2)}, v39 offset:{(t // 2) * 256 + (t % 2) * 32}")
    stamp(p, "land", 2)
    p("s_barrier")
    p.extend(reads(0))
    p.extend(pro[k:])
    for t in range(6):
        for i in range(2):
            p(f"v_lshlrev_b32 v{40 + 4 * t + 2 * i}, 16, v{244 + 2 * t + i}")
            p(f"v_and_b32 v{41 + 4 * t + 2 * i}, 0xffff0000, v{244 + 2 * t + i}")
    if not OPT["fastst"]:
        p("WAITLGKM")
    stamp(p, "A0")

    hs = handoff_setup(64, 1)
    addr13 = P()
    for i in (1, 2, 3, 0):
        r = trBs[i].regs
        addr13(f"s_xor_b32 s85, s{sW}, {i}\ns_lshl_b32 s85, s85, 12\nv_add_u32 v{r[0]}, s85, v22")
        addr13(f"v_add_u32 v{r[1]}, 0x10000, v{r[0]}\nv_add_u32 v{r[2]}, 0x20000, v{r[0]}")
    addr11 = P()
    for i in (1, 2, 3):
        addr11(f"s_xor_b32 s85, s{sW}, {i}\ns_lshl_b32 s85, s85, 13\nv_add_u32 v{30 + 2 * i}, s85, v{vL16}\nv_add_u32 v{31 + 2 * i}, 0x10000, v{30 + 2 * i}")
    late = {5: hs[:27], 6: hs[27:46], 7: hs[46:],
            9: P()(f"""
            v_add_u32 v9, 8192, v8
            v_add_u32 v10, 16384, v8
            v_add_u32 v11, 24576, v8
            s_lshl_b32 s85, s{sW}, 13
            v_add_u32 v18, s85, v{vL16}
            v_add_u32 v19, 0x10000, v18
            """),
            10: code_touch2("ffn", 38) + P()(f"""
            s_mul_i32 s85, s68, {12 * 1152}
            v_min_u32 v31, 11, v0
            v_mul_u32_u24 v31, 1152, v31
            v_add_u32 v31, s85, v31
            """),
            11: b2_touch(39) + addr11, 13: addr13}
    assert not any(("v", r) in x.reads for r in (1, 2, 3, 4, 5, 6, 7, 30) for _, x in paced[13])
    assert not any(("v", 31) in x.reads for j in (10, 11) for _, x in paced[j])
    for j in range(14):
        mf = [mfa(j, t, b) for t in range(6) for b in range(8)]
        sts = [k for k in rho if rho[k] == j]
        tags = " ".join(f"W{k} R{k // 2}" for k in sts)
        gemm_step(p, j, mf, tags, [x for k in sts for x in reads(k)], paced[j], [(4, x) for x in late.get(j, [])])
        p("WAITLGKM")
        if j in (0, 1, 3, 8):
            stamp(p, f"A{j + 1}", 2)
        if j in (10, 11, 12):
            stamp(p, f"A{j + 1}", 3)
    stamp(p, "A14")

    r17 = reads(17)
    uns = [(u, b) for u in range(3) for b in range(8)]
    mf, done = [], {}
    mf += [mfa(j, e, b) for j in (14, 15, 16) for b in range(3) for e in range(2)]
    for u, b in uns:
        mf += [mfa(j, 2 * u + e, b) for j in ((17,) if u == 0 and b < 3 else (14, 15, 16, 17)) for e in range(2)]
        done[u, b] = (len(mf) - 1, mf[-2:])
    G = len(mf)
    B0 = OPT["b0"]
    bar_b, bar_0 = I("s_barrier"), I("s_barrier")
    t_rd = [(0, [I("WAITVM W17 R8 T", cost=1), I("s_barrier")])] + [(1, x) for x in r17]
    t_rd.append((16, [I("WAITLGKM", cost=1), bar_b]))
    if OPT["stamp"] >= 3:
        t_rd += [(g, stamp_ins(f"g{g}")) for g in (17, 32, 64, 120)]
    t_dma = []
    for k, x in enumerate(dma_w2(2, uslot[2]) + dma_w2(3, uslot[3])):
        x.after = [bar_b]
        t_dma.append((17 + OPT["udist"] * k, x))
    own, s_h2 = {}, []
    dead = {0: B0 - 3, 1: G + 13, 2: G + 45}
    items = []
    for u, b in uns:
        c, d = acc(2 * u, b), acc(2 * u + 1, b)
        o = [I(f"v_mul_f32 v{r + i}, v{r + i}, |v{r + i}|") for r in (c, d) for i in range(4)]
        for x in o:
            x.deps = done[u, b][1]
        o += [I(f"v_cvt_pk_bf16_f32 v{c + i}, v{r}, v{r + 1}") for i, r in enumerate((c, c + 2, d, d + 2))]
        own[u, b] = [I(f"v_pk_max_i16 v{c + i}, v{c + i}, 0") for i in range(4)]
        w = I(f"ds_write_b128 {hw.wr(u * 32768 + b * 1024, vr(c, 4))}", tag=f"H{u}")
        w.after = [bar_b]
        items += [(done[u, b][0] + 4, x, u) for x in o + own[u, b] + [w]]
    g_first = items[0][0]
    for n, (e, x, u) in enumerate(items):
        s_h2.append((e, x, max(e, min(dead[u], g_first + 2 + (n * (dead[2] - g_first - 2)) // len(items)))))
    land = {(0, 1): "a224", (0, 2): "a128", (0, 3): "a160", (1, 1): "v128", (1, 2): "a0", (1, 3): "a32",
            (2, 1): "a64", (2, 2): "a96", (2, 3): "a192"}

    def hreg(ks, b):
        u, i = divmod(ks, 4)
        if i == 0:
            return vr(acc(2 * u, b), 4)
        return vr(int(land[u, i][1:]) + 4 * b, 4, land[u, i][0])

    hrd = {(4 * u + i, b): I(f"ds_read_b128 {hreg(4 * u + i, b)}, {hr[i].at(u * 32768 + b * 1024)}") for u, i in land for b in range(8)}
    hdep = lambda ks, b: own[ks // 4, b] if ks % 4 == 0 else [hrd[ks, b]]
    t_hook = [(B0 - 50, x) for x in poll_load("init")]
    t_rd += [(B0 - 1, x) for x in poll_check("ffn", "init", "init")]
    t_rd.append((B0, [I("WAITLG H0", cost=0), I("WAITVM U0", cost=1), bar_0]))
    if OPT["stamp"] >= 1:
        t_rd.append((G - 18, stamp_ins("A18m")))
    t_hook += [(G + 50, x, G + 92) for x in page_setup()] + [(G + 130, x) for x in b2_addr(31, 13)]
    SL = OPT["slack"]
    chk_at = {3 * r + SL: r for r in range(9) if 3 * r + SL <= 26}
    assert SL > 3 + OPT["sig"]
    nchk = len(chk_at)
    nin = sum(1 for n in chk_at if n < 25)
    sig_at = {min(3 * t + 3 + OPT["sig"], 26): t for t in range(8)}
    units, hooks, free, fslot = [], [], [], {}
    issued = 4
    for n in range(27):
        u = dict(tile=n // 3, tag=f"U{n}", wtags=[], pre=[], dma=[])
        if n >= 1:
            free.append(uslot[n - 1])
        if n == 3:
            free += [16384 * i for i in range(6)]
        fd = []
        if n in sig_at:
            if not OPT["nosig"]:
                u["wtags"].append(f"P{sig_at[n]}")
            u["pre"] += signal(sig_at[n])
        if n in chk_at:
            r = chk_at[n]
            if not OPT["nochk"]:
                hooks += [(G + 32 * n + 16 - OPT["pdist"], y) for y in poll_load(r)]
                u["chk"] = poll_check("ffn", r, "F")
            if r < nin:
                fslot[r] = free.pop(0)
                fd = [I(f"s_add_u32 m0, s65, {fslot[r]}")]
                for i in range(3):
                    fd += [I(f"s_add_u32 s60, s{PGS[r // 3]}, {((r % 3) * 16 + 4 * i) * SRCS - 1024 * i}"),
                           I(f"buffer_load_dwordx4 v{vCON}, {srd(SWS)}, s60 offen offset:{1024 * i} sc1 lds", tag="FD")]
        if n == 24:
            b2lds = free.pop(0)
            fd += b2_dma(31, b2lds)
        k = 0
        while issued < 27 and issued <= n + OPT["look"] and free and k < (1 if fd else 2):
            uslot[issued] = free.pop(0)
            u["dma"] += dma_w2(issued, uslot[issued])
            issued += 1
            k += 1
        assert issued >= min(27, n + 3)
        u["dma"] += fd
        units.append(u)
    for n, u in enumerate(units):
        u["ks"] = [(4 * (n % 3) + q, uslot[n], 2048) for q in range(4)]
    units[0]["ltag"], units[1]["ltag"] = "H1", "H2"
    r0, s_rd, s_dma, s_ep = phase_b(units, hreg, hdep, lambda qi: trBs[qi], OPT["stg"], mf)
    t_rd += [(G - 15 + 4 * k, x) for k, x in enumerate(r0)]
    s_end = [(G + 32 * 24, x) for x in end_setup("ffn")]
    s_end[0][1].after = [[x for x in flat([u["dma"] for u in units]) if x.tag == "U26"][-1]]
    s_h = []
    for u in range(3):
        bar = [bar_0, units[0]["bar"], units[1]["bar"]][u]
        g0 = [max(B0, 128) + 1, G + 17, G + 49][u]
        for n in range(24):
            x = hrd[4 * u + 1 + n // 8, n % 8]
            x.after = [bar]
            e = g0 + (2 * n if u == 0 else n)
            s_h.append((e, x, max(e, G + 32 * u + 8 + n - 8)))
    p.extend((sched2 if OPT["s2"] else sched)(mf, [t_rd + s_rd, s_h, s_ep, t_dma + s_dma, t_hook + sorted(hooks, key=lambda h: h[0]), s_h2 + s_end]))
    stamp(p, "Bend")
    pre = P()(f"v_add_u32 v2, s65, v{vL16}\nv_add_u32 v3, 0x10000, v2\nv_add_u32 v4, 0x20000, v2")
    fa = Addr([2, 3, 4])
    rd = [I(f"ds_read_b128 {FRV(r, i)}, {fa.at(fslot[r] + i * 1024)}") for r in range(nin) for i in range(3)]
    end_phase(p, "ffn", FRV, nin, nchk, pre, rd, OPT["est"], b2lds, "P8", 8)
    return p


def role_att():
    p = P()
    WSL, XR, XSL, GT, ZT = 28672, 114688, 20480, 155648, 162304
    EO, RO, OB = 64512, 20736, 4736
    WO = [129024, 64512, 84992, 41472, 105984]
    if OPT["amap"]:
        p(f"""L_att:
        s_bfe_u32 s{sSRC}, s2, 0x20004
        s_add_u32 s{sSRC}, s{sSRC}, 12
        s_and_b32 s{sMT}, s{sMT}, 9
        s_lshl1_add_u32 s{sMT}, s59, s{sMT}
        """)
    else:
        p(f"L_att:\ns_add_u32 s{sSRC}, s59, 12")
    if OPT["rga"]:
        ms = [int(x) for x in str(OPT["rga"]).split(",")][::-1]
        p(bit_of(ms[0], sG))
        for m in ms[1:]:
            p(bit_of(m, 59) + f"\ns_lshl1_add_u32 s{sG}, s{sG}, s59")
    code_touch(p, "att", 39)
    p(f"""
    s_sub_u32 s67, s{sSRC}, 12
    v_lshrrev_b32 v32, 3, v0
    v_and_b32 v33, 7, v0
    s_mul_i32 s63, s{sMT}, 147456
    s_and_b32 s69, s{sW}, 1
    s_lshr_b32 s60, s{sW}, 1
    s_mul_i32 s59, s69, 64
    s_add_u32 s59, s59, s60
    s_mul_i32 s59, s59, 1152
    s_add_u32 s59, s59, s63
    v_lshrrev_b32 v35, 1, v32
    v_xor_b32 v35, v33, v35
    v_lshlrev_b32 v35, 4, v35
    v_mul_u32_u24 v34, 2304, v32
    v_add3_u32 v1, v34, v35, s59
    v_xor_b32 v36, 64, v35
    s_add_u32 s59, s59, {16 * 1152 - 1024}
    v_add3_u32 v2, v34, v36, s59
    v_add_u32 v3, {32 * 1152 - 2048}, v1
    v_add_u32 v4, {32 * 1152 - 2048}, v2
    s_sub_u32 s59, s{sW}, 16
    s_mul_i32 s59, s59, 1152
    s_add_u32 s59, s59, s63
    s_cmp_eq_u32 s{sMT}, 0
    s_cselect_b32 s62, 0, 2
    s_cmp_ge_u32 s{sW}, s62
    s_cselect_b32 s59, {OOB}, s59
    s_lshl_b32 s62, s69, 6
    v_xor_b32 v36, s62, v35
    v_add3_u32 v5, v34, v36, s59
    s_lshl_b32 s59, s69, 2
    v_and_or_b32 v38, v32, 2, s59
    v_xor_b32 v38, v33, v38
    s_mul_i32 s59, s{sW}, {8 * 3456}
    s_add_u32 s59, s59, 2048
    v_mul_u32_u24 v36, 3456, v32
    v_add_u32 v36, s59, v36
    v_lshl_add_u32 v6, v38, 4, v36
    v_subrev_u32 v7, 896, v6
    v_subrev_u32 v8, 1792, v6
    v_lshrrev_b32 v35, 1, v38
    v_subrev_u32 v37, s67, v35
    v_and_b32 v37, 256, v37
    v_add_u32 v6, v6, v37
    v_subrev_u32 v27, 896, v6
    v_mul_u32_u24 v37, 1152, v35
    v_add_u32 v35, 1, v35
    v_lshrrev_b32 v35, 2, v35
    v_lshl_add_u32 v36, v35, 31, v36
    v_and_b32 v35, 1, v38
    v_lshl_add_u32 v37, v35, 4, v37
    s_lshl_b32 s59, s67, 5
    s_sub_u32 s59, s59, {2048 - 256}
    v_add3_u32 v9, v37, v36, s59
    s_lshl_b32 s64, s67, 8
    s_lshl_b32 s65, s{sW}, 12
    s_mul_i32 s66, s{sW}, 7168
    s_lshl_b32 s82, s{sW}, 10
    {bit_of(OPT["xb"], 85)}
    s_mul_i32 s48, s85, {32 * 3456}
    """)
    srd_const(p, SX, 2048 * 1152)
    srd_const(p, SWA, 576 * 3456 + 2048)
    p("s_branch L_att_mid\nL_att_mid:" if OPT["split3"] else "L_att_mid:")
    p("WAITLGKM")
    stamp_begin(p, "att", 47)
    stamp(p, "karg", 2)
    srd_ptr(p, SWA, 6, 2048)
    srd_ptr(p, SX, 4)

    def dma5(base, regs, sr, soff, tag):
        o = [I(f"s_add_u32 m0, s65, {base}")] + soff
        for q in range(4):
            o.append(I(f"buffer_load_dwordx4 v{regs[q]}, {srd(sr)}, s60 offen offset:{1024 * q} lds", tag=tag))
        o.append(I(f"s_add_u32 m0, s82, {base + 16384}"))
        o.append(I(f"buffer_load_dwordx4 v{regs[4]}, {srd(sr)}, s60 offen lds", tag=tag))
        return o

    dma_x = lambda J: dma5(XR + (J % 2) * XSL, [1, 2, 3, 4, 5], SX, x_soff(J, "0")[:2 if J < 8 else 1], f"R{J}")
    wslot = {}

    def dma_wo(k, slot):
        wslot[k] = slot
        o = [I(f"s_add_u32 m0, s69, {slot}"), I(f"s_add_u32 s60, s{70 + k // 4}, {36 * (k % 4) * 1152}" if k < 16 else f"s_add_u32 s60, s64, {288 * (k - 16) * 1152}")]
        for q in range(3):
            o.append(I(f"buffer_load_dwordx4 v{(15 if k < 16 else 18) + q}, {srd(SWB)}, s60 offen offset:{1024 * q} lds", tag=f"O{k}"))
        return o

    def dma_w(j):
        tg = f"W{j}"
        o = w_block(j, 64, 3456) + [I(f"s_add_u32 m0, s66, {(j % 4) * WSL}"), I(f"s_add_u32 s60, s{sWB}, s{48 + j % 2}")]
        for q, r in ((1, 7), (3, 8), (0, 6), (2, 27)):
            o.append(I(f"buffer_load_dwordx4 v{r}, {srd(SWA)}, s60 offen offset:{1024 * q} lds", tag=tg))
        o.append(I(f"s_add_u32 m0, s66, {(j % 4) * WSL + 4096}"))
        o.append(I("s_add_u32 s59, s60, 2304"))
        o.append(I(f"buffer_load_dwordx4 v9, {srd(SWA)}, s60 offen offset:2048 lds", tag=tg))
        o.append(I(f"buffer_load_dwordx4 v6, {srd(SWA)}, s59 offen lds", tag=tg))
        o.append(I(f"buffer_load_dwordx4 v7, {srd(SWA)}, s59 offen offset:1024 lds", tag=tg))
        return o

    p.extend(dma_x(0) + dma_w(0))
    stamp(p, "d0", 2)
    p("s_branch L_att_late\nL_att_late:")
    p(f"""
    s_lshl_b32 s59, s{sW}, 6
    v_add_u32 v42, s59, v0
    v_lshlrev_b32 v43, 1, v42
    s_lshl_b32 s59, s85, 6
    v_xor_b32 v43, s59, v43
    s_lshl_b32 s59, s{sG}, 7
    v_xor_b32 v44, s59, v43
    v_xor_b32 v45, 512, v44
    s_sub_u32 s49, {32 * 3456}, s48
    """)
    srd_ptr(p, SSM, 20); srd_const(p, SSM, 576 * 2)
    for i in range(3):
        p(f"buffer_load_ushort v{48 + 2 * i}, v{[44, 45, 43][i]}, {srd(SSM)}, 0 offen offset:{[0, 0, 1024][i]}")
    srd_ptr(p, SWB, 8, 2048); srd_const(p, SWB, 576 * 1152 + 2048)
    srd_ptr(p, SWS, 26); srd_const(p, SWS, WS_SIZE)
    p(f"""
    v_and_b32 v34, 3, v42
    v_lshlrev_b32 v34, 3, v34
    v_bfe_u32 v35, v42, 2, 1
    v_lshl_add_u32 v34, v35, 9, v34
    v_bfe_u32 v35, v42, 3, 4
    v_lshl_add_u32 v34, v35, 5, v34
    v_lshrrev_b32 v35, 7, v42
    v_lshl_add_u32 v34, v35, 10, v34
    v_add_u32 v43, {GT}, v34
    v_and_b32 v36, 3, v32
    v_and_b32 v37, 3, v0
    v_lshlrev_b32 v37, 3, v37
    v_lshrrev_b32 v34, 4, v0
    v_bfe_u32 v35, v0, 2, 2
    v_xor_b32 v36, s{sW}, v36
    v_lshl_add_u32 v36, v36, 5, v37
    v_lshl_add_u32 v36, v35, 7, v36
    v_mul_u32_u24 v10, 7168, v34
    v_add_u32 v10, v10, v36
    v_add_u32 v12, 6144, v10
    s_cmp_lt_u32 s{sW}, s67
    s_cselect_b32 s59, 1024, 0
    s_sub_u32 s60, 1024, s59
    v_add_u32 v25, s60, v10
    v_add_u32 v10, s59, v10
    v_add_u32 v11, 0x10000, v10
    v_add_u32 v29, 0x10000, v25
    v_lshlrev_b32 v37, 5, v34
    v_lshl_add_u32 v37, v35, 3, v37
    v_add_u32 v37, {GT}, v37
    s_cmp_eq_u32 s{sW}, 3
    s_cselect_b64 vcc, -1, 0
    s_mov_b32 s62, {WSL}
    s_mov_b32 s83, {-3 * WSL}
    s_cselect_b32 s62, 128, s62
    s_cselect_b32 s83, 640, s83
    v_cndmask_b32 v12, v12, v37, vcc
    v_and_b32 v36, 15, v0
    v_lshrrev_b32 v37, 1, v36
    v_xor_b32 v37, v37, v34
    v_lshlrev_b32 v37, 4, v37
    v_lshl_add_u32 v13, v36, 7, v37
    v_add_u32 v13, {XR}, v13
    s_lshl_b32 s59, s85, 6
    v_xor_b32 v13, s59, v13
    v_xor_b32 v14, 64, v13
    s_mul_i32 s69, s{sW}, 3072
    """)
    warm(p, "att")
    stamp(p, "warm", 2)
    p("s_branch L_att_body\nL_att_body:")
    p.extend(dma_w(1))
    rho, st = {0: -1}, 1
    for j in range(16):
        for _ in range(2 if j == OPT["dbla"] else 1):
            rho[st] = j
            st += 1
    assert rho[17] == 15
    free_at = lambda sg: rho[sg] + 1 if sg >= 0 else -1
    groups = [(-1, dma_x(1)), (-1, dma_w(2)), (-1, dma_w(3))]
    rest = [(free_at(2 * J - 3), 0, dma_x, J) for J in range(2, 9)] + [(max(free_at(j - 4), 1), 1, dma_w, j) for j in range(4, 18)]
    groups += [(e, f(k)) for e, _, f, k in sorted(rest, key=lambda r: (r[0], r[1], r[3]))]
    trA = [Addr([10, 11]), Addr([25, 29])]
    xr = [Addr([13]), Addr([14])]
    xf = lambda j, b: vr(36 * (j % 3) + 4 * b, 4, "a")
    wf = lambda j, t: 108 + 28 * (j % 3) + 4 * t
    nb = [8, 8, 9, 9, 9, 9, 9]
    accbase = [48, 80, 112, 148, 184, 220]
    A6 = 192
    acc = lambda t, b: vr(accbase[t] + 4 * b, 4) if t < 6 else vr(A6 + 4 * b, 4, "a")
    rdc = {}

    def reads(j):
        o = []
        for t in range(7):
            w = wf(j, t)
            if t < 6:
                off = (j % 4) * WSL + (t // 2) * 2048
                a0, a1 = trA[t % 2].at(off), trA[t % 2].at(off + 512)
            else:
                a0, a1 = "v12", "v12 offset:512"
            o.append([I(f"ds_read_b64_tr_b16 {vr(w, 2, 'a')}, {a0}"), I(f"ds_read_b64_tr_b16 {vr(w + 2, 2, 'a')}, {a1}")])
        xs = [I(f"ds_read_b128 {xf(j, b)}, {xr[j % 2].at(((j // 2) % 2) * XSL + b * 2048)}") for b in range(9)]
        rdc[j] = (o, xs)
        return o[0] + xs + [y for x in o[1:] for y in x] + [I(f"v_add_u32 v12, s{83 if j % 4 == 3 else 62}, v12")]

    def mfa(j, t, b):
        x = I(f"{MF} {acc(t, b)}, {vr(wf(j, t), 4, 'a')}, {xf(j, b)}, {'0' if j == 0 else acc(t, b)}")
        x.deps = rdc[j][0][t] + [rdc[j][1][b]]
        return x

    pro, paced = pace(groups, 15, OPT["capa"], 56, BG, OPT["nproa"])
    k = split_vm(pro, OPT["nprea"])
    p.extend(pro[:k])
    for i in range(3):
        p(f"v_lshl_or_b32 v{48 + 2 * i}, v{48 + 2 * i}, 16, v{48 + 2 * i}\nv_mov_b32 v{49 + 2 * i}, v{48 + 2 * i}")
        p(f"ds_write_b64 v43, {vr(48 + 2 * i, 2)} offset:{2048 * i}")
    p("WAITVM R0 W0\nWAITLGKM")
    stamp(p, "land", 2)
    p("s_barrier")
    p.extend(reads(0))
    p.extend(pro[k:])
    if not OPT["fastst"]:
        p("WAITLGKM")
    stamp(p, "A0")

    hs = handoff_setup(68, 0x100)
    ci_a, race, pub = counter_init(42)
    wo_addr = P()(f"""
    s_mul_i32 s85, s{sW}, {8 * 1152}
    s_add_u32 s85, s85, 2048
    v_mul_u32_u24 v34, 1152, v32
    v_lshl_add_u32 v34, v38, 4, v34
    v_add_u32 v15, s85, v34
    v_subrev_u32 v16, 896, v15
    v_subrev_u32 v17, 1792, v15
    v_lshrrev_b32 v35, 2, v32
    v_mul_u32_u24 v35, {32 * 1152}, v35
    s_mul_i32 s85, s{sW}, {72 * 1152}
    s_add_u32 s85, s85, {32 * 1152 + 2048}
    v_add3_u32 v18, v34, v35, s85
    v_subrev_u32 v19, 896, v18
    v_subrev_u32 v20, 1792, v18
    """)
    ep_addr = P()(f"""
    v_and_b32 v40, 15, v0
    v_lshrrev_b32 v41, 4, v0
    v_mul_u32_u24 v30, 576, v41
    v_lshl_add_u32 v30, v40, 3, v30
    s_sub_u32 s17, s{sW}, s67
    s_and_b32 s17, s17, 3
    s_mul_i32 s85, s17, 2304
    v_add_u32 v30, s85, v30
    v_add_u32 v31, {EO}, v30
    v_lshrrev_b32 v42, 3, v40
    v_mul_u32_u24 v42, {EO - 64}, v42
    v_add_u32 v32, v30, v42
    s_mul_i32 s85, s{sW}, 9
    s_add_u32 s85, s85, 8
    s_min_u32 s85, s85, 27
    s_sub_u32 s85, s85, s17
    s_mul_i32 s85, s85, 2304
    v_add_u32 v33, s85, v30
    v_add_u32 v34, s85, v31
    v_add_u32 v35, s85, v32
    s_mul_i32 s85, s{sW}, {9 * 576}
    v_lshl_add_u32 v36, v0, 3, s85
    v_add_u32 v37, {EO}, v36
    v_and_b32 v42, 3, v0
    v_lshl_add_u32 v42, v41, 2, v42
    v_bfe_u32 v43, v0, 2, 2
    v_lshl_add_u32 v42, v42, 2, v43
    v_lshl_add_u32 v38, v42, 3, s85
    v_add_u32 v39, {EO}, v38
    s_add_u32 s85, s{sW}, 1
    s_and_b32 s85, s85, 4
    s_lshl_b32 s85, s85, 7
    s_sub_u32 s85, {ZT + 512}, s85
    v_lshl_add_u32 v46, v40, 3, s85
    s_lshl_b32 s85, s{sMT}, 6
    v_add_u32 v42, s85, v0
    v_mov_b32 v43, {hex(f2u(-2.0 ** 100))}
    v_cmp_gt_u32 s[8:9], 8, v42
    v_cmp_gt_u32 s[10:11], 4, v42
    """)
    for i in range(8):
        ep_addr(f"v_cndmask_b32 v{2 + i}, 0, v43, s[{8 + 2 * (i // 4)}:{9 + 2 * (i // 4)}]")

    def epi(t, b, n):
        tmp = 40 + 2 * (n % 3)
        o = []
        if t < 6:
            c = accbase[t] + 4 * b
            base, off = 30, (9 * (t // 2) + 4 * (t % 2)) * 2304
        else:
            c = 48 + 4 * b
            base, off = 33, 0
            if b < 8:
                o.append(I(f"ds_write_b32 v46, a{A6 + 4 * b} offset:{128 * (b % 4) + 4 * (b // 4)}"))
            o += [I(f"v_accvgpr_read_b32 v{c + i}, a{A6 + 4 * b + i}") for i in range(4)]
        o += [I(f"v_cvt_pk_bf16_f32 v{tmp}, v{c}, v{c + 1}"), I(f"v_cvt_pk_bf16_f32 v{tmp + 1}, v{c + 2}, v{c + 3}")]
        o.append(I(f"ds_write_b64 v{base + b // 4}, {vr(tmp, 2)} offset:{off + (128 * (b % 4) + 64 if b < 8 else 0)}"))
        return o

    late = {1: hs[27:46], 2: ci_a, 3: hs[46:], 10: wo_addr,
            12: code_touch2("att", 39) + b2_touch(46), 14: page_setup() + ep_addr}
    for q in range(4):
        wo_addr(f"s_xor_b32 s85, s67, {q}\ns_mul_i32 s85, s85, {144 * 1152}\ns_add_u32 s{70 + q}, s85, s64")
    if OPT["amap"]:
        wo_t = P()(f"""
        s_mul_i32 s85, s68, {162 * 128}
        s_add_u32 s85, s85, 2048
        v_min_u32 v21, 53, v0
        v_lshl_add_u32 v21, v21, 7, s85
        s_movk_i32 s6, {54 * 128}
        s_movk_i32 s7, {108 * 128}
        """)
        wt = [I(f"buffer_load_dword a255, v21, {srd(SWB)}, {o} offen") for o in ("0", "s6", "s7")]
    else:
        wo_t = P()(f"""
        s_mul_i32 s85, s68, {18 * 1152}
        s_add_u32 s85, s85, 2048
        v_min_u32 v22, 53, v0
        v_mul_u32_u24 v21, 43, v22
        v_lshrrev_b32 v21, 7, v21
        v_mul_u32_u24 v21, {1152 - 384}, v21
        v_lshl_add_u32 v21, v22, 7, v21
        v_add_u32 v21, s85, v21
        """)
        wt = [I(f"buffer_load_dword a255, v21, {srd(SWB)}, s64 offen")]
    for x in wt:
        x.writes = set()
    assert not paced[14]
    tbs = [(t, b) for t in range(7) for b in range(nb[t])]
    for j in range(15):
        mf = [mfa(j, t, b) for t, b in tbs]
        sts = [k for k in rho if rho[k] == j]
        tags = " ".join(f"W{k} R{k // 2}" for k in sts)
        if j == 4:
            tags += " FI"
        side = [(4, x) for x in late.get(j, [])]
        hi = []
        if j == 4:
            hi = race(1)[:1]
        if 5 <= j < 5 + OPT["nrace"]:
            hi = race(j - 5)
        if j == 5 + OPT["nrace"]:
            side = [(2, x) for x in pub] + side
        if j == 13:
            side += [(1, x) for x in poll_load("init")]
        if j == 13:
            side += [(4, x) for x in wo_t]
        gemm_step(p, j, mf, tags, [x for k in sts for x in reads(k)], paced[j], side, (), hi)
        if j == 13:
            p.extend(flat(poll_check("att", "init", "init")))
        p("WAITLGKM")
        if j in (0, 1, 3, 8):
            stamp(p, f"A{j + 1}", 2)
    stamp(p, "A15")
    r17 = reads(17)[:-1]
    N0 = 14
    mf = [mfa(j, t, b) for j in (15, 16) for t, b in tbs[:N0]]
    done = {}
    for n in range(0, len(tbs), 2):
        for j in ((17,) if n < N0 else (15, 16, 17)):
            for tb in tbs[n:n + 2]:
                mf.append(mfa(j, *tb))
                done[tb] = len(mf) - 1
    bar_b = I("s_barrier")
    t_rd = [(0, [I("WAITVM W17 R8", cost=1), I("s_barrier")])] + [(1 + i, x) for i, x in enumerate(r17)]
    t_rd.append((29, [I("WAITLGKM", cost=1), bar_b]))
    misc = P()(f"""
    v_lshlrev_b32 v27, 3, v0
    v_add_u32 v1, {ZT}, v27
    s_min_u32 s59, s{sW}, 1
    s_lshl_b32 s59, s59, 31
    v_add_u32 v27, s59, v27
    s_lshl_b32 s16, s67, 9
    s_add_u32 s16, s16, s{sFL}
    s_add_u32 s16, s16, {O_Z - O_CNT}
    s_mov_b32 s8, 0x11111111
    s_mov_b32 s9, s8
    s_mov_b32 s10, 0x33333333
    s_mov_b32 s11, s10
    s_mov_b32 s12, 0x77777777
    s_mov_b32 s13, s12
    v_mov_b32 v40, 0xffff0000
    v_mov_b32 v41, 0xffff
    v_cndmask_b32 v23, 0, v40, s[8:9]
    v_cndmask_b32 v26, 0, v41, s[10:11]
    v_cndmask_b32 v40, 0, v40, s[12:13]
    v_or_b32 v26, v26, v40
    s_mov_b32 s14, {hex(f2u((18 ** -0.5) * 1.4426950408889634))}
    s_mov_b32 s15, s14
    v_lshrrev_b32 v40, 3, v0
    v_and_b32 v41, 7, v0
    v_lshlrev_b32 v41, 4, v41
    v_lshrrev_b32 v42, 5, v0
    v_lshl_add_u32 v42, v42, 13, v41
    s_lshl_b32 s59, s67, 2
    s_add_u32 s59, s59, s{sW}
    s_lshl_b32 s63, s59, 7
    s_add_u32 s63, s63, s4
    s_add_u32 s63, s63, {O_OT}
    s_lshl_b32 s62, s59, 14
    s_add_u32 s62, s62, s4
    """)
    misc2 = P()(f"""
    v_lshl_add_u32 v10, v40, 10, v41
    v_lshl_add_u32 v11, v40, 11, v42
    """)
    for x in misc2:
        x.after = [r17[-1]]
    t_ep = [(1, x) for x in misc] + [(25, x) for x in misc2]
    for n, tb in enumerate(tbs):
        for x in epi(*tb, n):
            if x.kind == "dsw":
                x.after = [bar_b]
            if x.reads & mf[done[tb]].writes:
                x.deps = [mf[done[tb]]]
            t_ep.append((max(done[tb] + 4, 30), x))
    t_dma = [(2 + 12 * k, x) for k, x in enumerate(wt * bool(OPT["wot"]))]
    for k, x in enumerate(dma_wo(0, 129024) + dma_wo(1, 129024 + 12288)):
        x.after = [bar_b]
        t_dma.append((90 + 6 * k, x))
    p.extend(sched2(mf, [t_rd, t_dma, t_ep], state=sstate))
    stamp(p, "Aend")
    p("v_mov_b32 v145, 0\nv_mov_b32 v146, 0\nv_mov_b32 v149, 0\nv_mov_b32 v150, 0")
    AR = [int(x) for x in str(OPT["ar"]).split(",")]
    FRA = lambda r, i: vr(144 + 12 * r + 4 * i, 4, "a")
    p("WAITLGKM\ns_barrier")
    stamp(p, "join", 2)

    S = lambda u, z: 48 + 12 * u + 4 * z
    grp = [(e, lq) for e in range(2) for lq in range(9)]

    def kq_rd(gi):
        e, lq = grp[gi]
        kb = 112 + 8 * (gi % 4)
        o = [I(f"ds_read_b64 {vr(kb + 2 * z, 2)}, v{36 + e} offset:{RO + lq * 576 + 32 * z}") for z in range(3)]
        if lq == 4:
            o += [I(f"ds_read_b32 v{144 + 4 * e}, v{36 + e} offset:{lq * 576 + 64}"),
                  I(f"ds_read_b32 v{147 + 4 * e}, v{36 + e} offset:{lq * 576 + 68}")]
        else:
            o.append(I(f"ds_read_b64 {vr(kb + 6, 2)}, v{36 + e} offset:{lq * 576 + 64}"))
        return o

    p.extend(kq_rd(0) + kq_rd(1) + kq_rd(2))
    VA = lambda lq, z, e: 12 * lq + 4 * z + 2 * e
    vrd = [I(f"ds_read_b64_tr_b16 {vr(VA(lq, z, e), 2, 'a')}, v{38 + e} offset:{2 * RO + lq * 576 + 32 * z}")
           for lq in range(9) for z in range(3) for e in range(2)]
    tail_rd = [I("ds_read_b64 v[96:97], v1")] + vrd[:12]
    for gi, (e, lq) in enumerate(grp):
        kb = 112 + 8 * (gi % 4)
        nx = kq_rd(gi + 3) if gi + 3 < 18 else []
        for hh in ([0] if lq < 4 else [0, 1] if lq == 4 else [1]):
            u = 2 * e + hh
            q = vr(144 + 4 * e + 2 * hh, 2) if lq == 4 else vr(kb + 6, 2)
            for z in range(3):
                c = vr(S(u, z), 4) if lq != 4 * hh else ["v[2:5]", "v[6:9]", "0"][z]
                p(f"{MF4} {vr(S(u, z), 4)}, {vr(kb + 2 * z, 2)}, {q}, {c}")
                if nx:
                    p.append(nx.pop(0))
                elif gi >= 15:
                    p.append(tail_rd.pop(0))
        p.extend(nx)
    p.extend(tail_rd)
    stamp(p, "qk", 2)
    p("s_barrier")

    sm = P()
    B = lambda u: S(u, 0)
    U4 = range(4)
    for r in (1, 2, 3):
        for u in U4:
            sm(f"v_cndmask_b32 v{B(u) + 8 + r}, v{B(u) + 8 + r}, v{B(u) + r}, s[{6 + 2 * r}:{7 + 2 * r}]")
    for u in U4:
        sm(f"v_max3_f32 v{B(u)}, v{B(u) + 4}, v{B(u) + 5}, v{B(u) + 6}")
    for k in (7, 9):
        for u in U4:
            sm(f"v_max3_f32 v{B(u)}, v{B(u)}, v{B(u) + k}, v{B(u) + k + 1}")
    for u in U4:
        sm(f"v_max_f32 v{B(u)}, v{B(u)}, v{B(u) + 11}")
    for u in U4:
        sm(f"v_mul_f32 v{B(u)}, s14, v{B(u)}")
    for u in U4:
        for k in (4, 6, 8, 10):
            sm(f"v_pk_fma_f32 {vr(B(u) + k, 2)}, {vr(B(u) + k, 2)}, s[14:15], {vr(B(u), 2)} op_sel_hi:[1,1,0] neg_lo:[0,0,1] neg_hi:[0,0,1]")
    for u in U4:
        for k in range(4, 12):
            sm(f"v_exp_f32 v{B(u) + k}, v{B(u) + k}")
    for u in U4:
        sm(f"v_pk_add_f32 {vr(B(u), 2)}, {vr(B(u) + 4, 2)}, {vr(B(u) + 6, 2)}")
        sm(f"v_pk_add_f32 {vr(B(u) + 2, 2)}, {vr(B(u) + 8, 2)}, {vr(B(u) + 10, 2)}")
    for u in U4:
        sm(f"v_pk_add_f32 {vr(B(u), 2)}, {vr(B(u), 2)}, {vr(B(u) + 2, 2)}")
    for u in U4:
        sm(f"v_add_f32 v{B(u)}, v{B(u)}, v{B(u) + 1}")
    for u in U4:
        sm(f"v_rcp_f32 v{B(u)}, v{B(u)}")
    for u in U4:
        for k in (4, 6, 8, 10):
            sm(f"v_pk_mul_f32 {vr(B(u) + k, 2)}, {vr(B(u) + k, 2)}, {vr(B(u), 2)} op_sel_hi:[1,0]")
    for u in U4:
        for k in (4, 8):
            sm(f"v_cvt_pk_bf16_f32 v{B(u) + k}, v{B(u) + k}, v{B(u) + k + 1}")
            sm(f"v_cvt_pk_bf16_f32 v{B(u) + k + 1}, v{B(u) + k + 2}, v{B(u) + k + 3}")
    for u in U4:
        for i in range(2):
            sm(f"v_and_b32 v{B(u) + i}, v{[23, 26][i]}, v{B(u) + 8 + i}")
            sm(f"v_bfi_b32 v{B(u) + 8 + i}, v{[23, 26][i]}, 0, v{B(u) + 8 + i}")
    vmq = [I(f"buffer_store_dwordx2 v[96:97], v27, {srd(SWS)}, s16 offen sc1")] + [y for k in range(2, OPT["wosm"]) for y in dma_wo(k, (k - 2) % 3 * 12288 + (k - 2) // 3 * EO)]
    nv = sum(1 for x in vmq if x.kind in VM)
    step = max(1, len(sm) // (nv + 1))
    for i, x in enumerate(sm):
        p.append(x)
        if i % step == step - 1:
            while vmq:
                y = vmq.pop(0)
                p.append(y)
                if y.kind in VM:
                    break
    p.extend(vmq)
    stamp(p, "smax", 2)
    po = lambda e, d: 192 + 16 * e + d if d < 16 else 224 + 2 * e + d - 16
    D = lambda lq, hh, e: 100 + 8 * (lq + hh) + 4 * e
    m4, cv = [], []
    for lq in range(9):
        hhs = [0] if lq < 4 else [0, 1] if lq == 4 else [1]
        for z in range(3):
            for hh in hhs:
                for e in range(2):
                    d = vr(D(lq, hh, e), 4)
                    m4.append(I(f"{MF4} {d}, {vr(VA(lq, z, e), 2, 'a')}, {vr(S(2 * e + hh, z), 2)}, {d if z else '0'}"))
                    m4[-1].deps = [vrd[6 * lq + 2 * z + e]]
    for g in range(5):
        for e in range(2):
            c = []
            for lq in ((2 * g, 2 * g + 1) if g < 4 else (8,)):
                lo, hi_ = D(lq, int(lq > 4), e), D(lq, int(lq >= 4), e)
                c += [I(f"v_cvt_pk_bf16_f32 v{po(e, 2 * lq)}, v{lo}, v{lo + 1}"), I(f"v_cvt_pk_bf16_f32 v{po(e, 2 * lq + 1)}, v{hi_ + 2}, v{hi_ + 3}")]
            w = [I(f"buffer_store_dwordx4 {vr(po(e, 4 * g), 4)}, v10, {srd(SWS)}, s62 offen offset:{g * 256 + e * 128} sc1", tag="OS")] if g < 4 else \
                [I(f"buffer_store_dwordx4 v[224:227], v11, {srd(SWS)}, s63 offen sc1", tag="OS")] * e
            cv.append((c, w))
    for x, y in zip(m4[:42], vrd[12:]):
        p.extend([x, y])
    rest = m4[42:]
    for c, w in cv:
        for x in c:
            if rest and x is not c[0]:
                p.append(rest.pop(0))
            p.append(x)
        if rest:
            p.append(rest.pop(0))
        p.extend(w)
    assert not rest
    stamp(p, "core")
    if OPT["stamp"]:
        p("v_mov_b32 v30, v47")
        cur["vst"] = 30
    if AR[0] >= 0:
        p.extend(flat(poll_load(AR[0], sP1)))
    for k in range(OPT["wosm"], 8):
        p.extend(dma_wo(k, EO + (k - 5) * 12288))
    TW = 160
    p(f"""
    v_bfe_u32 v1, v0, 3, 2
    v_and_b32 v2, 3, v0
    v_lshlrev_b32 v2, 3, v2
    v_bfe_u32 v3, v0, 2, 2
    v_lshl_add_u32 v2, v3, 7, v2
    v_lshrrev_b32 v3, 4, v0
    v_mul_u32_u24 v4, 3072, v3
    v_add_u32 v2, v2, v4
    """)
    for j in range(4):
        p(f"""
        s_add_u32 s59, s67, {j}
        s_and_b32 s60, s59, 3
        s_lshr_b32 s59, s59, 2
        s_lshl_b32 s59, s59, 10
        v_xor_b32 v4, s60, v1
        v_lshl_add_u32 v4, v4, 5, v2
        v_add_u32 v{TW + 3 * j}, s59, v4
        v_add_u32 v{TW + 1 + 3 * j}, 0x10000, v{TW + 3 * j}
        v_add_u32 v{TW + 2 + 3 * j}, 0x20000, v{TW + 3 * j}
        """)
    p(f"""
    v_and_b32 v4, 15, v0
    v_lshlrev_b32 v173, 3, v4
    v_lshl_add_u32 v173, v3, 8, v173
    v_lshrrev_b32 v172, 1, v4
    v_and_b32 v4, 1, v4
    v_lshl_add_u32 v172, v4, 3, v172
    v_lshlrev_b32 v172, 4, v172
    v_lshl_add_u32 v172, v3, 8, v172
    s_lshl_b32 s6, s{sW}, 11
    s_add_u32 s6, s6, s4
    s_sub_u32 s7, s5, {O_A - O_OT}
    s_and_b32 s59, s67, 1
    s_lshl_b32 s16, s59, 13
    s_sub_u32 s17, 12288, s16
    s_add_u32 s16, s16, 4096
    s_mul_i32 s62, s67, {9 * 8192}
    s_lshl_b32 s59, s59, 12
    s_sub_u32 s62, s62, s59
    s_lshl_b32 s59, s{sW}, 10
    s_add_u32 s62, s62, s59
    s_add_u32 s62, s62, s4
    s_add_u32 s62, s62, {O_A}
    v_and_b32 v{vPST}, 0x3ff, v{vPST}
    """)
    for q in range(4):
        p(f"s_xor_b32 s59, s67, {q}\ns_lshl_b32 s59, s59, 16\ns_add_u32 s{74 + q}, s59, s6")
    p("s_waitcnt lgkmcnt(0)\nWAITVM OS\ns_barrier")
    p.extend(flat(signal(CO)))
    stamp(p, "osig")
    d89 = dma_wo(8, 41472) + dma_wo(9, 105984)
    f0 = [y for r in range(AR[0] + 1) for y in f_loads(r, FRA, 66)]
    if AR[0] >= 0:
        p.extend(flat(poll_check("att", AR[0], "F", sP1, False)))
    if not OPT["early"]:
        p.extend(flat(poll_load(CO)) + d89)
        if AR[0] >= 0:
            p("s_barrier")
            p.extend(f0)
        p.extend(flat(poll_check("att", CO, "A")))
        p("s_barrier")
        stamp(p, "ochk")
    of = lambda k, bb: 8 * k + 4 * bb
    old, oq = {}, []
    for k in range(16):
        oq.append(I(f"s_add_u32 s59, s{74 + k // 4}, {(k % 4) * 16384}"))
        for bb in range(2):
            old[k, bb] = [I(f"buffer_load_dwordx4 {vr(of(k, bb), 4, 'a')}, v172, {srd(SWS)}, s59 offen offset:{bb * 1024} sc1")]
            oq += old[k, bb]
    for k in (16, 17):
        for bb in range(2):
            old[k, bb] = [I(f"buffer_load_dwordx2 {vr(of(k, bb) + 2 * h, 2, 'a')}, v173, {srd(SWS)}, s7 offen offset:{bb * 2048 + (k - 16) * 1024 + h * 128} sc1") for h in range(2)]
            oq += old[k, bb]
    NPRE = split_vm(oq, OPT["npo"])
    p.extend(oq[:NPRE])
    if OPT["early"]:
        assert OPT["npo"] == 8
        p.extend(d89 * (not OPT["d89late"]) + flat(poll_load(CO)))
    trW = [Addr([TW + 3 * j, TW + 1 + 3 * j, TW + 2 + 3 * j]) for j in range(4)]
    bar = {k: [y for kk in (k + 8, k + 9) if kk < 18 for y in dma_wo(kk, wslot[kk - 10])] for k in range(2, 18, 2)}
    bar[10] += b2_dma(31, wslot[8])
    RING, DIST = OPT["ring"], OPT["dist"]
    rdc = {}

    KT = 18 - OPT["ktail"]
    order = [(k, j) for k in range(KT) for j in range(9)] + [(k, j) for j in range(9) for k in range(KT, 18)]
    cover = lambda k: min((k - 1) // 2 * 2, (KT - 1) // 2 * 2)

    def rd(fi):
        if fi not in rdc:
            k, j = order[fi]
            w = 176 + 4 * (fi % RING)
            off = wslot[k] + (j // 4) * 1024
            rdc[fi] = [I(f"ds_read_b64_tr_b16 {vr(w, 2)}, {trW[j % 4].at(off)}"), I(f"ds_read_b64_tr_b16 {vr(w + 2, 2)}, {trW[j % 4].at(off + 512)}", tag=f"w{fi}")]
        return rdc[fi]

    for fi in range(DIST):
        p.extend(rd(fi))
    mf, s_bar, s_rd, s_o, s_ep = [], [], [], [], []
    s_dma, s_f, s_w = [(0, x) for x in d89 * OPT["d89late"]], [], []
    p.extend(b2_addr(31, 1) + end_setup("att"))
    hooks = []
    g = 0
    if OPT["early"]:
        g = OPT["cogap"]
        cob = I("s_barrier")
        s_bar += [(g - 1, y) for y in poll_check("att", CO, "A")] + [(g, cob, g)]
        if OPT["stamp"]:
            s_bar.append((g, stamp_ins("ochk"), g))
        for x in oq[NPRE:] + f0:
            x.after = [cob]
        g += 1
        s_f += [(g, x) for x in f0]
    n = 0
    for x in oq[NPRE:]:
        s_o.append((g, x))
        n += x.kind in VM
        g += (4 if n <= 6 else OPT["osep"]) if x.kind in VM else 0
    rounds = {6: (AR[0] + 1, AR[1]), 12: (AR[1] + 1, AR[2])}
    bars = {}
    for fi in range(162):
        k, j = order[fi]
        g0 = len(mf)
        for bb in range(2):
            c = 64 + 8 * j + 4 * bb
            mf.append(I(f"{MF} {vr(c, 4)}, {vr(176 + 4 * (fi % RING), 4)}, {vr(of(k, bb), 4, 'a')}, {vr(c, 4) if k else '0'}"))
            mf[-1].deps = rd(fi) + old[k, bb]
        if j == 1 and k in bar and k < KT:
            fl = []
            if k in rounds and rounds[k][1] >= rounds[k][0]:
                hooks += [(g0 - OPT["pdist"], y, g0 - 20) for y in poll_load(rounds[k][1])]
                s_bar += [(g0 - 1, y) for y in poll_check("att", rounds[k][1], "F")]
                fl = [y for r in range(rounds[k][0], rounds[k][1] + 1) for y in f_loads(r, FRA, 66)]
            bars[k] = I("s_barrier")
            s_bar.append((g0, [I("WAITVM " + " ".join(f"O{kk}" for kk in range(18) if cover(kk) == k), cost=1), bars[k]], g0 + 1))
            for x in bar[k] + fl:
                x.after = [bars[k]]
                (s_f if x in fl else s_dma).append((g0 + 2, x))
        if fi + DIST < 162:
            r = rd(fi + DIST)
            kk = order[fi + DIST][0]
            if kk >= 3:
                r[0].after = [bars[cover(kk)]]
            s_rd += [(g0, r[0], g0 + 3), (g0 + 1, r[1], g0 + 4)]
        if fi % 2 == 1 and fi + 2 < 162:
            s_w.append((g0, I(f"WAITLG w{fi + 2}", cost=1), g0 + 1))
        if k == 17:
            t = 32 + 4 * (j % 4)
            for i in range(4):
                s_ep.append((g0 + 5, I(f"v_cvt_pk_bf16_f32 v{t + i}, v{64 + 8 * j + 2 * i}, v{65 + 8 * j + 2 * i}")))
                s_ep[-1][1].deps = mf[-2:]
            s_ep.append((g0 + 5, I(f"buffer_store_dwordx4 {vr(t, 4)}, v{vPST}, {srd(SWS)}, s62 offen sc1", tag="PA")))
            if j < 8:
                s_ep.append((g0 + 5, I(f"s_add_u32 s62, s62, s{16 + j % 2}")))
        if j == 8 and k in (5, 11) and OPT["stamp"] >= 2:
            s_bar.append((g0 + 1, stamp_ins(f"k{k + 1}", 2)))
    p.extend(sched2(mf, [s_bar, s_w, s_rd, s_o, s_dma, sorted(hooks, key=lambda h: h[0]), s_f, s_ep]))
    stamp(p, "Bend")
    end_phase(p, "att", FRA, AR[2] + 1, AR[2] + 1, P(), [], OPT["esta"], wslot[8], "PA", CA)
    return p


def head():
    p = P()
    p("s_cmp_ge_u32 s2, 256\ns_cbranch_scc1 L_exit")
    p("s_load_dwordx16 s[4:19], s[0:1], 0\ns_load_dwordx8 s[20:27], s[0:1], 64")
    if OPT["stamp"]:
        p("s_memrealtime s[86:87]\ns_memtime s[88:89]")
    ms = [int(x) for x in str(OPT["rg"]).split(",")][::-1]
    rot = bit_of(ms[0], sG)
    for m in ms[1:]:
        rot += "\n" + bit_of(m, 59) + f"\ns_lshl1_add_u32 s{sG}, s{sG}, s59"
    p(f"""
    v_lshrrev_b32 v1, 6, v0
    v_and_b32 v0, 63, v0
    v_readfirstlane_b32 s{sW}, v1
    s_bfe_u32 s59, s2, 0x10002
    s_lshl_b32 s59, s59, 3
    s_bfe_u32 s{sMT}, s2, 0x30003
    s_add_u32 s{sMT}, s{sMT}, s59
    @ROT
    s_and_b32 s59, s2, 3
    s_lshr_b32 s60, s2, 6
    {"s_cbranch_scc1 L_ffn" if OPT["attfirst"] else "s_cbranch_scc0 L_att"}
    """.replace("@ROT", rot))
    return p


def desc(name, nv, acc):
    return f""".amdhsa_kernel {name}
  .amdhsa_next_free_vgpr {nv}
  .amdhsa_next_free_sgpr 102
  .amdhsa_accum_offset {acc}
  .amdhsa_group_segment_fixed_size 0
  .amdhsa_kernarg_size 96
  .amdhsa_user_sgpr_count 2
  .amdhsa_user_sgpr_kernarg_segment_ptr 1
  .amdhsa_system_sgpr_workgroup_id_x 1
.end_amdhsa_kernel"""


def main():
    fin = Finalizer(OPT["age"])
    fin.hoist = bool(OPT["s2"])
    hd = head()
    parts = {}
    for role, fn in (("att", role_att), ("ffn", role_ffn)):
        code = fin.run(hd + fn())
        i0 = next(i for i, x in enumerate(code) if x.text == f"L_{role}:")
        i1 = next(i for i, x in enumerate(code) if x.text == f"L_{role}_body:")
        body, npad, nb, st = layout(code[i1:], 0, f"L_{role}_pad" if OPT["warm"] else None, 4, f"L_{role}_ret", OPT["align"])
        pro = [I(x.text.replace(f"@LASTPAGE_{role}", str((nb - 1) // 4096))) for x in code[i0:i1]]
        i2 = next(i for i, x in enumerate(pro) if x.text == f"L_{role}_late:")
        i3 = next(i for i, x in enumerate(pro) if x.text == f"L_{role}_mid:") if OPT["split3"] else i2
        parts[role] = (code[:i0], pro[:i3], body, pro[i3:i2], pro[i2:])
        sys.stderr.write(f"{role}: {len(code)} ins {fin.stats} body {nb} B pads {npad} {st} prologue {sum(inst_sizes(pro[:i2]))}+{sum(inst_sizes(pro[i2:]))} B\n")
    ref = open(f"cdna_kernels/{NAME}.s.ref").read().split("\n")
    hdr = [l for l in ref if l.startswith(";") and "@launch" not in l]
    if OPT["stamp"]:
        hdr += [f"; stamps {r} " + " ".join(n) for r, n in stnames.items()]
    o = hdr + ["; @launch grid=(256,1,1) block=(256,1,1) lds=163840",
               '.amdgcn_target "amdgcn-amd-amdhsa--gfx950"', ".text",
               f".globl {NAME}_kernel", ".p2align 12", ".p2align 8", f".type {NAME}_kernel,@function", f"{NAME}_kernel:",
               text_of(parts["ffn"][0]), *[text_of(parts[r][k]) for k in (1, 3, 4) for r in (("att", "ffn") if OPT["attfirst"] else ("ffn", "att"))], "L_exit:", "    s_endpgm",
               ".p2align 12", text_of(parts["ffn"][2]), ".p2align 12", text_of(parts["att"][2]), ".p2align 12",
               '.section .rodata,"a"', ".p2align 6", desc(f"{NAME}_kernel", 512, 256)]
    txt = "\n".join(o)
    if OPT["dflav"]:
        import re
        txt = re.sub(r"(s\[(?:28:31|32:35)\].*) lds$", lambda m: m.group(1) + " " + OPT["dflav"].replace("+", " ") + " lds", txt, flags=re.M)
    print(txt)


main()
```

```python
import re

REG_RE = re.compile(r"^(-?\|?)([vas])(\d+)\|?$")
RNG_RE = re.compile(r"^(-?\|?)([vas])\[(\d+):(\d+)\]\|?$")
TRANS = ("v_exp_f32", "v_log_f32", "v_rcp_f32", "v_rsq_f32", "v_sqrt_f32", "v_sin_f32", "v_cos_f32")


def regs_of(tok):
    tok = tok.strip()
    m = REG_RE.match(tok)
    if m:
        return [(m.group(2), int(m.group(3)))]
    m = RNG_RE.match(tok)
    if m:
        return [(m.group(2), i) for i in range(int(m.group(3)), int(m.group(4)) + 1)]
    if tok in ("vcc", "vcc_lo", "vcc_hi"):
        return [("s", "vcc")]
    if tok == "m0":
        return [("s", "m0")]
    if tok == "exec":
        return [("s", "exec")]
    return []


def vr(n, k=1, t="v"):
    return f"{t}{n}" if k == 1 else f"{t}[{n}:{n + k - 1}]"


class Ins:
    def __init__(self, text, tag=None, cost=None):
        self.text = text
        self.tag = tag
        self.op = text.split()[0] if text else ""
        self.reads, self.writes = set(), set()
        self.srcc = set()
        self.srcab = set()
        self.kind = "other"
        self.deps = []
        self.after = []
        self._parse()
        self.cost = cost if cost is not None else self._cost()

    def _parse(self):
        op = self.op
        if op.endswith(":") or op.startswith(".") or op.startswith(";"):
            self.kind = "label" if op.endswith(":") else "dir"
            return
        if op in ("WAITVM", "WAITLGKM", "WAITLG", "RESET", "KEEP"):
            self.kind = "pseudo"
            return
        rest = re.sub(r"\s\w+:\[[^\]]*\]", "", self.text[len(op):])
        toks = [t.strip() for t in rest.split(",")]
        last = toks[-1].split()
        mods = last[1:] if last else []
        if last:
            toks[-1] = last[0]
        self.mods = mods
        R = [regs_of(t) for t in toks]
        flat = lambda L: set(x for l in L for x in l)
        if op.startswith("v_mfma"):
            self.kind = "mfma"
            self.writes = set(R[0]); self.srcab = set(R[1]) | set(R[2]); self.srcc = set(R[3])
            self.reads = self.srcab | self.srcc
            self.passes = 2 if "4x4x4" in op else 4 if "16x16" in op else 8
        elif op.startswith("ds_read") or op.startswith("ds_bpermute") or op.startswith("ds_swizzle"):
            self.kind = "dsr"; self.writes = set(R[0]); self.reads = flat(R[1:])
        elif op.startswith("ds_write"):
            self.kind = "dsw"; self.reads = flat(R)
        elif op.startswith("buffer_load") or op.startswith("global_load"):
            if "lds" in mods or "_lds_" in op:
                self.kind = "dma"; self.reads = flat(R) | {("s", "m0")}
            else:
                self.kind = "vload"; self.writes = set(R[0]); self.reads = flat(R[1:])
        elif op.startswith("buffer_store") or op.startswith("global_store"):
            self.kind = "vstore"; self.reads = flat(R)
            self.data = set(R[0]) if op.startswith("buffer") else set(R[1])
        elif op.startswith("buffer_atomic") or op.startswith("global_atomic"):
            self.kind = "vstore"; self.reads = flat(R); self.data = set()
            if "sc0" in mods:
                self.kind = "vload"; self.writes = set(R[0])
        elif op in ("buffer_wbl2", "buffer_inv"):
            self.kind = "vstore"; self.data = set()
        elif op.startswith("s_load") or op in ("s_memtime", "s_memrealtime"):
            self.kind = "smem"; self.writes = set(R[0]); self.reads = flat(R[1:])
        elif op.startswith("s_atomic"):
            self.kind = "salu"; self.reads = flat(R)
        elif op.startswith("s_waitcnt"):
            self.kind = "wait"
        elif op == "s_nop":
            self.kind = "nop"; self.n = int(toks[0])
        elif op == "s_barrier":
            self.kind = "barrier"
        elif op.startswith("s_cbranch") or op in ("s_branch", "s_setpc_b64", "s_endpgm", "s_swappc_b64"):
            self.kind = "branch"; self.reads = flat(R)
        elif op.startswith("s_cmp") or op.startswith("s_bitcmp") or op in ("s_setprio", "s_sleep"):
            self.kind = "salu"; self.reads = flat(R)
        elif op.startswith("s_"):
            self.kind = "salu"; self.writes = set(R[0]); self.reads = flat(R[1:])
            if "saveexec" in op:
                self.writes.add(("s", "exec"))
        elif op.startswith("v_"):
            self.kind = "valu"
            self.writes = set(R[0]); self.reads = flat(R[1:])
            if op.startswith("v_permlane") and "swap" in op:
                self.writes = flat(R); self.reads = flat(R)
            if op.startswith("v_fmac") or op.startswith("v_dot2c"):
                self.reads |= set(R[0])
            if op.startswith("v_add_co") or op.startswith("v_sub_co") or op.startswith("v_addc_co"):
                self.writes |= set(R[1])
            if op.startswith("v_dot2"):
                self.srcc = set(R[3]) if len(R) > 3 else set(R[0])
                self.srcab = set(R[1]) | set(R[2])
        else:
            raise ValueError("unknown instruction: " + self.text)

    def _cost(self):
        k = self.kind
        if k in ("dma", "vload"):
            return 2
        if k == "vstore":
            return 2
        if k == "dsw":
            return 2 if "b128" in self.op else 1
        if k == "valu" and self.op.startswith(TRANS):
            return 2
        if k in ("label", "dir"):
            return 0
        return 1

    def states(self):
        if self.kind == "nop":
            return self.n + 1
        if self.kind in ("label", "dir", "pseudo"):
            return 0
        return 1


def I(text, tag=None, cost=None):
    return Ins(text, tag, cost)


def is_v(r):
    return r[0] in ("v", "a")


def need_states(p, c):
    n = 0
    pk, ck = p.kind, c.kind
    vmem = ("dma", "vload", "vstore")
    if pk == "valu":
        vw = {r for r in p.writes if is_v(r)}
        sw = {r for r in p.writes if r[0] == "s"}
        isdot = p.op.startswith("v_dot2")
        if ck == "mfma" and vw & c.reads:
            n = max(n, 3 if isdot else 2)
        if ck == "valu":
            if c.op.startswith("v_permlane") and vw & c.reads:
                n = max(n, 2)
            if c.op.startswith(("v_readlane", "v_readfirstlane")) and vw & c.reads:
                n = max(n, 1)
            if ("row_" in c.text or "quad_perm" in c.text or "wave_" in c.text) and vw & c.reads:
                n = max(n, 2)
            if p.op.startswith(TRANS) and vw & c.reads:
                n = max(n, 1)
            if sw & c.reads:
                n = max(n, 4 if c.op.startswith(("v_readlane", "v_writelane")) else 2)
            if ("s", "exec") in sw:
                n = max(n, 4)
        if isdot:
            if ck == "valu" and c.op == p.op:
                if vw & c.srcab:
                    n = max(n, 3)
            elif vw & (c.reads | c.writes):
                n = max(n, 3)
        if ck in vmem and sw & c.reads:
            n = max(n, 5)
        if ck in ("salu", "branch", "smem") and sw & c.reads:
            n = max(n, 2)
        if ck == "branch" and ("vcc" in c.op) and ("s", "vcc") in sw:
            n = max(n, 5)
    if pk == "mfma":
        rd_, ov_, war_, same_ = {2: (5, 4, 1, 2), 4: (8, 6, 3, 0), 8: (12, 10, 7, 0)}[p.passes]
        if ck == "mfma":
            if p.writes & c.srcab:
                n = max(n, rd_)
            if p.writes & c.srcc:
                n = max(n, same_ if (p.writes == c.srcc and p.passes == c.passes) else ov_)
            if p.writes & c.writes:
                n = max(n, same_ if (p.writes == c.writes and p.passes == c.passes) else ov_)
        elif ck in ("valu", "dsr", "dsw") + vmem:
            if p.writes & (c.reads | c.writes):
                n = max(n, rd_)
            if p.srcc & c.writes:
                n = max(n, war_)
    if pk == "salu" and ("s", "m0") in p.writes and ck == "dma":
        n = max(n, 1)
    if pk == "vstore" and ("x4" in p.op or "x3" in p.op) and p.data & c.writes:
        n = max(n, 2)
    if pk == "dsw" and "b128" in p.op and ck == "valu" and (p.reads & c.writes):
        n = max(n, 1)
    return n


class Finalizer:
    def __init__(self, lgkm_age=10):
        self.lgkm_age = lgkm_age
        self.keep = 2
        self.hoist = False

    def run(self, ins):
        out = []
        lg = []
        vm = []
        smem = []
        stats = {"lgkm": 0, "vm": 0, "nop": 0}
        lastw = {}
        waited = set()
        seen = set()

        def pos():
            return len(out)

        def emit(x):
            if x.kind not in ("label", "dir", "wait", "nop", "pseudo"):
                dist = 0
                need = 0
                for p in reversed(out[-24:]):
                    r = need_states(p, x) - dist
                    need = max(need, r)
                    dist += p.states()
                    if dist > 14:
                        break
                while need > 0:
                    k = min(need, 16)
                    out.append(Ins(f"s_nop {k - 1}"))
                    stats["nop"] += 1
                    need -= k
            out.append(x)

        def wait(l=None, v=None):
            parts = []
            if v is not None:
                v = min(v, 63)
                if len(vm) > v:
                    parts.append(f"vmcnt({v})")
                    del vm[: len(vm) - v]
                    stats["vm"] += 1
            if l is not None:
                l = min(l, 15)
                if smem:
                    l = 0
                if len(lg) > l or smem:
                    parts.append(f"lgkmcnt({l})")
                    del lg[: len(lg) - l]
                    del smem[:]
                    stats["lgkm"] += 1
            if parts:
                out.append(Ins("s_waitcnt " + " ".join(parts)))

        for x in ins:
            if x.kind == "pseudo":
                a = x.text.split()
                if x.op == "RESET":
                    del lg[:]; del vm[:]; del smem[:]
                elif x.op == "KEEP":
                    self.keep = int(a[1])
                elif x.op == "WAITLGKM":
                    wait(l=0)
                elif x.op == "WAITLG":
                    tags = set(a[1:])
                    waited |= tags
                    idx = [i for i, (p, _) in enumerate(lg) if p.tag in tags]
                    if idx:
                        wait(l=len(lg) - 1 - idx[-1])
                elif x.op == "WAITVM":
                    if a[1] == "ALL":
                        wait(v=0)
                    else:
                        tags = set(a[1:])
                        waited |= tags
                        idx = [i for i, (p, _) in enumerate(vm) if p.tag in tags]
                        if idx:
                            wait(v=len(vm) - 1 - idx[-1])
                continue
            if x.kind == "wait":
                m = re.search(r"vmcnt\((\d+)\)", x.text)
                if m:
                    n = int(m.group(1)); del vm[: max(0, len(vm) - n)]
                m = re.search(r"lgkmcnt\((\d+)\)", x.text)
                if m:
                    n = int(m.group(1)); del lg[: max(0, len(lg) - n)]
                    if n == 0:
                        del smem[:]
                out.append(x)
                continue
            assert x.tag is None or x.tag not in waited, f"tag {x.tag} issued after its wait: {x.text}"
            seen.add(id(x))
            for d in x.after:
                assert id(d) in seen, f"{x.text} placed before {d.text}"
            for d in x.deps:
                for r in d.writes & x.reads:
                    assert lastw.get(r) is d, f"bad producer for {r} in {x.text}: want {d.text}, have {lastw.get(r) and lastw[r].text}"
            for r in x.writes:
                lastw[r] = x
            touch = x.reads | x.writes
            lw = vw = None
            idx = [i for i, (p, _) in enumerate(lg) if p.writes & touch]
            if idx:
                i = idx[-1]
                while i + 1 < len(lg) - self.keep and pos() - lg[i + 1][1] >= self.lgkm_age:
                    i += 1
                lw = len(lg) - 1 - i
            if any(p.writes & touch for p in smem):
                lw = 0
            idx = [i for i, (p, _) in enumerate(vm) if p.writes & touch]
            if idx:
                vw = len(vm) - 1 - idx[-1]
            if lw is not None and vw is None and x.kind == "mfma" and self.hoist and not smem:
                k = len(out)
                while k > 0 and out[k - 1].kind in ("valu", "dsr"):
                    k -= 1
                nds = sum(1 for y in out[k:] if y.kind == "dsr")
                if 0 < len(out) - k <= 3 and k > 0 and out[k - 1].kind == "mfma" and nds <= lw and lw <= 15:
                    out.insert(k, Ins(f"s_waitcnt lgkmcnt({lw - nds})"))
                    del lg[: len(lg) - lw]
                    stats["lgkm"] += 1
                    lw = None
            if lw is not None or vw is not None:
                wait(l=lw, v=vw)
            emit(x)
            if x.kind in ("dsr", "dsw"):
                lg.append((x, pos()))
            elif x.kind in ("dma", "vload", "vstore"):
                vm.append((x, pos()))
                assert len(vm) <= 63 or True
            elif x.kind == "smem":
                smem.append(x)
        self.stats = stats
        return out


def sched(mf, streams, cap=2, flush=True):
    out = []
    heads = [0] * len(streams)
    capf = cap if callable(cap) else (lambda g: cap)
    L = lambda it: it if isinstance(it, list) else [it]
    dl = []
    for st in streams:
        d, m = [0] * len(st), 1 << 30
        for i in range(len(st) - 1, -1, -1):
            if len(st[i]) > 2:
                m = min(m, st[i][2])
            d[i] = m
        dl.append(d)
    for g, m in enumerate(mf):
        out.append(m)
        full = budget = capf(g)
        progress = True
        while progress:
            progress = False
            for si, st in enumerate(streams):
                if heads[si] >= len(st) or st[heads[si]][0] > g:
                    continue
                items = L(st[heads[si]][1])
                c = sum(i.cost for i in items)
                if c <= budget or (budget == full and c > full) or c == 0:
                    out.extend(items)
                    budget -= c
                    heads[si] += 1
                    progress = True
                    break
        for si, st in enumerate(streams):
            while heads[si] < len(st) and dl[si][heads[si]] <= g:
                assert st[heads[si]][0] <= g, f"deadline before earliest: {L(st[heads[si]][1])[0].text}"
                out.extend(L(st[heads[si]][1]))
                heads[si] += 1
    left = []
    for si, st in enumerate(streams):
        rest = st[heads[si]:]
        if flush:
            for it in rest:
                out.extend(L(it[1]))
        left.append(rest)
    return out if flush else (out, left)


SCALAR = ("salu", "wait", "nop", "barrier", "branch", "pseudo", "smem", "label", "dir")
VMEMK = ("dma", "vload", "vstore")


def sched2(mf, streams, vsep=4, state=None, rlate=1, wgap=4):
    out = []
    heads = [0] * len(streams)
    L = lambda it: it if isinstance(it, list) else [it]
    dl = []
    for st in streams:
        d, m = [0] * len(st), 1 << 30
        for i in range(len(st) - 1, -1, -1):
            if len(st[i]) > 2:
                m = min(m, st[i][2])
            d[i] = m
        dl.append(d)
    state = state if state is not None else {}
    last_vm = state.get("vm", -99)
    ds_free = state.get("ds", -99)

    def cls(it):
        items = L(it)
        if all(x.kind in SCALAR for x in items):
            return "s"
        if len(items) > 1:
            return "g"
        k = items[0].kind
        return "m" if k in VMEMK else "r" if k == "dsr" else "w" if k == "dsw" else "v"

    def head(si, g):
        if heads[si] < len(streams[si]) and streams[si][heads[si]][0] <= g:
            return streams[si][heads[si]]
        return None

    def note(items, g):
        nonlocal last_vm, ds_free
        for x in items:
            if x.kind in VMEMK:
                last_vm = g
            if x.kind == "dsw":
                ds_free = g + (wgap if "b128" in x.op else 2 if "b64" in x.op or "write2" in x.op else 1)

    def take(si, g):
        items = L(streams[si][heads[si]][1])
        heads[si] += 1
        out.extend(items)
        note(items, g)
        return items

    def find(g, kinds):
        for si in range(len(streams)):
            h = head(si, g)
            if h and cls(h[1]) in kinds:
                return si
        return None

    for g, m in enumerate(mf):
        out.append(m)
        due = [si for si in range(len(streams)) if head(si, g) and cls(head(si, g)[1]) == "w" and dl[si][heads[si]] <= g]
        h0 = head(0, g)
        si = find(g, "m") if g - last_vm >= vsep else None
        if due:
            take(due[0], g)
        elif si is not None and not (h0 and si != 0 and (cls(h0[1]) != "r" or g - h0[0] >= rlate)):
            take(si, g)
        else:
            budget, scal = 2, False
            si = find(g, "s")
            if si is not None:
                budget -= max(0, sum(x.cost for x in take(si, g)) - 1)
                scal = True
            si = find(g, "rw") if g >= ds_free else None
            if si is not None and budget > 0:
                c = cls(head(si, g)[1])
                if c == "w" and budget == 2:
                    take(si, g)
                    budget = 0
                elif c == "r":
                    mark = len(out)
                    x0 = take(si, g)[0]
                    budget -= 1
                    si = find(g, "r")
                    wide = si is not None and ("b128" in x0.op) + ("b128" in L(head(si, g)[1])[0].op)
                    if si is not None and budget > 0 and g - head(si, g)[0] >= (2 if rlate == 1 else (0, 2, 4)[wide]):
                        if not scal:
                            out.insert(mark, Ins("s_nop 0", tag="filler"))
                        take(si, g)
                        budget -= 1
            while True:
                for si in range(len(streams)):
                    h = head(si, g)
                    if h and cls(h[1]) in "vsg":
                        c = sum(x.cost for x in L(h[1]))
                        if c <= budget or (budget == 2 and c > 2):
                            take(si, g)
                            budget -= c
                            break
                else:
                    break
        for si, st in enumerate(streams):
            while heads[si] < len(st) and dl[si][heads[si]] <= g:
                assert st[heads[si]][0] <= g, f"deadline before earliest: {L(st[heads[si]][1])[0].text}"
                take(si, g)
    for si, st in enumerate(streams):
        while heads[si] < len(st):
            take(si, len(mf) - 1)
    state["vm"], state["ds"] = last_vm - len(mf), ds_free - len(mf)
    return out


def text_of(ins):
    return "\n".join(("" if x.kind in ("label", "dir") else "    ") + x.text for x in ins)


import subprocess
_size_cache = {}


def inst_sizes(ins):
    for x in ins:
        if x.kind == "salu" and "L_" in x.text:
            _size_cache[x.text] = 8
    todo = sorted({x.text for x in ins if x.kind not in ("label", "dir", "branch") and x.text not in _size_cache})
    if todo:
        r = subprocess.run(["llvm-mc", "-triple=amdgcn-amd-amdhsa", "-mcpu=gfx950", "-show-encoding"],
                           input="\n".join(todo) + "\n", capture_output=True, text=True)
        assert r.returncode == 0, r.stderr
        enc = [l for l in r.stdout.split("\n") if "encoding:" in l]
        assert len(enc) == len(todo)
        for t, l in zip(todo, enc):
            _size_cache[t] = l.split("encoding:")[1].count("0x")
    return [0 if x.kind in ("label", "dir") else 4 if x.kind == "branch" else _size_cache[x.text] for x in ins]


NOPROMOTE = ("v_readfirstlane", "v_dot2c", "v_permlane", "v_nop", "v_accvgpr", "v_fmac")


def promotable(x, sz):
    return x.kind == "valu" and sz == 4 and not x.op.startswith(NOPROMOTE) and not x.op.endswith("_e64")


def layout(ins, start=0, pad_prefix=None, pad_stride=4, pad_ret=None, align=True):
    sz = inst_sizes(ins)
    out, osz = [], []
    off = start
    npad = 0
    st = {"promo": 0, "nop": 0}
    slot = None
    cand = None
    for i, (x, s) in enumerate(zip(ins, sz)):
        if s and pad_prefix and off % 4096 == 0:
            out.append(Ins(f"{pad_prefix}{npad}:")); osz.append(0)
            out.append(Ins(f"s_cbranch_execz @PAD{npad + pad_stride}")); osz.append(4)
            npad += 1
            off += 4
            cand = slot = None
        if s == 8 and off % 32 == 28 and (align or (off + 4) % 4096 == 0):
            if cand is not None:
                y = out[cand]
                z = Ins(y.op + "_e64" + y.text[len(y.op):], y.tag, y.cost)
                out[cand] = z; osz[cand] = 8
                st["promo"] += 1
            elif slot is not None:
                out.insert(slot, Ins("s_nop 0")); osz.insert(slot, 4)
                st["free"] = st.get("free", 0) + 1
            else:
                out.append(Ins("s_nop 0")); osz.append(4)
                st["nop"] += 1
            off += 4
            cand = slot = None
            if pad_prefix and off % 4096 == 0:
                out.append(Ins(f"{pad_prefix}{npad}:")); osz.append(0)
                out.append(Ins(f"s_cbranch_execz @PAD{npad + pad_stride}")); osz.append(4)
                npad += 1
                off += 4
        if off % 32 == 0:
            cand = slot = None
            if out and out[-1].kind == "mfma" and out[-1].passes == 4 and x.kind in ("mfma", "valu", "dsr", "dsw"):
                slot = len(out)
        out.append(x); osz.append(s)
        if x.kind == "mfma" and x.passes == 4 and i + 1 < len(ins) and ins[i + 1].kind in ("mfma", "valu", "dsr", "dsw"):
            slot = len(out)
        if promotable(x, s):
            cand = len(out) - 1
        off += s
    res = []
    for x in out:
        if "@PAD" in x.text:
            k = int(x.text.split("@PAD")[1])
            res.append(Ins(f"s_cbranch_execz {pad_prefix + str(k) if k < npad else pad_ret}"))
        else:
            res.append(x)
    return res, npad, off - start, st


def layout_dp(ins, pad_prefix=None, pad_stride=4, pad_ret=None, scratch="s89"):
    sz = inst_sizes(ins)
    n = len(ins)
    slack = [False] * n
    free = [False] * n
    i = 0
    idx = [k for k in range(n) if ins[k].kind == "mfma" and ins[k].passes == 4]
    for a, b in zip(idx, idx[1:]):
        body = [k for k in range(a + 1, b) if sz[k]]
        if len(body) > 3:
            continue
        kinds = [ins[k].kind for k in body]
        heavy = any(k in VMEMK or k == "dsw" for k in kinds)
        lead = bool(kinds) and kinds[0] in SCALAR
        used = len(kinds) - lead
        if not heavy:
            if not lead:
                free[a + 1] = True
            if used < 2:
                for k in range(a + 1, b + 1):
                    slack[k] = True
    states = {0: (0.0, 0, None)}
    for i, (x, s) in enumerate(zip(ins, sz)):
        if not s:
            continue
        new = {}
        for cost, off, bp in states.values():
            opts = [("", 0.0)]
            if promotable(x, s) or x.tag == "filler":
                opts.append(("p", 0.01))
            opts.append(("n", 0.02 if free[i] else 0.4 if slack[i] else 1.0))
            for o, c in opts:
                f, k, act = off, cost + c, o
                if pad_prefix and f % 4096 == 0:
                    f += 4; act = "P" + act
                if o == "n":
                    f += 4
                    if pad_prefix and f % 4096 == 0:
                        f += 4; act += "P"
                w = 8 if o == "p" else s
                if w == 8 and f % 32 == 28:
                    if (f + 4) % 4096 == 0 and pad_prefix:
                        continue
                    k += 0.3 if slack[i] else 1.0
                f += w
                if f % 32 not in new or k < new[f % 32][0]:
                    new[f % 32] = (k, f, (bp, i, act))
        states = new
    cost, off, bp = min(states.values(), key=lambda t: t[0])
    acts = {}
    while bp:
        bp, i, a = bp
        acts[i] = a
    out, npad = [], 0
    st = {"cost": round(cost, 1), "promo": 0, "nop": 0}
    for i, x in enumerate(ins):
        for ch in acts.get(i, ""):
            if ch == "P":
                out += [Ins(f"{pad_prefix}{npad}:"), Ins(f"s_cbranch_execz @PAD{npad + pad_stride}")]
                npad += 1
            elif ch == "n":
                out.append(Ins("s_nop 0")); st["nop"] += 1
            elif ch == "p":
                x = Ins(f"s_mov_b32 {scratch}, 0x12345") if x.tag == "filler" else Ins(x.op + "_e64" + x.text[len(x.op):], x.tag, x.cost)
                st["promo"] += 1
        out.append(x)
    res = []
    for x in out:
        if "@PAD" in x.text:
            k = int(x.text.split("@PAD")[1])
            res.append(Ins(f"s_cbranch_execz {pad_prefix + str(k) if k < npad else pad_ret}"))
        else:
            res.append(x)
    return res, npad, off, st
```

```python
import sys
import struct
from asmlib import *

NAME = "gated_mix__sliding_local_dilated__dense_activation_squared_relu__prompt"
OPT = dict(stamp=0, warm=1, touch=0, align=2, ctouch=1, tfirst=2, slack=9, look=6, sig=3, pdist=44,
           bg0=20, bg1=8, cap=11, capa=13, npro=8, nproa=7, tdist=4, sleep=0, ar="-1,1,3", stg=14, stga=6, verbose=0, dflav='', bgn=0, bgv=24, rotg=3, w1pre=0, nost=0, stflav='sc1', nochk=0, nosig=0, age=10, ct2=1, vsig=0, pol='probe', pg0=14, pg1=33, pgs=3, nrace=4, prb=0x1a0000, t8=0, b0=104, dbl='3,12', udist=3, s2=1, capd=8, dbla=11, est='F7,A10,F8', esta='F5,F6,A10+F7,F8', achk=-1, ain='25:3', alag=2, b2t=1, wot=13, bperm=1, lastpm=3, rg='5,96', xb=8, xa=16, split3=1, npre=4, nprea=3, fastst=1, attfirst=1, amap=0, rga='', osep=6, npo=8, early=1, cogap=14, ring=8, dist=6, wosm=8, d89late=1, ktail=2, npv=3, last26='F6', sig7=1, stg7=5, pd26=30, etouch=0, wlate=0, lin=0, b8=8, ulate=0, rlate=4, t01=0, b1=-20, keepq=4, u4t=0, slow=0, wgap=3, stg1=22, rpre=6, lazy=1, xvol=0, f6in=0, npost=30, chb=1, cha=1, chs=1, chp=1, bo26=16)
for a in sys.argv[1:]:
    k, v = a.split("=")
    assert k in OPT, k
    OPT[k] = int(v) if v.lstrip("-").isdigit() else v

PG = 0x200000
SRCS = 32768
O_CNT, O_Z, O_PRB = 0x180000, 0x190000, OPT['prb']
O_OM, O_OT, O_A = 0, 0x40000, 0x80000
CO, CA = 9, 10
FST = 256
WS_STAMP = 0x9000000
WS_SIZE = 0xa000000
MF = "v_mfma_f32_16x16x32_bf16"
MF4 = "v_mfma_f32_4x4x4_16b_bf16"
OOB = "0x80000000"

SX, SWA, SWB, SSM, SWS, SOUT, SB2 = 28, 32, 36, 40, 44, 48, 52
SDBG = 4
sW, sMT, sSRC = 56, 57, 58
sCH = 70
sFL, sMB, sSPIN, sMASK = 79, 80, 81, 84
sPG = 0
sG, sWB = 90, 91
vL16, vPST, vFW, vCON = 23, 24, 26, 28
srd = lambda n: f"s[{n}:{n + 3}]"
f2u = lambda x: struct.unpack("<I", struct.pack("<f", x))[0]
VM = ("dma", "vload", "vstore")


class P(list):
    def __call__(self, text, tag=None, cost=None):
        for t in text.split("\n"):
            t = t.strip()
            if t:
                self.append(I(t, tag, cost))
        return self


def flat(items):
    o = []
    for it in items:
        o.extend(it if isinstance(it, list) else [it])
    return o


def srd_const(p, n, size):
    p(f"s_mov_b32 s{n + 2}, {size}\ns_mov_b32 s{n + 3}, 0x20000")


def srd_ptr(p, n, ptr, bias=0):
    if bias:
        p(f"s_sub_u32 s{n}, s{ptr}, {bias}\ns_subb_u32 s{n + 1}, s{ptr + 1}, 0")
    else:
        p(f"s_mov_b64 s[{n}:{n + 1}], s[{ptr}:{ptr + 1}]")


class Addr:
    def __init__(self, regs):
        self.regs = regs

    def at(self, off):
        return f"v{self.regs[off >> 16]} offset:{off & 0xffff}"

    def wr(self, off, data):
        return f"v{self.regs[off >> 16]}, {data} offset:{off & 0xffff}"


nstamp = [0]
stnames = {}
cur = {"role": None, "vst": None}


def stamp_ins(name, lvl=1):
    if not (OPT["stamp"] and (OPT["stamp"] >= lvl or name == "end")):
        return []
    n = nstamp[0]
    nstamp[0] += 1
    assert n < 31
    stnames.setdefault(cur["role"], []).append(name)
    v = cur["vst"]
    return [I("s_memrealtime s[86:87]"), I("s_memtime s[88:89]"), I("s_waitcnt lgkmcnt(0)"),
            I(f"v_writelane_b32 v{v}, s86, {2 * n}"), I(f"v_writelane_b32 v{v}, s88, {2 * n + 1}")]


def stamp(p, name, lvl=1):
    p.extend(stamp_ins(name, lvl))


def stamp_begin(p, role, v):
    cur["role"], cur["vst"] = role, v
    nstamp[0] = 1
    stnames[role] = ["start"]
    if OPT["stamp"]:
        p(f"v_mov_b32 v{v}, 0\ns_waitcnt lgkmcnt(0)\nv_writelane_b32 v{v}, s86, 0\nv_writelane_b32 v{v}, s88, 1")


def stamp_out(p):
    if OPT["stamp"]:
        p("s_waitcnt vmcnt(0)")
        stamp(p, "end")
        p(f"s_lshl_b32 s59, s2, 2\ns_add_u32 s59, s59, s{sW}\ns_lshl_b32 s59, s59, 8\ns_add_u32 s59, s59, {WS_STAMP}")
        p(f"v_lshlrev_b32 v1, 2, v0\nv_writelane_b32 v{cur['vst']}, s{sSPIN}, 63")
        p(f"buffer_store_dword v{cur['vst']}, v1, {srd(SWS)}, s59 offen")


stubs = {}
sCNT, sDB, sINC, sP0, sP1 = 92, 94, 96, 97, 98
sNEED = {"F": "s99", "A": "s100", "FA": "s101", "init": "15"}
PGS = [0, 1, 61, 4]


nskip = [0]
lastpoll, lastchk = {}, {}


def wave0(items):
    nskip[0] += 1
    return [I(f"s_cbranch_vccz L_skip{nskip[0]}")] + items + [I(f"L_skip{nskip[0]}:")]


def poll_load(t, reg=sP0, bare=False):
    if t == "init" and not bare:
        x = I(f"s_load_dword s{reg}, s[{sDB}:{sDB + 1}], 0x0")
        x.kind = "salu"
        lastpoll[reg] = (t, x)
        lastchk.clear()
        return [[x]]
    base, off = (sDB, 0) if t == "init" else (sCNT, t * FST)
    o = [I(f"s_mov_b32 s{reg}, 0", cost=0), I(f"s_atomic_add s{reg}, s[{base}:{base + 1}], {hex(off)} glc")]
    if not bare:
        o[0].after = lastchk.get(reg, [])
        lastpoll[reg] = (t, o[1])
    return [o if bare else wave0(o)]


def poll_check(role, t, what, reg=sP0, wait=True):
    st = stubs.setdefault(role, P())
    n = sum(1 for x in st if x.kind == "label")
    lab = f"L_{role}_spin{n}"
    st(f"{lab}:")
    if OPT["sleep"]:
        st(f"s_sleep {OPT['sleep']}")
    st.extend(flat(poll_load(t, reg, True)))
    st(f"""
    s_sub_u32 s{sSPIN}, s{sSPIN}, 1
    s_waitcnt lgkmcnt(0)
    s_cmp_lt_i32 s{sSPIN}, 0
    s_cbranch_scc1 {lab}r
    s_andn2_b32 s89, {sNEED[what]}, s{reg}
    s_cbranch_scc1 {lab}
    s_branch {lab}r
    """)
    c = I(f"s_andn2_b32 s89, {sNEED[what]}, s{reg}")
    assert lastpoll[reg][0] == t
    c.after = [lastpoll.pop(reg)[1]]
    lastchk[reg] = [c]
    return [[I("s_waitcnt lgkmcnt(0)")][:wait] + [c, I(f"s_cbranch_scc1 {lab}"), I(f"{lab}r:")]]


def signal(t):
    if OPT["vsig"]:
        return vsignal(t)
    return [wave0([I(f"s_atomic_add s{sINC}, s[{sCNT}:{sCNT + 1}], {hex(t * FST)}")])]


def vsignal(t):
    return [I(f"buffer_atomic_add v{vFD}, v{vFW}, {srd(SWS)}, s{sFL} offen offset:{t * FST}")]


def handoff_setup(base_sgpr, inc):
    o = [I(f"s_and_b32 s85, s{sMT}, 7"), I("s_lshl_b32 s85, s85, 7")]
    for t in range(9):
        o.append(I(f"s_add_u32 s{sCH + t}, s85, s{base_sgpr}"))
        if t < 8:
            o.append(I("s_add_u32 s85, s85, 128"))
            o.append([I("s_cmp_eq_u32 s85, 1152"), I("s_cselect_b32 s85, 0, s85")])
    XV = ""
    if OPT["xvol"]:
        XV = f"""v_lshrrev_b32 v{vFW}, 4, v0
        v_subrev_u32 v{vFW}, {OPT["xvol"]}, v{vFW}
        v_and_b32 v{vFW}, 0x80000000, v{vFW}
        v_or_b32 v{vCON}, v{vCON}, v{vFW}
        s_and_b32 s85, s{sSRC}, 3
        s_sub_u32 s85, s85, {OPT["xvol"]}
        s_and_b32 s85, s85, 0x80000000
        v_or_b32 v{vPST}, s85, v{vPST}"""
    o += P()(f"""
    s_sub_u32 s85, 0, s26
    s_and_b32 s85, s85, {PG - 1}
    s_lshl_b32 s{sMB}, s{sMT}, 23
    s_add_u32 s{sMB}, s{sMB}, s85
    s_mov_b32 s{sSPIN}, 0x10000
    s_lshl_b32 s3, s{sMT}, 2
    s_lshr_b32 s{sMASK}, 1, s{sW}
    s_lshl_b32 {sNEED['F']}, s{sMASK}, 4
    s_lshl_b32 {sNEED['A']}, s{sMASK}, 10
    s_mul_i32 {sNEED['FA']}, s{sMASK}, 0x410
    s_mov_b32 s{sINC}, {inc}
    v_bfe_u32 v{vPST}, v0, 2, 2
    v_lshlrev_b32 v{vPST}, 8, v{vPST}
    v_lshrrev_b32 v{vCON}, 4, v0
    v_lshl_add_u32 v{vPST}, v{vCON}, 6, v{vPST}
    v_and_b32 v{vFW}, 3, v0
    v_lshl_add_u32 v{vPST}, v{vFW}, 4, v{vPST}
    v_and_b32 v{vFW}, 15, v0
    v_mul_u32_u24 v{vCON}, {SRCS}, v{vCON}
    v_lshl_add_u32 v{vCON}, v{vFW}, 4, v{vCON}
    s_lshl_b32 s85, s{sSRC}, 8
    v_add_u32 v{vCON}, s85, v{vCON}
    s_mul_i32 s85, s{sSRC}, {SRCS}
    v_add_u32 v{vPST}, s85, v{vPST}
    {XV}
    s_mov_b32 vcc_lo, s{sMASK}
    s_mov_b32 vcc_hi, 0
    """)
    o += [[I(f"s_add_u32 s{sDB}, s24, s3"), I(f"s_addc_u32 s{sDB + 1}, s25, 0")]]
    return o


def page_setup():
    o = P()(f"""
    s_lshr_b32 s85, s{sW}, 1
    s_mul_i32 s85, s85, {16384 - 8192}
    s_lshl_b32 s3, s{sW}, 12
    s_add_u32 s3, s3, s85
    s_add_u32 s3, s3, s{sMB}
    """)
    for k in range(4):
        if OPT["pol"] == "probe":
            o(f"s_bfe_u32 s85, s{sP0}, {hex(0x10004 + k)}")
        elif OPT["pol"] == "inv":
            o(f"s_bfe_u32 s85, s{sP0}, {hex(0x10004 + k)}\ns_xor_b32 s85, s85, 1")
        elif OPT["pol"] in ("fix0", "fix1"):
            o(f"s_lshr_b32 s85, s{sMT}, 3\ns_xor_b32 s85, s85, {(k ^ int(OPT['pol'][3])) & 1}")
        else:
            o(f"s_and_b32 s85, s{sMT}, 1")
        o("s_lshl_b32 s85, s85, 13")
        if k == 0:
            o(f"s_add_u32 s{sFL}, s85, s{sMB}\ns_add_u32 s{sFL}, s{sFL}, {O_CNT}")
        if k == 3:
            o(f"s_add_u32 s4, s85, s{sMB}\ns_add_u32 s4, s4, {k * PG}")
        o(f"s_add_u32 s85, s85, s3")
        o(f"s_add_u32 s{PGS[k] + (k == 3)}, s85, {k * PG + (O_A if k == 3 else 0)}")
    return list(o) + [[I(f"s_add_u32 s{sCNT}, s26, s{sFL}"), I(f"s_addc_u32 s{sCNT + 1}, s27, 0")]]


def counter_init(tmp):
    a = P()(f"""
    s_min_u32 s85, s{sW}, 1
    s_lshl_b32 s85, s85, 31
    v_and_b32 v{tmp}, 15, v0
    v_lshlrev_b32 v{tmp}, 8, v{tmp}
    v_bfe_u32 v{tmp + 1}, v0, 4, 1
    v_lshl_add_u32 v{tmp}, v{tmp + 1}, 13, v{tmp}
    v_lshrrev_b32 v{tmp + 1}, 5, v0
    v_or_b32 v{tmp + 1}, s67, v{tmp + 1}
    v_min_u32 v{tmp + 1}, 1, v{tmp + 1}
    v_lshl_or_b32 v{tmp}, v{tmp + 1}, 31, v{tmp}
    v_or_b32 v{tmp}, s85, v{tmp}
    v_lshrrev_b32 v{tmp + 1}, 3, v0
    v_lshlrev_b32 v{tmp + 1}, 12, v{tmp + 1}
    v_and_b32 v{tmp + 2}, 7, v0
    v_lshl_add_u32 v{tmp + 1}, v{tmp + 2}, 3, v{tmp + 1}
    v_or_b32 v{tmp + 1}, s85, v{tmp + 1}
    v_mov_b32 v{tmp + 2}, 4
    v_mov_b32 v{tmp + 3}, 4
    s_add_u32 s85, s{sMB}, {O_CNT}
    """)
    a(f"buffer_store_dword v{tmp + 2}, v{tmp}, {srd(SWS)}, s85 offen sc1", tag="FI")
    a(f"s_lshl_b32 s85, s67, 21\ns_add_u32 s85, s85, s{sMB}\ns_add_u32 s85, s85, {O_PRB}")
    a(f"buffer_store_dwordx2 {vr(tmp + 2, 2)}, v{tmp + 1}, {srd(SWS)}, s85 offen sc1", tag="FI")
    a = list(a) + [[I("s_add_u32 s16, s26, s85"), I("s_addc_u32 s17, s27, 0")], I("s_mov_b32 s14, 0")]

    def race(n):
        blk = [0x0, 0x1000, 0x4000, 0x5000][n % 4]
        ld = [I(f"s_load_dword s{8 + c}, s[16:17], {hex(blk + 0x2000 * c)} glc", cost=0) for c in ((0, 1) if n % 2 == 0 else (1, 0))]
        for x in ld:
            x.kind = "salu"
        o = [(2, [I("s_mov_b64 s[8:9], 0")] + wave0(ld))]
        smp = ["s_add_u32 s14, s14, s8", "s_sub_u32 s14, s14, s9"]
        for g in range(OPT["pg0"], OPT["pg1"], OPT["pgs"]):
            o.append((2 + g, [I(t) for t in (smp if n % 2 == 0 else smp[::-1])]))
        return o

    pub = [[I("s_cmp_lt_i32 s14, 0"), I("s_cselect_b32 s15, 17, 1")], I("s_lshl_b32 s15, s15, s67"),
           wave0([I(f"s_atomic_or s15, s[{sDB}:{sDB + 1}], 0x0")])]
    if OPT["stamp"]:
        pub += [[I("s_ashr_i32 s15, s14, 2"), I("s_and_b32 s15, s15, 0xff")], [I("s_lshl_b32 s14, s67, 3"), I("s_lshl_b32 s15, s15, s14")],
                wave0([I(f"s_atomic_or s15, s[{sDB}:{sDB + 1}], 0x40")])]
    return a, race, pub


def touch(vreg, sr, base, off, force=False):
    a = I(f"s_add_u32 s60, s{base}, {off}")
    x = I(f"buffer_load_dword a255, v{vreg}, {srd(sr)}, s60 offen", tag="T")
    x.writes = set()
    return [a, x] if OPT["touch"] or force else []


def x_touch_addr(p, reg, tmp):
    p(f"""
    s_lshr_b32 s59, s2, 6
    s_lshl_b32 s59, s59, 2
    s_add_u32 s59, s59, s{sW}
    s_mul_i32 s59, s59, {8 * 1152}
    v_and_b32 v{tmp}, 7, v0
    v_mul_u32_u24 v{reg}, 1152, v{tmp}
    v_bfe_u32 v{tmp}, v0, 3, 1
    v_lshl_add_u32 v{reg}, v{tmp}, 7, v{reg}
    v_lshrrev_b32 v{tmp}, 4, v0
    v_min_u32 v{tmp}, 1, v{tmp}
    v_lshlrev_b32 v{tmp}, 31, v{tmp}
    v_add3_u32 v{reg}, v{reg}, v{tmp}, s59
    """)


def code_touch(p, role, tmp):
    p(f"s_bfe_u32 s68, s2, 0x30003\ns_lshl_b32 s68, s68, 2\ns_add_u32 s68, s68, s{sW}")
    if OPT["ctouch"]:
        p(f"""
        s_getpc_b64 s[82:83]
        L_{role}_pc:
        s_add_u32 s82, s82, L_{role}_body-L_{role}_pc
        s_addc_u32 s83, s83, 0
        s_lshl_b32 s59, s68, 7
        v_min_u32 v{tmp}, @LASTPAGE_{role}, v0
        v_lshl_add_u32 v{tmp}, v{tmp}, 12, s59
        """)
        x = I(f"global_load_dword a255, v{tmp}, s[82:83]")
        x.writes = set()
        p.append(x)


def code_touch2(role, tmp):
    if not OPT["ct2"]:
        return []
    x = I(f"global_load_dword a255, v{tmp}, s[10:11]", tag="T")
    x.writes = set()
    return [[I("s_getpc_b64 s[10:11]"), I(f"L_{role}_pc2:"), I(f"s_sub_u32 s10, s10, L_{role}_pc2-L_{role}_body"), I("s_subb_u32 s11, s11, 0")], x]


def warm(p, role):
    if OPT["warm"]:
        p("s_mov_b64 exec, 0")
        for w in range(3):
            p(f"s_cmp_eq_u32 s{sW}, {w}\ns_cbranch_scc1 L_{role}_pad{w}")
        p(f"s_branch L_{role}_pad3\nL_{role}_ret:\ns_mov_b64 exec, -1")


def bit_of(mask, reg):
    if mask == 0:
        return f"s_mov_b32 s{reg}, 0"
    if mask & (mask - 1) == 0:
        return f"s_bfe_u32 s{reg}, s2, {hex(0x10000 + mask.bit_length() - 1)}"
    return f"s_and_b32 s{reg}, s2, {mask}\ns_bcnt1_i32_b32 s{reg}, s{reg}\ns_and_b32 s{reg}, s{reg}, 1"


def split_vm(items, n):
    k = 0
    while n > 0 and k < len(items):
        n -= items[k].kind in VM
        k += 1
    return k


B8 = OPT["b8"]
blk = lambda J: J if J < B8 else J - 1


def x_soff(J, base):
    if J == B8:
        return [I(f"s_add_u32 s60, {base}, 1024")]
    o = [I(f"s_xor_b32 s60, s{sG}, {blk(J)}"), I("s_lshl_b32 s60, s60, 7")]
    return o + [I(f"s_add_u32 s60, s60, {base}")] * (base != "0")


def w_block(j, base, pitch):
    if j % 2:
        return []
    if j // 2 == B8:
        return [I(f"s_add_u32 s{sWB}, s{base}, {512 * pitch}")]
    return [I(f"s_xor_b32 s{sWB}, s{sG}, {blk(j // 2)}"), I(f"s_mul_i32 s{sWB}, s{sWB}, {64 * pitch}"), I(f"s_add_u32 s{sWB}, s{sWB}, s{base}")]


def pace(groups, nsteps, cap, ngap, bgap, npro):
    q = [(e, x) for e, g in groups for x in g]
    res = []
    for j in range(-1, nsteps):
        d, n = [], 0
        lim = npro if j < 0 else 99 if j == nsteps - 1 else cap(j) if callable(cap) else cap
        while q and q[0][0] <= j and n < lim:
            e, x = q.pop(0)
            d.append((e == j, x))
            n += x.kind in VM
        k, o = 0, []
        for dep, it in d:
            vm = it.kind in VM
            g = 1 + (ngap * k) // max(n, 1) + (2 if vm else 0)
            o.append((max(g, bgap(j) + 1) if dep else g, it))
            k += vm
        res.append(o)
    assert not q
    if OPT["verbose"]:
        for j, o in enumerate(res):
            sys.stderr.write(f"  step {j - 1}: " + " ".join((x.tag or "t") for _, x in o if x.kind in VM) + "\n")
    return [x for _, x in res[0]], res[1:]


def first_touches(p, tw, tx, wmask):
    if OPT["tfirst"] == 1:
        p.extend(tw(0) + tx(0))
        return 4, 2
    if OPT["tfirst"] == 2 and OPT["touch"]:
        a, b = tw(0), tx(0)
        p(f"s_mov_b64 exec, {wmask}")
        p.extend(a)
        p("s_mov_b64 exec, 0xff")
        p.extend(b)
        p("s_mov_b64 exec, -1")
        return 2, 1
    return 1, 1


def add_touches(groups_after, j, TW, TX, tw, tx):
    o = []
    for k in range(1, 5):
        if j == max(1, TW + 4 * k - OPT["tdist"]):
            if TW + 4 * k < 18:
                o += tw(TW + 4 * k)
            if TX + 2 * k < 9:
                o += tx(TX + 2 * k)
    if o:
        groups_after.append((-1, o))


BG = lambda j: OPT["bg0"] if j == 0 else OPT["bg1"] if j == 1 else OPT["bgv"] if j < OPT["bgn"] else 0


sstate = {}


def gemm_step(p, j, mf, tags, rds, dma, side, first=(), hi=(), wait_end=True):
    bg = BG(j)
    s_rd = [(bg, [I("WAITLGKM", cost=0), I(f"WAITVM {tags}", cost=1), I("s_barrier")])] + list(first)
    r0 = max([bg] + [g for g, _ in first])
    span = len(mf) - 6 - r0
    for i, x in enumerate(rds):
        s_rd.append((r0 + 2 + min(2 * i, (span * i) // len(rds)), x))
    if wait_end:
        s_rd.append((len(mf) - 1, I("WAITLGKM", cost=1), len(mf) - 1))
    if OPT["s2"]:
        p.extend(sched2(mf, [s_rd, list(hi), dma, side], state=sstate, rlate=OPT["rlate"]))
    else:
        p.extend(sched(mf, [list(hi), s_rd, dma, side]))


BO = 8


def phase_b(units, hreg, hdep, trB, mf):
    frags = [(ui, qi, k) for ui, u in enumerate(units) for qi, k in enumerate(u["ks"])]
    rdc = {}

    def rd(fi):
        if fi not in rdc:
            ui, qi, (ks, off, hoff) = frags[fi]
            w = 44 + 4 * (fi % 5)
            rdc[fi] = [I(f"ds_read_b64_tr_b16 {vr(w, 2)}, {trB(qi).at(off)}"),
                       I(f"ds_read_b64_tr_b16 {vr(w + 2, 2)}, {trB(qi).at(off + hoff)}", tag=f"f{fi}")]
        return rdc[fi]

    s_rd, s_dma, s_ep = [], [], []
    seen, need = {}, {}
    for fi in range(0, len(frags), 2):
        ui, qi, _ = frags[fi]
        u = units[ui]
        t = u["tile"]
        first = t not in seen
        seen[t] = seen.get(t, 0) + 2
        g0 = len(mf)
        order = [(b, h ^ (b & 1)) for b in range(8) for h in range(2)] if OPT["chb"] else [(b, h) for h in range(2) for b in range(8)]
        started, lastw = set(), {}
        for b, h in order:
            c, ks = 64 + 32 * (t % 2) + 4 * b, frags[fi + h][2][0]
            mf.append(I(f"{MF} {vr(c, 4)}, {vr(44 + 4 * ((fi + h) % 5), 4)}, {hreg(ks, b)}, {'0' if first and b not in started else vr(c, 4)}"))
            mf[-1].deps = rd(fi + h) + hdep(ks, b)
            started.add(b)
            lastw[b] = (len(mf) - 1, mf[-1])
            need.setdefault((ks, b), len(mf) - 1)
        if fi + 3 < len(frags):
            s_rd += [(g0 + 1, rd(fi + 3)[0]), (g0 + 3, rd(fi + 3)[1])]
        if qi == 0:
            gb = g0 + (BO if ui + 1 < len(units) else OPT["bo26"])
            tags = [x["tag"] for x in units[ui + 1:ui + 2]] + u.get("wtags", [])
            chk = u.get("chk", [])
            for it in chk:
                s_rd.append((gb - 1, it))
            if tags or chk or u.get("pre"):
                bi = I("s_barrier")
                u["bar"] = bi
                s_rd.append((gb, [I("WAITLG none " + u.get("ltag", ""), cost=0), I("WAITVM none " + " ".join(tags), cost=1), bi]))
                for x in flat(u.get("pre", []) + u.get("dma", [])):
                    x.after = [bi]
            for it in u.get("pre", []):
                s_rd.append((gb + 1, it))
            items = u.get("dma", [])
            nv = sum(1 for x in items if x.kind in VM)
            k = 0
            for it in items:
                vm = it.kind in VM
                s_dma.append((gb + u.get("d0", 4) + (32 * k) // nv + (1 if vm else 0), it))
                k += vm
        if fi + 4 < len(frags):
            s_rd += [(g0 + BO + 1, rd(fi + 4)[0]), (g0 + BO + 3, rd(fi + 4)[1])]
            s_rd.append((g0 + 15, I(f"WAITLG f{fi + 3}", cost=1)))
        if seen[t] == 12:
            if t < (8 if OPT["stamp"] == 2 else 2) and OPT["stamp"] >= 2:
                s_rd.append((len(mf) - 1, stamp_ins(f"t{t}", 2)))
            sg = 0 if t == 8 else OPT["stg7"] if t == 7 else 8 if t == 0 and OPT["t01"] else OPT["stg1"] if t == 1 else OPT["stg"]
            e0 = lastw[1][0] + 4
            s_ep.append((e0 - 2, I(f"s_add_u32 s62, s{PGS[t // 3]}, {(t % 3) * 16 * SRCS}")))
            for pp in range(4):
                c = 64 + 32 * (t % 2) + 8 * pp
                e = max(e0 + pp * sg, lastw[2 * pp + 1][0] + 4)
                for i in range(4):
                    s_ep.append((e, I(f"v_cvt_pk_bf16_f32 v{32 + 4 * ((pp + t) % 3) + i}, v{c + 2 * i}, v{c + 2 * i + 1}")))
                    s_ep[-1][1].deps = [lastw[2 * pp + i // 2][1]]
                if not OPT["nost"]:
                    s_ep.append((e + 2, I(f"buffer_store_dwordx4 {vr(32 + 4 * ((pp + t) % 3), 4)}, v{vPST}, {srd(SWS)}, s62 offen offset:{1024 * pp} {OPT['stflav'].replace('plain', '')}", tag=f"P{t}")))
    return rd(0) + rd(1) + rd(2), s_rd, s_dma, s_ep, need


def f_loads(r, FR, so=60):
    o = []
    for i in range(3):
        o += [I(f"s_add_u32 s{so}, s{PGS[r // 3]}, {((r % 3) * 16 + 4 * i) * SRCS}"),
              I(f"buffer_load_dwordx4 {FR(r, i)}, v{vCON}, {srd(SWS)}, s{so} offen sc1")]
    return o


def b2_touch(tmp):
    o = P()
    srd_ptr(o, SB2, 18); srd_const(o, SB2, 1152)
    if OPT["b2t"]:
        o(f"v_lshlrev_b32 v{tmp}, 7, v0")
        o(f"buffer_load_dword a255, v{tmp}, {srd(SB2)}, 0 offen", tag="T")
        o[-1].writes = set()
    return o


def b2_addr(reg, tmp):
    return P()(f"""
    s_and_b32 s85, s{sMT}, 7
    v_lshrrev_b32 v{reg}, 1, v0
    v_min_u32 v{reg}, 9, v{reg}
    v_add_u32 v{reg}, s85, v{reg}
    v_subrev_u32 v{tmp}, 9, v{reg}
    v_min_u32 v{reg}, v{reg}, v{tmp}
    v_and_b32 v{tmp}, 1, v0
    v_lshlrev_b32 v{tmp}, 4, v{tmp}
    v_lshl_add_u32 v{reg}, v{reg}, 7, v{tmp}
    s_lshl_b32 s85, s{sW}, 5
    v_add_u32 v{reg}, s85, v{reg}
    """)


def b2_dma(reg, lds):
    return [I(f"s_add_u32 m0, s65, {lds}"), I(f"buffer_load_dwordx4 v{reg}, {srd(SB2)}, 0 offen lds", tag="B2")]


ENDREG = dict(ffn=(12, 29), att=(208, 221))
ENDBLK = dict(ffn=(160, 96, 116, 25, 36), att=(222, 136, 48, 58, 0))


def end_setup(role):
    SEL, vZA = ENDREG[role]
    p = P()
    srd_ptr(p, SOUT, 22); srd_const(p, SOUT, 2048 * 1152)
    t = SEL
    p(f"""
    s_mul_i32 s68, s{sMT}, 147456
    s_lshl_b32 s82, s{sW}, 5
    s_add_u32 s68, s68, s82
    s_lshr_b32 s82, s{sSRC}, 2
    s_lshl_b32 s82, s82, 5
    s_and_b32 s83, s{sSRC}, 1
    s_lshl_b32 s83, s83, 3
    s_add_u32 s82, s82, s83
    s_bfe_u32 s83, s{sSRC}, 0x10001
    s_add_u32 s82, s82, s83
    v_bfe_u32 v{t}, v0, 4, 1
    v_lshl_add_u32 v{t}, v{t}, 4, s82
    v_and_b32 v{t + 1}, 3, v0
    v_lshl_add_u32 v{t + 1}, v{t + 1}, 1, v{t}
    v_lshlrev_b32 v{vZA}, 2, v{t + 1}
    v_bfe_u32 v{t + 6}, v0, 1, 3
    v_and_b32 v{t + 7}, 1, v0
    v_lshlrev_b32 v{t + 7}, 4, v{t + 7}
    s_movk_i32 s83, 0x3f80
    v_lshlrev_b32 v{t + 7}, v{t + 7}, s83
    s_add_u32 s83, s{sFL}, {O_Z - O_CNT}
    """)
    for i in range(8):
        p(f"v_cmp_eq_u32 s[{8 + 2 * (i % 4)}:{9 + 2 * (i % 4)}], {i}, v{t + 6}")
        if i % 4 == 3:
            for k in range(4):
                p(f"v_cndmask_b32 v{t + i - 3 + k}, 0, v{t + 7}, s[{8 + 2 * k}:{9 + 2 * k}]")
    return p


def g_load(role):
    return I(f"buffer_load_dword v{ENDBLK[role][3]}, v{ENDREG[role][1]}, {srd(SWS)}, s83 offen sc1")


def end_consts(role, b2lds):
    SEL, vZA = ENDREG[role]
    K, DF, B2R = ENDBLK[role][:3]
    T = K + 22
    sc = "s67" if role == "ffn" else "s43"
    c0 = P()
    if role == "ffn":
        c0(f"v_add_u32 v{K}, s65, v{vL16}\nv_add_u32 v{K + 1}, 0x10000, v{K}\nv_add_u32 v{K + 2}, 0x20000, v{K}")
    c0(f"""
    s_add_u32 {sc}, s65, {b2lds}
    v_lshrrev_b32 v{T}, 5, v0
    v_bfe_u32 v{T + 1}, v0, 2, 2
    v_lshl_add_u32 v{K + 3}, v{T + 1}, 3, {sc}
    v_lshl_add_u32 v{K + 3}, v{T}, 5, v{K + 3}
    """)
    c1 = P()("WAITVM B2")
    for q in range(5):
        c1(f"ds_read_b64 {vr(B2R + 2 * q, 2)}, v{K + 3} offset:{64 * q}")
    c2 = P()
    for i in range(10):
        c2(f"v_lshlrev_b32 v{DF + 2 * i}, 16, v{B2R + i}\nv_and_b32 v{DF + 2 * i + 1}, 0xffff0000, v{B2R + i}")
    c3 = P()(f"""
    s_lshl_b32 {sc}, s{sSRC}, 8
    v_and_b32 v{T + 2}, 15, v0
    v_lshl_add_u32 v{T + 2}, v{T + 2}, 4, {sc}
    s_and_b32 {sc}, s{sMT}, 7
    v_lshrrev_b32 v{T + 3}, 4, v0
    v_add_u32 v{T + 4}, {sc}, v{T + 3}
    """)
    for i in range(3):
        if i:
            c3(f"v_add_u32 v{T + 4}, 4, v{T + 4}")
        c3(f"v_subrev_u32 v{T + 5}, 9, v{T + 4}\nv_min_u32 v{T + 4}, v{T + 4}, v{T + 5}\nv_lshl_add_u32 v{K + 5 + i}, v{T + 4}, 15, v{T + 2}")
    c3(f"""
    v_min_u32 v{T + 5}, 1, v{T + 3}
    v_lshl_add_u32 v{K + 7}, v{T + 5}, 31, v{K + 7}
    v_bfe_u32 v{T + 5}, v0, 3, 1
    v_sub_u32 v{T + 5}, v{T + 3}, v{T + 5}
    v_cmp_eq_u32 s[8:9], 0, v{T + 5}
    v_cmp_eq_u32 s[10:11], 2, v{T + 5}
    v_and_b32 v{T + 6}, 3, v0
    v_lshl_add_u32 v{K + 4}, v{T + 6}, 2, v{T + 1}
    v_and_or_b32 v{K + 4}, v0, 48, v{K + 4}
    v_lshlrev_b32 v{K + 4}, 2, v{K + 4}
    """)
    for k in range(4):
        c3(f"v_or_b32 v{T + 5}, v{SEL + k}, v{SEL + 4 + k}\nv_cndmask_b32 v{K + 8 + k}, 0, v{T + 5}, s[8:9]\nv_cndmask_b32 v{K + 12 + k}, 0, v{T + 5}, s[10:11]")
    c3(f"""
    v_mul_u32_u24 v{T + 2}, 288, v{vZA}
    v_lshl_add_u32 v{T + 2}, v{T + 1}, 3, v{T + 2}
    v_sub_u32 v{T + 5}, v{T + 1}, v{T + 6}
    v_mul_i32_i24 v{T + 5}, {2304 - 8}, v{T + 5}
    v_add_u32 v{T + 3}, v{T + 2}, v{T + 5}
    v_lshl_add_u32 v{T + 2}, v{T}, 31, v{T + 2}
    v_add_u32 v{T + 4}, {sc}, v{T}
    """)
    for q in range(5):
        if q:
            c3(f"v_add_u32 v{T + 4}, 2, v{T + 4}\nv_subrev_u32 v{T + 5}, 9, v{T + 4}\nv_min_u32 v{T + 4}, v{T + 4}, v{T + 5}")
        c3(f"v_lshl_add_u32 v{K + 16 + q}, v{T + 4}, 7, v{T + 3 - (q == 4)}")
    return c0, c1, c2, c3


def end_phase(p, role, FR, nin, nchk, spec, last_tag, last_cnt, post=()):
    SEL, vZA = ENDREG[role]
    K, DF0, B2R, vG, AL = ENDBLK[role]
    DF = lambda q: DF0 + 4 * q
    OUT = lambda q: K + 22 + 2 * q
    stages = [[(x[0], int(x[1:])) for x in g.split("+")] for g in spec.split(",")]
    stages = [[(k, t) for k, t in g if t >= nchk] for g in stages]
    stages = [g for g in stages if g]
    preg = lambda k, i: 70 + 2 * (k % 2) + i
    polls = lambda k: flat([y for i, (kind, t) in enumerate(stages[k]) for y in poll_load(t, preg(k, i))])
    done = dict(f=0, s=0, q=0, a4=False, st=0)

    def stores():
        for q in range(done["st"], done["q"]):
            p(f"buffer_store_dwordx2 {vr(OUT(q), 2)}, v{K + 16 + q}, {srd(SOUT)}, s68 offen")
        done["st"] = done["q"]

    def work(nf, a):
        for r in range(done["f"], nf):
            for i in range(3):
                p(f"{MF} {vr(DF(r // 2), 4)}, {vr(SEL + 4 * (r % 2), 4)}, {FR(r, i)}, {vr(DF(r // 2), 4)}")
        done["f"] = max(nf, done["f"])
        mfa = lambda q, d, c: p(f"{MF} {vr(d, 4)}, {vr(K + 8 + 4 * (q % 2), 4)}, {vr(AL + 4 * (q // 2), 4, 'a')}, {c}")
        q0 = done["q"]
        if a:
            for q in range(q0, done["s"]):
                mfa(q, DF(q), vr(DF(q), 4))
            if not done["a4"]:
                mfa(4, B2R, "0")
                done["a4"] = True
        s0 = done["s"]
        done["s"] = max(s0, min(4, nf // 2))
        for q in range(s0, done["s"]):
            for i in range(4):
                p(f"v_mul_f32 v{DF(q) + i}, v{vG}, v{DF(q) + i}")
        if a:
            for q in range(s0, done["s"]):
                mfa(q, DF(q), vr(DF(q), 4))
            for q in range(q0, done["s"]):
                p(f"v_cvt_pk_bf16_f32 v{OUT(q)}, v{DF(q)}, v{DF(q) + 1}\nv_cvt_pk_bf16_f32 v{OUT(q) + 1}, v{DF(q) + 2}, v{DF(q) + 3}")
            for q in range(q0, done["s"]):
                p(f"ds_bpermute_b32 v{OUT(q)}, v{K + 4}, v{OUT(q)}\nds_bpermute_b32 v{OUT(q) + 1}, v{K + 4}, v{OUT(q) + 1}")
            done["q"] = done["s"]
            if nf == 9:
                for i in range(4):
                    p(f"v_fma_f32 v{DF(4) + i}, v{DF(4) + i}, v{vG}, v{B2R + i}")
                p(f"v_cvt_pk_bf16_f32 v{OUT(4)}, v{DF(4)}, v{DF(4) + 1}\nv_cvt_pk_bf16_f32 v{OUT(4) + 1}, v{DF(4) + 2}, v{DF(4) + 3}")
                done["q"] = 5

    for r in range(nin, nchk):
        p.extend(f_loads(r, FR))
    assert not any(t == last_cnt for _, t in stages[0])
    p.extend(polls(0))
    p.extend(post[:OPT["npost"]])
    work(min(nin, OPT["rpre"] if role == "ffn" else 0), False)
    stamp(p, "e_setup")
    p(f"s_waitcnt lgkmcnt(0)\nWAITVM {last_tag}\ns_barrier")
    p.extend(flat(signal(last_cnt)))
    nf, na = nchk, False
    for k, g in enumerate(stages):
        for i, (kind, t) in enumerate(g):
            p.extend(flat(poll_check(role, t, kind, preg(k, i), k > 0 and i == 0)))
        if k + 1 < len(stages):
            p.extend(polls(k + 1))
        p("s_barrier")
        if k >= len(stages) - 2 or k == 0:
            stamp(p, "e_" + "".join(f"{kind}{t}" for kind, t in g))
        pf, pa = nf, na
        for kind, t in g:
            if kind == "F":
                for r in range(nf, t + 1):
                    p.extend(f_loads(r, FR))
                nf = t + 1
            else:
                for i in range(3):
                    p(f"buffer_load_dwordx4 {vr(AL + 4 * i, 4, 'a')}, v{K + 5 + i}, {srd(SWS)}, s5 offen sc1")
                na = True
        if k == 0 and not any(kd == "A" for kd, _ in g):
            p.extend(post[OPT["npost"]:])
        stores()
        work(pf, pa)
    assert nf == 9 and na
    stores()
    work(9, True)
    stores()
    stamp_out(p)
    p("s_endpgm")
    p.extend(stubs[role])


def role_ffn():
    p = P()
    XR = 98304
    p(f"L_ffn:\ns_mul_i32 s{sSRC}, s59, 3\ns_add_u32 s{sSRC}, s{sSRC}, s60\ns_sub_u32 s{sSRC}, s{sSRC}, 1")
    code_touch(p, "ffn", 38)
    p(f"""
    v_lshrrev_b32 v32, 3, v0
    v_and_b32 v33, 7, v0
    s_mul_i32 s59, s{sW}, {32 * 1152}
    v_mul_u32_u24 v34, 1152, v32
    v_add_u32 v34, s59, v34
    v_lshrrev_b32 v35, 1, v32
    v_xor_b32 v35, v33, v35
    v_lshlrev_b32 v35, 4, v35
    v_lshlrev_b32 v36, 1, v34
    v_subrev_u32 v36, s59, v36
    v_add_u32 v1, v36, v35
    v_xor_b32 v35, 64, v35
    v_add_u32 v2, v36, v35
    v_add_u32 v2, 128, v2
    v_add_u32 v3, 16384, v1
    v_add_u32 v4, 16384, v2
    s_and_b32 s69, s{sW}, 1
    s_lshl_b32 s59, s69, 2
    v_and_or_b32 v35, v32, 2, s59
    v_xor_b32 v35, v33, v35
    s_mul_i32 s59, s{sW}, {8 * 9216}
    s_add_u32 s59, s59, 2048
    v_mul_u32_u24 v36, 9216, v32
    v_lshl_add_u32 v36, v35, 4, v36
    v_add_u32 v5, s59, v36
    v_subrev_u32 v6, 896, v5
    v_subrev_u32 v7, 1792, v5
    v_lshlrev_b32 v{vL16}, 4, v0
    s_mul_i32 s62, s{sMT}, 147456
    s_mul_i32 s63, s{sSRC}, 768
    s_lshl_b32 s65, s{sW}, 12
    s_mul_i32 s66, s{sW}, 6144
    {bit_of(OPT["xa"], 59)}
    {bit_of(OPT["xb"], 85)}
    s_mul_i32 s60, s59, 3072
    s_sub_u32 s67, s66, s60
    s_add_u32 s67, s67, 3072
    s_add_u32 s66, s66, s60
    s_mul_i32 s59, s59, 384
    s_mul_i32 s60, s85, {32 * 9216}
    s_add_u32 s48, s60, s59
    s_sub_u32 s49, s60, s59
    s_add_u32 s49, s49, 384
    """)
    srd_const(p, SX, 2048 * 1152)
    srd_const(p, SWA, 576 * 9216 + 2048)
    srd_const(p, SSM, 4608 * 2)
    lt = P()
    srd_const(lt, SWB, 4608 * 1152)
    srd_const(lt, SWS, WS_SIZE)
    lt(f"""
    s_sub_u32 s50, {32 * 9216 + 384}, s49
    s_sub_u32 s51, {32 * 9216 + 384}, s48
    s_mul_i32 s64, s{sSRC}, {384 * 1152}
    v_and_b32 v35, 6, v32
    v_xor_b32 v35, v33, v35
    v_lshl_add_u32 v8, v35, 4, v34
    v_and_b32 v32, 3, v32
    v_and_b32 v33, 3, v0
    v_lshlrev_b32 v33, 3, v33
    v_lshrrev_b32 v34, 4, v0
    v_bfe_u32 v35, v0, 2, 2
    s_lshl_b32 s59, s69, 1
    v_xor_b32 v12, s59, v32
    v_lshl_add_u32 v12, v12, 5, v33
    v_lshl_add_u32 v12, v35, 7, v12
    v_mul_u32_u24 v13, 6144, v34
    s_lshr_b32 s59, s{sW}, 1
    s_lshl_b32 s59, s59, 10
    v_add3_u32 v12, v12, v13, s59
    v_xor_b32 v13, 32, v12
    v_add_u32 v14, 0x10000, v12
    v_add_u32 v15, 0x10000, v13
    v_xor_b32 v22, s{sW}, v32
    v_lshl_add_u32 v22, v22, 5, v33
    v_lshrrev_b32 v35, 2, v0
    v_lshl_add_u32 v22, v35, 7, v22
    v_and_b32 v32, 15, v0
    v_lshrrev_b32 v33, 1, v32
    v_xor_b32 v33, v33, v34
    v_lshlrev_b32 v33, 4, v33
    v_lshl_add_u32 v16, v32, 7, v33
    v_add_u32 v16, {XR}, v16
    s_lshl_b32 s59, s85, 6
    v_xor_b32 v16, s59, v16
    v_xor_b32 v17, 64, v16
    s_mul_i32 s59, s{sW}, {4096 + 64}
    s_add_u32 s59, s59, {XR + 3 * 16384}
    v_lshl_add_u32 v39, v34, 3, s59
    """)
    p("s_branch L_ffn_mid\nL_ffn_mid:" if OPT["split3"] else "L_ffn_mid:")
    p("WAITLGKM")
    stamp_begin(p, "ffn", 20)
    stamp(p, "karg", 2)
    srd_ptr(p, SWA, 12, 2048)
    srd_ptr(p, SX, 4)

    UO = [(n // 3, n % 3) for n in range(27)]
    if OPT["t01"]:
        UO[:6] = [(0, 0), (0, 1), (1, 0), (1, 1), (0, 2), (1, 2)]
    N2 = UO.index((0, 2))

    def dma4(base, soff, regs, sr, tag, half=None):
        o = [I(f"s_add_u32 m0, s65, {base}")] + soff
        for q in (range(4) if half is None else (2 * half, 2 * half + 1)):
            o.append(I(f"buffer_load_dwordx4 v{regs[q]}, {srd(sr)}, s60 offen offset:{1024 * q} lds", tag=tag))
        return o

    dma_x = lambda J, half=None: dma4(XR + (J % 4) * 16384, x_soff(J, "s62"), [1, 2, 3, 4], SX, f"R{J}", half)
    dma_w2 = lambda n, base: dma4(base, [I(f"s_add_u32 s60, s{sCH + UO[n][0]}, {UO[n][1] * 147456}")], [8, 9, 10, 11], SWB, f"U{n}")

    def dma_w1(j):
        o = w_block(j, 63, 9216)
        for h in range(2):
            o.append(I(f"s_add_u32 m0, s{66 + h}, {(j % 4) * 24576}"))
            o.append(I(f"s_add_u32 s60, s{sWB}, s{48 + 2 * (j % 2) + h}"))
            for q in range(3):
                o.append(I(f"buffer_load_dwordx4 v{5 + q}, {srd(SWA)}, s60 offen offset:{1024 * q} lds", tag=f"W{j}"))
        return o

    p.extend(dma_x(0) + dma_w1(0))
    srd_ptr(p, SSM, 14)
    p(f"s_add_u32 m0, s65, {XR + 3 * 16384}")
    srd_ptr(p, SWB, 16)
    p(f"buffer_load_dwordx4 v{vL16}, {srd(SSM)}, s63 offen lds", tag="W0")
    stamp(p, "d0", 2)
    p("s_branch L_ffn_late\nL_ffn_late:")
    srd_ptr(p, SWS, 26)
    if OPT["wlate"]:
        p.extend(lt[4:6] + dma_w1(1) + lt[:4] + lt[6:])
    else:
        p.extend(lt)
    stamp(p, "late", 4)
    warm(p, "ffn")
    stamp(p, "warm", 2)
    p("s_branch L_ffn_body\nL_ffn_body:")
    if not OPT["wlate"]:
        p.extend(dma_w1(1))
    stamp(p, "d1", 2)
    dbl = [int(x) for x in OPT["dbl"].split(",")]
    rho, st = {0: -1}, 1
    for j in range(15):
        for _ in range(2 if j in dbl else 1):
            rho[st] = j
            st += 1
    assert rho[17] == 14
    free_at = lambda sg: rho[sg] + 1 if sg >= 0 else -1
    groups = []
    for j in range(2, 18):
        if j == 2:
            groups.append((-1, dma_x(1)))
        elif j < 17:
            J = (j + 1) // 2
            groups.append((max(free_at(2 * J - 7), 0 if J == 3 else -1), dma_x(J, (j + 1) % 2)))
        groups.append((free_at(j - 4), dma_w1(j)))
    UL = OPT["ulate"]
    if UL < 2:
        groups.append((12, touch(31, SWB, 64, 1024, True)))
    xslot = lambda st: XR + (st % 4) * 16384
    uslot = {n: xslot(9 + n) for n in range(4)}
    groups += [(free_at(2 * n + 11), dma_w2(n, uslot[n])) for n in range(2 - UL)]

    trA = [Addr([12, 14]), Addr([13, 15])]
    xr = [Addr([16]), Addr([17])]
    hw = Addr([18, 19])
    hr = {i: Addr([30 + 2 * i, 31 + 2 * i]) for i in (1, 2, 3)}
    trBs = [Addr([22, 21, 26]), Addr([1, 2, 3]), Addr([4, 5, 6]), Addr([7, 27, 30])]
    xf = lambda j, b: 32 * (j % 4) + 4 * b
    wf = lambda j, t: 128 + 32 * (t // 2) + 8 * (j % 4) + 4 * (t % 2)
    acc = lambda t, b: [160, 64, 192, 96, 224, 128][t] + 4 * b
    rdc = {}

    def reads(j):
        o = []
        for t in range(6):
            off = (j % 4) * 24576 + (t // 2) * 2048
            w = wf(j, t)
            o.append([I(f"ds_read_b64_tr_b16 {vr(w, 2, 'a')}, {trA[t % 2].at(off)}"),
                      I(f"ds_read_b64_tr_b16 {vr(w + 2, 2, 'a')}, {trA[t % 2].at(off + 512)}")])
        xs = [I(f"ds_read_b128 {vr(xf(j, b), 4, 'a')}, {xr[j % 2].at(((j // 2) % 4) * 16384 + b * 2048)}") for b in range(8)]
        rdc[j] = (o, xs)
        if j == 17:
            return o[0] + o[1] + xs + [y for x in o[2:] for y in x]
        return o[0] + xs + [y for x in o[1:] for y in x]

    def mfa(j, t, b):
        x = I(f"{MF} {vr(acc(t, b), 4)}, {vr(wf(j, t), 4, 'a')}, {vr(xf(j, b), 4, 'a')}, {vr(40 + 4 * t if j == 0 else acc(t, b), 4)}")
        x.deps = rdc[j][0][t] + [rdc[j][1][b]]
        return x

    pro, paced = pace(groups, 14, lambda j: OPT["capd"] if j in dbl else OPT["cap"], 44, BG, OPT["npro"])
    k = split_vm(pro, OPT["npre"])
    p.extend(pro[:k])
    p("WAITVM R0 W0")
    for t in range(6):
        p(f"ds_read_b64 {vr(244 + 2 * t, 2)}, v39 offset:{(t // 2) * 256 + (t % 2) * 32}")
    stamp(p, "land", 2)
    p("s_barrier")
    p.extend(reads(0))
    p.extend(pro[k:])
    for t in range(6):
        for i in range(2):
            p(f"v_lshlrev_b32 v{40 + 4 * t + 2 * i}, 16, v{244 + 2 * t + i}")
            p(f"v_and_b32 v{41 + 4 * t + 2 * i}, 0xffff0000, v{244 + 2 * t + i}")
    if not OPT["fastst"]:
        p("WAITLGKM")
    stamp(p, "A0")

    hs = handoff_setup(64, 1)
    addr13 = P()
    for i in (1, 2, 3, 0):
        r = trBs[i].regs
        addr13(f"s_xor_b32 s85, s{sW}, {i}\ns_lshl_b32 s85, s85, 12\nv_add_u32 v{r[0]}, s85, v22")
        addr13(f"v_add_u32 v{r[1]}, 0x10000, v{r[0]}\nv_add_u32 v{r[2]}, 0x20000, v{r[0]}")
    addr13(f"s_mul_i32 s85, s{sW}, {32 * 1152}\nv_and_b32 v31, 31, v0\nv_mul_u32_u24 v31, 1152, v31\nv_add_u32 v31, s85, v31")
    addr11 = P()
    for i in (1, 2, 3):
        addr11(f"s_xor_b32 s85, s{sW}, {i}\ns_lshl_b32 s85, s85, 13\nv_add_u32 v{30 + 2 * i}, s85, v{vL16}\nv_add_u32 v{31 + 2 * i}, 0x10000, v{30 + 2 * i}")
    late = {5: hs[:27], 6: hs[27:46], 7: hs[46:],
            9: P()(f"""
            v_add_u32 v9, 8192, v8
            v_add_u32 v10, 16384, v8
            v_add_u32 v11, 24576, v8
            s_lshl_b32 s85, s{sW}, 13
            v_add_u32 v18, s85, v{vL16}
            v_add_u32 v19, 0x10000, v18
            """),
            10: code_touch2("ffn", 38) + P()(f"""
            s_mul_i32 s85, s68, {12 * 1152}
            v_min_u32 v31, 11, v0
            v_mul_u32_u24 v31, 1152, v31
            v_add_u32 v31, s85, v31
            """),
            11: b2_touch(39) + addr11, 13: addr13}
    assert not any(("v", r) in x.reads for r in (1, 2, 3, 4, 5, 6, 7, 30, 31) for _, x in paced[13])
    assert not any(("v", 31) in x.reads for j in (10, 11) for _, x in paced[j])
    snake = [(t, b if t % 2 == 0 else 7 - b) for t in range(6) for b in range(8)]
    for j in range(14):
        j0 = j & ~1
        if OPT["cha"] and dbl[0] < j0 and j0 + 1 < dbl[1]:
            mf = [mfa(j0 + (h ^ (n & 1)), t, b) for n, (t, b) in enumerate(snake[24 * (j & 1):24 * (j & 1) + 24]) for h in range(2)]
        else:
            mf = [mfa(j, t, b) for t, b in (snake if OPT["cha"] else sorted(snake))]
        sts = [k for k in rho if rho[k] == j]
        tags = " ".join(f"W{k} R{k // 2}" for k in sts)
        gemm_step(p, j, mf, tags, [x for k in sts for x in reads(k)], paced[j], [(4, x) for x in late.get(j, [])])
        p("WAITLGKM")
        if j in (0, 1, 3, 8):
            stamp(p, f"A{j + 1}", 2)
    stamp(p, "A14")

    r17 = reads(17)
    uns = [(u, b) for u in range(3) for b in range(8)]
    mf, done = [], {}
    if OPT["chs"]:
        mf += [mfa(j, e, b) for b in range(3) for e in range(2) for j in ((14, 15, 16), (16, 15, 14))[e]]
    else:
        mf += [mfa(j, e, b) for j in (14, 15, 16) for b in range(3) for e in range(2)]
    for u, b in uns:
        js = (17,) if u == 0 and b < 3 else (14, 15, 16, 17)
        if OPT["chs"]:
            mf += [mfa(j, 2 * u + e, b) for e in range(2) for j in (js, js[::-1])[e]]
            done[u, b] = (len(mf) - 1, [mf[-1], mf[-1 - len(js)]])
        else:
            mf += [mfa(j, 2 * u + e, b) for j in js for e in range(2)]
            done[u, b] = (len(mf) - 1, mf[-2:])
    G = len(mf)
    B0, B1, B2 = OPT["b0"], G + OPT["b1"], G + 32 * (N2 - 1) + BO
    bar_b, bar_0, bar_1 = I("s_barrier"), I("s_barrier"), I("s_barrier")
    t_rd = [(0, [I("WAITVM W17 R8 T", cost=1), I("s_barrier")])] + [(1 + (3 * i) // 4, x) for i, x in enumerate(r17)]
    t_rd.append((21, [I("WAITLGKM", cost=1), bar_b]))
    if OPT["stamp"] >= 3:
        t_rd += [(g, stamp_ins(f"g{g}"), g) for g in (2, 22, 44, 100, 112)]
    d2, d3 = dma_w2(2, uslot[2]), dma_w2(3, uslot[3])
    for x in d3:
        x.after = [bar_b]
    if OPT["u4t"] and OPT["t01"]:
        tt = touch(31, SWB, sCH, 2 * 147456, True)
        tt[-1].tag = "T2"
        d2 = d2 + tt
    t_dma = [(1 + OPT["udist"] * k, x) for k, x in enumerate(d2)] + [(22 + OPT["udist"] * k, x) for k, x in enumerate(d3)]
    own, s_h2, s_hw = {}, [], []
    dead = {0: B0 - 5, 1: B1 - 5, 2: B2 - 5}
    items = []
    for u, b in uns:
        c, d = acc(2 * u, b), acc(2 * u + 1, b)
        o = [I(f"v_mul_f32 v{r + i}, v{r + i}, |v{r + i}|") for r in (c, d) for i in range(4)]
        for x in o:
            x.deps = done[u, b][1]
        o += [I(f"v_cvt_pk_bf16_f32 v{c + i}, v{r}, v{r + 1}") for i, r in enumerate((c, c + 2, d, d + 2))]
        own[u, b] = [I(f"v_pk_max_i16 v{c + i}, v{c + i}, 0") for i in range(4)]
        items += [(done[u, b][0] + 4, x, u, b) for x in o + own[u, b]]
    lo = items[0][0] + 2
    for u in range(3):
        sub = [it for it in items if it[2] == u]
        for n, (e, x, _, b) in enumerate(sub):
            dl = max(e, lo + ((n + 1) * (dead[u] - lo)) // len(sub))
            s_h2.append((e, x, dl))
            if x is own[u, b][-1]:
                w = I(f"ds_write_b128 {hw.wr(u * 32768 + b * 1024, vr(acc(2 * u, b), 4))}", tag=f"H{u}")
                w.after, w.deps = [bar_b], own[u, b]
                s_hw.append((dl + 1, w, dl + 2))
        lo = dead[u]
    land = {(0, 1): "a224", (0, 2): "a128", (0, 3): "a160", (1, 1): "a0", (1, 2): "a32", (1, 3): "a192",
            (2, 1): "a64", (2, 2): "a96", (2, 3): "v128"}

    def hreg(ks, b):
        u, i = divmod(ks, 4)
        if i == 0:
            return vr(acc(2 * u, b), 4)
        return vr(int(land[u, i][1:]) + 4 * b, 4, land[u, i][0])

    hrd = {(4 * u + i, b): I(f"ds_read_b128 {hreg(4 * u + i, b)}, {hr[i].at(u * 32768 + b * 1024)}") for u, i in land for b in range(8)}
    hdep = lambda ks, b: own[ks // 4, b] if ks % 4 == 0 else [hrd[ks, b]]
    t_hook = [(B0 - 80, x) for x in poll_load("init")]
    t_rd += [(B0 - 1, x) for x in poll_check("ffn", "init", "init")]
    t_rd.append((B0, [I("WAITLG H0", cost=0), I("WAITVM U0 T2", cost=1), bar_0]))
    assert B1 < G
    t_rd.append((B1, [I("WAITLG H1", cost=1), bar_1]))
    if OPT["stamp"] >= 1:
        t_rd.append((G - 17, stamp_ins("A18m"), G - 17))
    t_hook += [(B0 + 2 + 2 * i, x, G + 76) for i, x in enumerate(page_setup())] + [(G + 230, x) for x in b2_addr(31, 13)]
    SL = OPT["slack"]
    chk_at = {UO.index((r, 2)) - 2 + SL: r for r in range(9) if 3 * r + SL <= 26}
    assert SL > 3 + OPT["sig"]
    nchk = len(chk_at)
    nlds = sum(1 for n in chk_at if n < 24)
    assert nlds <= 5
    FRF = lambda r, i: vr((128 + 12 * r if r < 5 else 224 if r == 5 else 12 * (r - 6)) + 4 * i, 4, "a")
    nin = sum(1 for n in chk_at if n < 26)
    sig_at = {min(UO.index((t, 2)) + 1 + OPT["sig"], 26): t for t in range(8 if OPT["sig7"] == 1 else 7)}
    l26 = [(x[0], int(x[1:])) for x in OPT["last26"].split("+") if x]
    if l26:
        assert 26 not in chk_at
        nchk = max([nchk] + [t + 1 for k, t in l26 if k == "F"])
    units, hooks, free, fslot = [], [], [], {}
    issued = 4
    for n in range(27):
        u = dict(tile=UO[n][0], tag=f"U{n}", wtags=[], pre=[], dma=[])
        if n >= 1:
            free.append(uslot[n - 1])
            if UO[n - 1][0] == 0:
                free += [32768 * UO[n - 1][1], 32768 * UO[n - 1][1] + 16384]
        fd = []
        if n in sig_at:
            if not OPT["nosig"]:
                u["wtags"].append(f"P{sig_at[n]}")
            u["pre"] += signal(sig_at[n])
        if n in chk_at:
            r = chk_at[n]
            if not OPT["nochk"]:
                hooks += [(G + 32 * n + BO - OPT["pdist"], y) for y in poll_load(r, [sP0, sP1][r % 2])]
                u["chk"] = poll_check("ffn", r, "F", [sP0, sP1][r % 2])
            if nlds <= r < nin:
                fd = f_loads(r, FRF)
                u["d0"] = 9
            if r < nlds:
                fslot[r] = free.pop(0)
                fd = [I(f"s_add_u32 m0, s65, {fslot[r]}")]
                for i in range(3):
                    fd += [I(f"s_add_u32 s60, s{PGS[r // 3]}, {((r % 3) * 16 + 4 * i) * SRCS - 1024 * i}"),
                           I(f"buffer_load_dwordx4 v{vCON}, {srd(SWS)}, s60 offen offset:{1024 * i} sc1 lds", tag="FD")]
        if n == 26 and l26:
            c = []
            for i, (kind, t) in enumerate(l26):
                hooks += [(G + 32 * n + OPT["bo26"] - OPT["pd26"] + 2 * i, y) for y in poll_load(t, [sP0, sP1][i])]
                c += poll_check("ffn", t, kind, [sP0, sP1][i], i == 0)
            u["chk"] = [flat(c)]
            if OPT["f6in"]:
                fd = [y for r in range(nin, nchk) for y in f_loads(r, FRF)]
                nin = nchk
        if n == (22 if 22 not in chk_at else 23):
            hooks += [(G + 32 * n + BO - 28, y) for y in poll_load(CO, 66)]
            u["chk"] = poll_check("ffn", CO, "A", 66)
            b2lds = fslot[0] + 3072
            fd += b2_dma(31, b2lds) + [g_load("ffn")]
        k = 0
        while issued < 27 and issued <= n + OPT["look"] and free and k < (1 if fd or n < OPT["slow"] else 2):
            uslot[issued] = free.pop(0)
            u["dma"] += dma_w2(issued, uslot[issued])
            issued += 1
            k += 1
        assert issued >= min(27, n + 3)
        u["dma"] += fd
        units.append(u)
    for n, u in enumerate(units):
        u["ks"] = [(4 * UO[n][1] + q, uslot[n], 2048) for q in range(4)]
    units[N2 - 1]["ltag"] = "H2"
    r0, s_rd, s_dma, s_ep, hneed = phase_b(units, hreg, hdep, lambda qi: trBs[qi], mf)
    t_rd += [(G - 26 + 4 * k, x) for k, x in enumerate(r0)]
    t_rd.sort(key=lambda h: h[0])
    if OPT["stamp"] >= 3:
        s_rd += [(G + g, stamp_ins(f"G{g}"), G + g) for g in (14, 46, 78, 110, 118)]
        s_rd.sort(key=lambda h: h[0])
    s_end = [(G + 32 * 16 + i, x) for i, x in enumerate(end_setup("ffn"))]
    T8 = G + 32 * 24
    c0, c1, c2, c3 = end_consts("ffn", b2lds)
    fa = Addr([160, 161, 162])
    frd = [I("WAITVM FD", cost=1)] + [I(f"ds_read_b128 {FRF(r, i)}, {fa.at(fslot[r] + i * 1024)}") for r in range(nlds) for i in range(3)]
    frd[1].after = c1[1].after = [c0[-1]]
    c2[0].after = [c1[-1]]
    s_lds = [(T8 + 33 + 2 * i, x) for i, x in enumerate(c1 + frd)]
    s_end += [(T8 + 17, x) for x in c0 + c3] + [(T8 + 52, x) for x in c2]
    s_h = []
    for u in range(3):
        bar = [bar_0, bar_1, units[N2 - 1]["bar"]][u]
        g0 = [B0, B1, B2][u] + 1
        need = G + 32 * [0, 1, N2][u]
        keys = sorted(((4 * u + i, b) for i in (1, 2, 3) for b in range(8)), key=lambda k: hneed[k])
        for n, key in enumerate(keys):
            x = hrd[key]
            x.after = [bar]
            a0 = land[u, key[0] % 4]
            fr = {"a160": 128, "a192": G}.get(a0, done[2, key[1]][0] + 1 if a0 in ("a0", "a32", "a64", "a96") else 0)
            e = max(fr, g0 + (n * min(60, need + 16 - g0)) // 24, s_h[-1][0] if s_h else 0)
            s_h.append((e, x, max(e, hneed[key] - 8)))
    p.extend(sched2(mf, [t_rd + s_rd, s_hw, s_h + s_lds, s_ep, t_dma + s_dma, t_hook + sorted(hooks, key=lambda h: h[0]), s_h2 + s_end], state=sstate, rlate=2, wgap=OPT["wgap"]))
    stamp(p, "Bend")
    if OPT["sig7"] == 2:
        p("WAITVM P7\ns_barrier")
        p.extend(flat(signal(7)))
    end_phase(p, "ffn", FRF, nin, nchk, OPT["est"], "P8", 8)
    return p


def role_att():
    p = P()
    WSL, XR, XSL, GT, ZT = 28672, 114688, 20480, 155648, 162304
    EO, RO, OB = 64512, 20736, 4736
    WO = [129024, 64512, 84992, 41472, 105984]
    if OPT["amap"]:
        p(f"""L_att:
        s_bfe_u32 s{sSRC}, s2, 0x20004
        s_add_u32 s{sSRC}, s{sSRC}, 12
        s_and_b32 s{sMT}, s{sMT}, 9
        s_lshl1_add_u32 s{sMT}, s59, s{sMT}
        """)
    else:
        p(f"L_att:\ns_add_u32 s{sSRC}, s59, 12")
    if OPT["rga"]:
        ms = [int(x) for x in str(OPT["rga"]).split(",")][::-1]
        p(bit_of(ms[0], sG))
        for m in ms[1:]:
            p(bit_of(m, 59) + f"\ns_lshl1_add_u32 s{sG}, s{sG}, s59")
    code_touch(p, "att", 39)
    p(f"""
    s_sub_u32 s67, s{sSRC}, 12
    v_lshrrev_b32 v32, 3, v0
    v_and_b32 v33, 7, v0
    s_mul_i32 s63, s{sMT}, 147456
    s_and_b32 s69, s{sW}, 1
    s_lshr_b32 s60, s{sW}, 1
    s_mul_i32 s59, s69, 64
    s_add_u32 s59, s59, s60
    s_mul_i32 s59, s59, 1152
    s_add_u32 s59, s59, s63
    v_lshrrev_b32 v35, 1, v32
    v_xor_b32 v35, v33, v35
    v_lshlrev_b32 v35, 4, v35
    v_mul_u32_u24 v34, 2304, v32
    v_add3_u32 v1, v34, v35, s59
    v_xor_b32 v36, 64, v35
    s_add_u32 s59, s59, {16 * 1152 - 1024}
    v_add3_u32 v2, v34, v36, s59
    v_add_u32 v3, {32 * 1152 - 2048}, v1
    v_add_u32 v4, {32 * 1152 - 2048}, v2
    s_sub_u32 s59, s{sW}, 16
    s_mul_i32 s59, s59, 1152
    s_add_u32 s59, s59, s63
    s_cmp_eq_u32 s{sMT}, 0
    s_cselect_b32 s62, 0, 2
    s_cmp_ge_u32 s{sW}, s62
    s_cselect_b32 s59, {OOB}, s59
    s_lshl_b32 s62, s69, 6
    v_xor_b32 v36, s62, v35
    v_add3_u32 v5, v34, v36, s59
    s_lshl_b32 s59, s69, 2
    v_and_or_b32 v38, v32, 2, s59
    v_xor_b32 v38, v33, v38
    s_mul_i32 s59, s{sW}, {8 * 3456}
    s_add_u32 s59, s59, 2048
    v_mul_u32_u24 v36, 3456, v32
    v_add_u32 v36, s59, v36
    v_lshl_add_u32 v6, v38, 4, v36
    v_subrev_u32 v7, 896, v6
    v_subrev_u32 v8, 1792, v6
    v_lshrrev_b32 v35, 1, v38
    v_subrev_u32 v37, s67, v35
    v_and_b32 v37, 256, v37
    v_add_u32 v6, v6, v37
    v_subrev_u32 v27, 896, v6
    v_mul_u32_u24 v37, 1152, v35
    v_add_u32 v35, 1, v35
    v_lshrrev_b32 v35, 2, v35
    v_lshl_add_u32 v36, v35, 31, v36
    v_and_b32 v35, 1, v38
    v_lshl_add_u32 v37, v35, 4, v37
    s_lshl_b32 s59, s67, 5
    s_sub_u32 s59, s59, {2048 - 256}
    v_add3_u32 v9, v37, v36, s59
    s_lshl_b32 s64, s67, 8
    s_lshl_b32 s65, s{sW}, 12
    s_mul_i32 s66, s{sW}, 7168
    s_lshl_b32 s82, s{sW}, 10
    {bit_of(OPT["xb"], 85)}
    s_mul_i32 s48, s85, {32 * 3456}
    """)
    srd_const(p, SX, 2048 * 1152)
    srd_const(p, SWA, 576 * 3456 + 2048)
    p("s_branch L_att_mid\nL_att_mid:" if OPT["split3"] else "L_att_mid:")
    p("WAITLGKM")
    stamp_begin(p, "att", 47)
    stamp(p, "karg", 2)
    srd_ptr(p, SWA, 6, 2048)
    srd_ptr(p, SX, 4)

    def dma5(base, regs, sr, soff, tag):
        o = [I(f"s_add_u32 m0, s65, {base}")] + soff
        for q in range(4):
            o.append(I(f"buffer_load_dwordx4 v{regs[q]}, {srd(sr)}, s60 offen offset:{1024 * q} lds", tag=tag))
        o.append(I(f"s_add_u32 m0, s82, {base + 16384}"))
        o.append(I(f"buffer_load_dwordx4 v{regs[4]}, {srd(sr)}, s60 offen lds", tag=tag))
        return o

    dma_x = lambda J: dma5(XR + (J % 2) * XSL, [1, 2, 3, 4, 5], SX, x_soff(J, "0"), f"R{J}")
    wslot = {}
    WG = [768 + 12288 * i for i in (11, 12, 0, 1, 2, 5, 6, 7, 3, 4, 8, 9, 10)]

    def dma_wo(k, slot):
        wslot[k] = slot
        o = [I(f"s_add_u32 m0, s69, {slot}"), I(f"s_add_u32 s60, s{70 + k // 4}, {36 * (k % 4) * 1152}" if k < 16 else f"s_add_u32 s60, s64, {288 * (k - 16) * 1152}")]
        for q in range(3):
            o.append(I(f"buffer_load_dwordx4 v{(15 if k < 16 else 18) + q}, {srd(SWB)}, s60 offen offset:{1024 * q} lds", tag=f"O{k}"))
        return o

    def dma_w(j):
        tg = f"W{j}"
        o = w_block(j, 64, 3456) + [I(f"s_add_u32 m0, s66, {(j % 4) * WSL}"), I(f"s_add_u32 s60, s{sWB}, s{48 + j % 2}")]
        for q, r in ((1, 7), (3, 8), (0, 6), (2, 27)):
            o.append(I(f"buffer_load_dwordx4 v{r}, {srd(SWA)}, s60 offen offset:{1024 * q} lds", tag=tg))
        o.append(I(f"s_add_u32 m0, s66, {(j % 4) * WSL + 4096}"))
        o.append(I("s_add_u32 s59, s60, 2304"))
        o.append(I(f"buffer_load_dwordx4 v9, {srd(SWA)}, s60 offen offset:2048 lds", tag=tg))
        o.append(I(f"buffer_load_dwordx4 v6, {srd(SWA)}, s59 offen lds", tag=tg))
        o.append(I(f"buffer_load_dwordx4 v7, {srd(SWA)}, s59 offen offset:1024 lds", tag=tg))
        return o

    p.extend(dma_x(0) + dma_w(0))
    stamp(p, "d0", 2)
    p("s_branch L_att_late\nL_att_late:")
    p(f"""
    s_lshl_b32 s59, s{sW}, 6
    v_add_u32 v42, s59, v0
    v_lshlrev_b32 v43, 1, v0
    s_lshl_b32 s59, s85, 6
    v_xor_b32 v43, s59, v43
    s_sub_u32 s49, {32 * 3456}, s48
    """)
    srd_ptr(p, SSM, 20); srd_const(p, SSM, 576 * 2)
    for i in range(3):
        p(f"""
        s_add_u32 s59, s{sW}, {4 * i}
        s_cmp_gt_u32 s59, {B8}
        s_subb_u32 s60, s59, 0
        s_xor_b32 s60, s60, s{sG}
        s_cmp_eq_u32 s59, {B8}
        s_cselect_b32 s60, 8, s60
        s_lshl_b32 s60, s60, 7
        buffer_load_ushort v{48 + 2 * i}, v43, {srd(SSM)}, s60 offen
        """)
    srd_ptr(p, SWB, 8, 2048); srd_const(p, SWB, 576 * 1152 + 2048)
    srd_ptr(p, SWS, 26); srd_const(p, SWS, WS_SIZE)
    p(f"""
    v_and_b32 v34, 3, v42
    v_lshlrev_b32 v34, 3, v34
    v_bfe_u32 v35, v42, 2, 1
    v_lshl_add_u32 v34, v35, 9, v34
    v_bfe_u32 v35, v42, 3, 4
    v_lshl_add_u32 v34, v35, 5, v34
    v_lshrrev_b32 v35, 7, v42
    v_lshl_add_u32 v34, v35, 10, v34
    v_add_u32 v43, {GT}, v34
    v_and_b32 v36, 3, v32
    v_and_b32 v37, 3, v0
    v_lshlrev_b32 v37, 3, v37
    v_lshrrev_b32 v34, 4, v0
    v_bfe_u32 v35, v0, 2, 2
    v_xor_b32 v36, s{sW}, v36
    v_lshl_add_u32 v36, v36, 5, v37
    v_lshl_add_u32 v36, v35, 7, v36
    v_mul_u32_u24 v10, 7168, v34
    v_add_u32 v10, v10, v36
    v_add_u32 v12, 6144, v10
    s_cmp_lt_u32 s{sW}, s67
    s_cselect_b32 s59, 1024, 0
    s_sub_u32 s60, 1024, s59
    v_add_u32 v25, s60, v10
    v_add_u32 v10, s59, v10
    v_add_u32 v11, 0x10000, v10
    v_add_u32 v29, 0x10000, v25
    v_lshlrev_b32 v37, 5, v34
    v_lshl_add_u32 v37, v35, 3, v37
    v_add_u32 v37, {GT}, v37
    s_cmp_eq_u32 s{sW}, 3
    s_cselect_b64 vcc, -1, 0
    s_mov_b32 s62, {WSL}
    s_mov_b32 s83, {-3 * WSL}
    s_cselect_b32 s62, 128, s62
    s_cselect_b32 s83, 640, s83
    v_cndmask_b32 v12, v12, v37, vcc
    v_and_b32 v36, 15, v0
    v_lshrrev_b32 v37, 1, v36
    v_xor_b32 v37, v37, v34
    v_lshlrev_b32 v37, 4, v37
    v_lshl_add_u32 v13, v36, 7, v37
    v_add_u32 v13, {XR}, v13
    s_lshl_b32 s59, s85, 6
    v_xor_b32 v13, s59, v13
    v_xor_b32 v14, 64, v13
    s_mul_i32 s69, s{sW}, 3072
    """)
    if OPT["wlate"]:
        p.extend(dma_w(1))
    stamp(p, "late", 4)
    warm(p, "att")
    stamp(p, "warm", 2)
    p("s_branch L_att_body\nL_att_body:")
    if not OPT["wlate"]:
        p.extend(dma_w(1))
    rho, st = {0: -1}, 1
    for j in range(16):
        for _ in range(2 if j == OPT["dbla"] else 1):
            rho[st] = j
            st += 1
    assert rho[17] == 15
    free_at = lambda sg: rho[sg] + 1 if sg >= 0 else -1
    groups = [(-1, dma_x(1)), (-1, dma_w(2)), (-1, dma_w(3))]
    rest = [(free_at(2 * J - 3), 0, dma_x, J) for J in range(2, 9)] + [(max(free_at(j - 4), 1), 1, dma_w, j) for j in range(4, 18)]
    groups += [(e, f(k)) for e, _, f, k in sorted(rest, key=lambda r: (r[0], r[1], r[3]))]
    trA = [Addr([10, 11]), Addr([25, 29])]
    xr = [Addr([13]), Addr([14])]
    xf = lambda j, b: vr(36 * (j % 3) + 4 * b, 4, "a")
    wf = lambda j, t: 108 + 28 * (j % 3) + 4 * t
    nb = [8, 8, 9, 9, 9, 9, 9]
    accbase = [48, 80, 112, 148, 184, 220]
    A6 = 192
    acc = lambda t, b: vr(accbase[t] + 4 * b, 4) if t < 6 else vr(A6 + 4 * b, 4, "a")
    rdc = {}

    def reads(j):
        o = []
        for t in range(7):
            w = wf(j, t)
            if t < 6:
                off = (j % 4) * WSL + (t // 2) * 2048
                a0, a1 = trA[t % 2].at(off), trA[t % 2].at(off + 512)
            else:
                a0, a1 = "v12", "v12 offset:512"
            o.append([I(f"ds_read_b64_tr_b16 {vr(w, 2, 'a')}, {a0}"), I(f"ds_read_b64_tr_b16 {vr(w + 2, 2, 'a')}, {a1}")])
        xs = [I(f"ds_read_b128 {xf(j, b)}, {xr[j % 2].at(((j // 2) % 2) * XSL + b * 2048)}") for b in range(9)]
        rdc[j] = (o, xs)
        return o[0] + xs + [y for x in o[1:] for y in x] + [I(f"v_add_u32 v12, s{83 if j % 4 == 3 else 62}, v12")]

    def mfa(j, t, b):
        x = I(f"{MF} {acc(t, b)}, {vr(wf(j, t), 4, 'a')}, {xf(j, b)}, {'0' if j == 0 else acc(t, b)}")
        x.deps = rdc[j][0][t] + [rdc[j][1][b]]
        return x

    pro, paced = pace(groups, 15, OPT["capa"], 56, BG, OPT["nproa"])
    k = split_vm(pro, OPT["nprea"])
    p.extend(pro[:k])
    for i in range(3):
        p(f"v_lshl_or_b32 v{48 + 2 * i}, v{48 + 2 * i}, 16, v{48 + 2 * i}\nv_mov_b32 v{49 + 2 * i}, v{48 + 2 * i}")
        p(f"ds_write_b64 v43, {vr(48 + 2 * i, 2)} offset:{2048 * i}")
    p("WAITVM R0 W0\nWAITLGKM")
    stamp(p, "land", 2)
    p("s_barrier")
    p.extend(reads(0))
    p.extend(pro[k:])
    if not OPT["fastst"]:
        p("WAITLGKM")
    stamp(p, "A0")

    hs = handoff_setup(68, 0x100)
    ci_a, race, pub = counter_init(42)
    wo_addr = P()(f"""
    s_mul_i32 s85, s{sW}, {8 * 1152}
    s_add_u32 s85, s85, 2048
    v_mul_u32_u24 v34, 1152, v32
    v_lshl_add_u32 v34, v38, 4, v34
    v_add_u32 v15, s85, v34
    v_subrev_u32 v16, 896, v15
    v_subrev_u32 v17, 1792, v15
    v_lshrrev_b32 v35, 2, v32
    v_mul_u32_u24 v35, {32 * 1152}, v35
    s_mul_i32 s85, s{sW}, {72 * 1152}
    s_add_u32 s85, s85, {32 * 1152 + 2048}
    v_add3_u32 v18, v34, v35, s85
    v_subrev_u32 v19, 896, v18
    v_subrev_u32 v20, 1792, v18
    """)
    ep_addr = P()(f"""
    v_and_b32 v40, 15, v0
    v_lshrrev_b32 v41, 4, v0
    v_mul_u32_u24 v30, 576, v41
    v_lshl_add_u32 v30, v40, 3, v30
    s_sub_u32 s17, s{sW}, s67
    s_and_b32 s17, s17, 3
    s_mul_i32 s85, s17, 2304
    v_add_u32 v30, s85, v30
    v_add_u32 v31, {EO}, v30
    v_lshrrev_b32 v42, 3, v40
    v_mul_u32_u24 v42, {EO - 64}, v42
    v_add_u32 v32, v30, v42
    s_mul_i32 s85, s{sW}, 9
    s_add_u32 s85, s85, 8
    s_min_u32 s85, s85, 27
    s_sub_u32 s85, s85, s17
    s_mul_i32 s85, s85, 2304
    v_add_u32 v33, s85, v30
    v_add_u32 v34, s85, v31
    v_add_u32 v35, s85, v32
    s_mul_i32 s85, s{sW}, {9 * 576}
    v_lshl_add_u32 v36, v0, 3, s85
    v_add_u32 v37, {EO}, v36
    v_and_b32 v42, 3, v0
    v_lshl_add_u32 v42, v41, 2, v42
    v_bfe_u32 v43, v0, 2, 2
    v_lshl_add_u32 v42, v42, 2, v43
    v_lshl_add_u32 v38, v42, 3, s85
    v_add_u32 v39, {EO}, v38
    s_add_u32 s85, s{sW}, 1
    s_and_b32 s85, s85, 4
    s_lshl_b32 s85, s85, 7
    s_sub_u32 s85, {ZT + 512}, s85
    v_lshl_add_u32 v46, v40, 3, s85
    s_lshl_b32 s85, s{sMT}, 6
    v_add_u32 v42, s85, v0
    v_mov_b32 v43, {hex(f2u(-2.0 ** 100))}
    v_cmp_gt_u32 s[8:9], 8, v42
    v_cmp_gt_u32 s[10:11], 4, v42
    """)
    for i in range(8):
        ep_addr(f"v_cndmask_b32 v{2 + i}, 0, v43, s[{8 + 2 * (i // 4)}:{9 + 2 * (i // 4)}]")

    def epi(t, b, n):
        tmp = 40 + 2 * (n % 3)
        o = []
        if t < 6:
            c = accbase[t] + 4 * b
            base, off = 30, (9 * (t // 2) + 4 * (t % 2)) * 2304
        else:
            c = 48 + 4 * b
            base, off = 33, 0
            if 4 <= b < 8:
                o.append(I(f"ds_write2_b32 v46, a{A6 + 4 * b - 16}, a{A6 + 4 * b} offset0:{32 * (b - 4)} offset1:{32 * (b - 4) + 1}"))
            o += [I(f"v_accvgpr_read_b32 v{c + i}, a{A6 + 4 * b + i}") for i in range(4)]
        o += [I(f"v_cvt_pk_bf16_f32 v{tmp}, v{c}, v{c + 1}"), I(f"v_cvt_pk_bf16_f32 v{tmp + 1}, v{c + 2}, v{c + 3}")]
        o.append(I(f"ds_write_b64 v{base + b // 4}, {vr(tmp, 2)} offset:{off + (128 * (b % 4) + 64 if b < 8 else 0)}"))
        return o

    late = {1: hs[27:46], 2: ci_a, 3: hs[46:], 10: wo_addr,
            12: code_touch2("att", 39) + b2_touch(46), 14: page_setup() + ep_addr}
    for q in range(4):
        wo_addr(f"s_xor_b32 s85, s67, {q}\ns_mul_i32 s85, s85, {144 * 1152}\ns_add_u32 s{70 + q}, s85, s64")
    if OPT["amap"]:
        wo_t = P()(f"""
        s_mul_i32 s85, s68, {162 * 128}
        s_add_u32 s85, s85, 2048
        v_min_u32 v21, 53, v0
        v_lshl_add_u32 v21, v21, 7, s85
        s_movk_i32 s6, {54 * 128}
        s_movk_i32 s7, {108 * 128}
        """)
        wt = [I(f"buffer_load_dword a255, v21, {srd(SWB)}, {o} offen") for o in ("0", "s6", "s7")]
    else:
        wo_t = P()(f"""
        s_mul_i32 s85, s68, {18 * 1152}
        s_add_u32 s85, s85, 2048
        v_min_u32 v22, 53, v0
        v_mul_u32_u24 v21, 43, v22
        v_lshrrev_b32 v21, 7, v21
        v_mul_u32_u24 v21, {1152 - 384}, v21
        v_lshl_add_u32 v21, v22, 7, v21
        v_add_u32 v21, s85, v21
        """)
        wt = [I(f"buffer_load_dword a255, v21, {srd(SWB)}, s64 offen")]
    for x in wt:
        x.writes = set()
    TB = [1, 22, 23, 27]
    tb_addr = P()(f"""
    v_lshrrev_b32 v44, 4, v0
    v_mul_u32_u24 v44, 3072, v44
    v_and_b32 v45, 3, v0
    v_lshl_add_u32 v44, v45, 3, v44
    v_bfe_u32 v45, v0, 2, 2
    v_lshl_add_u32 v44, v45, 7, v44
    v_bfe_u32 v45, v0, 3, 2
    """)
    for j in range(4):
        tb_addr(f"""
        s_add_u32 s85, s67, {j}
        s_and_b32 s40, s85, 3
        v_xor_b32 v{TB[j]}, s40, v45
        s_lshr_b32 s85, s85, 2
        s_lshl_b32 s85, s85, 10
        v_lshl_add_u32 v{TB[j]}, v{TB[j]}, 5, v44
        v_add_u32 v{TB[j]}, s85, v{TB[j]}
        """)
    late[14] += tb_addr
    assert not paced[14]
    tbs = [(t, b) for t in range(7) for b in range(nb[t])]
    for j in range(15):
        mf = [mfa(j, t, b if t % 2 == 0 or not OPT["cha"] else nb[t] - 1 - b) for t, b in tbs]
        sts = [k for k in rho if rho[k] == j]
        tags = " ".join(f"W{k} R{k // 2}" for k in sts)
        if j == 4:
            tags += " FI"
        side = [(4, x) for x in late.get(j, [])]
        hi = []
        if j == 4:
            hi = race(1)[:1]
        if 5 <= j < 5 + OPT["nrace"]:
            hi = race(j - 5)
        if j == 5 + OPT["nrace"]:
            side = [(2, x) for x in pub] + side
        if j == 13:
            side += [(1, x) for x in poll_load("init")]
        if j == 13:
            side += [(4, x) for x in wo_t]
        gemm_step(p, j, mf, tags, [x for k in sts for x in reads(k)], paced[j], side, (), hi)
        if j == 13:
            p.extend(flat(poll_check("att", "init", "init")))
        p("WAITLGKM")
        if j in (0, 1, 3, 8):
            stamp(p, f"A{j + 1}", 2)
    stamp(p, "A15")
    r17 = reads(17)[:-1]
    rest, six = [tb for tb in tbs if tb[0] < 6], [tb for tb in tbs if tb[0] == 6]
    tbs = rest[:22]
    for n, tb in enumerate(rest[22:]):
        tbs += six[n // 3:n // 3 + 1] * (n % 3 == 0) + [tb]
    assert len(tbs) == 61
    N0 = 12
    done = {}
    if OPT["chs"]:
        mf = [mfa(j, t, b) for n, (t, b) in enumerate(tbs[:N0]) for j in ((15, 16), (16, 15))[n & 1]]
        for n, tb in enumerate(tbs):
            mf += [mfa(j, *tb) for j in ((17,) if n < N0 else ((15, 16, 17), (17, 16, 15))[n & 1])]
            done[tb] = len(mf) - 1
    else:
        mf = [mfa(j, t, b) for j in (15, 16) for t, b in tbs[:N0]]
        for n in range(0, len(tbs), 2):
            for j in ((17,) if n < N0 else (15, 16, 17)):
                for tb in tbs[n:n + 2]:
                    mf.append(mfa(j, *tb))
                    done[tb] = len(mf) - 1
    bar_b = I("s_barrier")
    t_rd = [(0, [I("WAITVM W17 R8", cost=1), I("s_barrier")])] + [(1 + min(i, 5 + i // 2), x) for i, x in enumerate(r17)]
    t_rd.append((24, [I("WAITLGKM", cost=1), bar_b]))
    misc = P()(f"""
    s_min_u32 s17, s{sW}, 1
    s_lshl_b32 s17, s17, 31
    s_lshl_b32 s16, s67, 9
    s_add_u32 s16, s16, s{sFL}
    s_add_u32 s16, s16, {O_Z - O_CNT}
    s_mov_b32 s8, 0x11111111
    s_mov_b32 s9, s8
    s_mov_b32 s10, 0x33333333
    s_mov_b32 s11, s10
    s_mov_b32 s12, 0x77777777
    s_mov_b32 s13, s12
    v_mov_b32 v40, 0xffff0000
    v_mov_b32 v41, 0xffff
    v_cndmask_b32 v43, 0, v40, s[8:9]
    v_cndmask_b32 v26, 0, v41, s[10:11]
    v_cndmask_b32 v40, 0, v40, s[12:13]
    v_or_b32 v26, v26, v40
    s_mov_b32 s14, {hex(f2u((18 ** -0.5) * 1.4426950408889634))}
    s_mov_b32 s15, s14
    v_lshrrev_b32 v40, 3, v0
    v_and_b32 v41, 7, v0
    v_lshlrev_b32 v41, 4, v41
    v_lshrrev_b32 v42, 5, v0
    v_lshl_add_u32 v42, v42, 13, v41
    s_lshl_b32 s59, s67, 2
    s_add_u32 s59, s59, s{sW}
    s_lshl_b32 s63, s59, 7
    s_add_u32 s63, s63, s4
    s_add_u32 s63, s63, {O_OT}
    s_lshl_b32 s62, s59, 14
    s_add_u32 s62, s62, s4
    """)
    misc2 = P()(f"""
    v_lshl_add_u32 v10, v40, 10, v41
    v_lshl_add_u32 v11, v40, 11, v42
    v_and_or_b32 v29, v0, 8, v41
    v_lshrrev_b32 v40, 4, v0
    v_lshl_add_u32 v29, v40, 8, v29
    v_lshlrev_b32 v25, 4, v0
    v_and_b32 v{vPST}, 0x3ff, v{vPST}
    v_lshlrev_b32 v13, 3, v0
    v_add_u32 v12, {ZT}, v13
    v_add_u32 v13, s17, v13
    v_mov_b32 v14, v43
    """)
    misc3 = P()
    misc3(f"""
    s_lshl_b32 s6, s{sW}, 11
    s_add_u32 s6, s6, s4
    s_sub_u32 s7, s5, {O_A - O_OT}
    s_and_b32 s85, s67, 1
    s_lshl_b32 s40, s85, 13
    s_sub_u32 s41, 12288, s40
    s_add_u32 s40, s40, 4096
    s_mul_i32 s42, s67, {9 * 8192}
    s_lshl_b32 s85, s85, 12
    s_sub_u32 s42, s42, s85
    s_lshl_b32 s85, s{sW}, 10
    s_add_u32 s42, s42, s85
    s_add_u32 s42, s42, s4
    s_add_u32 s42, s42, {O_A}
    """)
    for q in range(4):
        misc3(f"s_xor_b32 s85, s67, {q}\ns_lshl_b32 s85, s85, 16\ns_add_u32 s{74 + q}, s85, s6")
    misc3[0].after = [misc2[-1], wt[-1]][:1 + bool(OPT["wot"])]
    for x in misc2:
        x.after = [r17[-1]]
    t_ep = [(1, x) for x in misc] + [(19, x) for x in misc2]
    for n, tb in enumerate(tbs):
        for x in epi(*tb, n):
            if x.kind == "dsw":
                x.after = [bar_b]
            if x.reads & mf[done[tb]].writes:
                x.deps = [mf[done[tb]]]
            t_ep.append((max(done[tb] + 4, 25), x))
    t_dma = [(2 + 12 * k, x) for k, x in enumerate(wt * bool(OPT["wot"]))]
    for k, x in enumerate(dma_wo(0, WG[0]) + dma_wo(1, WG[1])):
        x.after = [bar_b]
        t_dma.append((90 + 6 * k, x))
    p.extend(sched2(mf, [t_rd, t_dma, t_ep, [(40, x) for x in misc3]], state=sstate, rlate=2))
    stamp(p, "Aend")
    p("v_mov_b32 v145, 0\nv_mov_b32 v146, 0\nv_mov_b32 v149, 0\nv_mov_b32 v150, 0")
    AR = [int(x) for x in str(OPT["ar"]).split(",")]
    FRA = lambda r, i: vr(144 + 12 * r + 4 * i, 4, "a")
    p("WAITLGKM\ns_barrier")
    stamp(p, "join", 2)

    S = lambda u, z: 48 + 12 * u + 4 * z
    grp = [(e, lq) for e in range(2) for lq in range(9)]

    def kq_rd(gi):
        e, lq = grp[gi]
        kb = 112 + 8 * (gi % 4)
        o = [I(f"ds_read_b64 {vr(kb + 2 * z, 2)}, v{36 + e} offset:{RO + lq * 576 + 32 * z}") for z in range(3)]
        if lq == 4:
            o += [I(f"ds_read_b32 v{144 + 4 * e}, v{36 + e} offset:{lq * 576 + 64}"),
                  I(f"ds_read_b32 v{147 + 4 * e}, v{36 + e} offset:{lq * 576 + 68}")]
        else:
            o.append(I(f"ds_read_b64 {vr(kb + 6, 2)}, v{36 + e} offset:{lq * 576 + 64}"))
        return o

    p(f"KEEP {OPT['keepq']}")
    p.extend(kq_rd(0) + kq_rd(1) + kq_rd(2))
    VA = lambda lq, z, e: 12 * lq + 4 * z + 2 * e
    vrd = [I(f"ds_read_b64_tr_b16 {vr(VA(lq, z, e), 2, 'a')}, v{38 + e} offset:{2 * RO + lq * 576 + 32 * z}")
           for lq in range(9) for z in range(3) for e in range(2)]
    tail_rd = [I("ds_read_b64 v[96:97], v12")] + vrd[:12]
    for gi, (e, lq) in enumerate(grp):
        kb = 112 + 8 * (gi % 4)
        nx = kq_rd(gi + 3) if gi + 3 < 18 else []
        for hh in ([0] if lq < 4 else [0, 1] if lq == 4 else [1]):
            u = 2 * e + hh
            q = vr(144 + 4 * e + 2 * hh, 2) if lq == 4 else vr(kb + 6, 2)
            for z in range(3):
                c = vr(S(u, z), 4) if lq != 4 * hh else ["v[2:5]", "v[6:9]", "0"][z]
                p(f"{MF4} {vr(S(u, z), 4)}, {vr(kb + 2 * z, 2)}, {q}, {c}")
                if nx:
                    p.append(nx.pop(0))
                elif gi >= 15:
                    p.append(tail_rd.pop(0))
        p.extend(nx)
    p.extend(tail_rd)
    stamp(p, "qk", 2)
    p("s_barrier")

    sm = P()
    B = lambda u: S(u, 0)
    U4 = range(4)
    sm("v_mul_f32 v96, 0xbfb8aa3b, v96\nv_mul_f32 v97, 0xbfb8aa3b, v97\nv_exp_f32 v96, v96\nv_exp_f32 v97, v97")
    for r in (1, 2, 3):
        if r == 2:
            sm("v_add_f32 v96, 1.0, v96\nv_add_f32 v97, 1.0, v97\nv_rcp_f32 v98, v96\nv_rcp_f32 v99, v97")
        if r == 3:
            sm("v_sub_f32 v96, 1.0, v98\nv_sub_f32 v97, 1.0, v99")
        for u in U4:
            sm(f"v_cndmask_b32 v{B(u) + 8 + r}, v{B(u) + 8 + r}, v{B(u) + r}, s[{6 + 2 * r}:{7 + 2 * r}]")
    for u in U4:
        sm(f"v_max3_f32 v{B(u)}, v{B(u) + 4}, v{B(u) + 5}, v{B(u) + 6}")
    for k in (7, 9):
        for u in U4:
            sm(f"v_max3_f32 v{B(u)}, v{B(u)}, v{B(u) + k}, v{B(u) + k + 1}")
    for u in U4:
        sm(f"v_max_f32 v{B(u)}, v{B(u)}, v{B(u) + 11}")
    for u in U4:
        sm(f"v_mul_f32 v{B(u)}, s14, v{B(u)}")
    for u in U4:
        for k in (4, 6, 8, 10):
            sm(f"v_pk_fma_f32 {vr(B(u) + k, 2)}, {vr(B(u) + k, 2)}, s[14:15], {vr(B(u), 2)} op_sel_hi:[1,1,0] neg_lo:[0,0,1] neg_hi:[0,0,1]")
    for u in U4:
        for k in range(4, 12):
            sm(f"v_exp_f32 v{B(u) + k}, v{B(u) + k}")
    for u in U4:
        sm(f"v_pk_add_f32 {vr(B(u), 2)}, {vr(B(u) + 4, 2)}, {vr(B(u) + 6, 2)}")
        sm(f"v_pk_add_f32 {vr(B(u) + 2, 2)}, {vr(B(u) + 8, 2)}, {vr(B(u) + 10, 2)}")
    for u in U4:
        sm(f"v_pk_add_f32 {vr(B(u), 2)}, {vr(B(u), 2)}, {vr(B(u) + 2, 2)}")
    for u in U4:
        sm(f"v_add_f32 v{B(u)}, v{B(u)}, v{B(u) + 1}")
    for u in U4:
        sm(f"v_rcp_f32 v{B(u)}, v{B(u)}")
    for u in U4:
        sm(f"v_mul_f32 v{B(u)}, v{B(u)}, v{98 + u // 2}")
    for u in U4:
        for k in (4, 6, 8, 10):
            sm(f"v_pk_mul_f32 {vr(B(u) + k, 2)}, {vr(B(u) + k, 2)}, {vr(B(u), 2)} op_sel_hi:[1,0]")
    for u in U4:
        for k in (4, 8):
            sm(f"v_cvt_pk_bf16_f32 v{B(u) + k}, v{B(u) + k}, v{B(u) + k + 1}")
            sm(f"v_cvt_pk_bf16_f32 v{B(u) + k + 1}, v{B(u) + k + 2}, v{B(u) + k + 3}")
    for u in U4:
        for i in range(2):
            sm(f"v_and_b32 v{B(u) + i}, v{[14, 26][i]}, v{B(u) + 8 + i}")
            sm(f"v_bfi_b32 v{B(u) + 8 + i}, v{[14, 26][i]}, 0, v{B(u) + 8 + i}")
    vmq = [y for k in range(2, OPT["wosm"]) for y in dma_wo(k, WG[k])] + [I(f"buffer_store_dwordx2 v[96:97], v13, {srd(SWS)}, s16 offen sc1")]
    nv = sum(1 for x in vmq if x.kind in VM)
    step = max(1, len(sm) // (nv + 1))
    for i, x in enumerate(sm):
        p.append(x)
        if i % step == step - 1:
            while vmq:
                y = vmq.pop(0)
                p.append(y)
                if y.kind in VM:
                    break
    p.extend(vmq)
    stamp(p, "smax", 2)
    po = lambda e, d: 192 + 16 * e + d if d < 16 else 224 + 2 * e + d - 16
    D = lambda lq, hh, e: 100 + 8 * (lq + hh) + 4 * e
    m4, cv = [], []
    for lq in range(9):
        hhs = [0] if lq < 4 else [0, 1] if lq == 4 else [1]
        for z in range(3):
            for hh in hhs:
                for e in range(2):
                    d = vr(D(lq, hh, e), 4)
                    m4.append(I(f"{MF4} {d}, {vr(VA(lq, z, e), 2, 'a')}, {vr(S(2 * e + hh, z), 2)}, {d if z else '0'}"))
                    m4[-1].deps = [vrd[6 * lq + 2 * z + e]]
    for g in range(5):
        for e in range(2):
            c = []
            for lq in ((2 * g, 2 * g + 1) if g < 4 else (8,)):
                lo, hi_ = D(lq, int(lq > 4), e), D(lq, int(lq >= 4), e)
                c += [I(f"v_cvt_pk_bf16_f32 v{po(e, 2 * lq)}, v{lo}, v{lo + 1}"), I(f"v_cvt_pk_bf16_f32 v{po(e, 2 * lq + 1)}, v{hi_ + 2}, v{hi_ + 3}")]
            w = [I(f"buffer_store_dwordx4 {vr(po(e, 4 * g), 4)}, v10, {srd(SWS)}, s62 offen offset:{g * 256 + e * 128} sc1", tag="OS")] if g < 4 else \
                [I(f"buffer_store_dwordx4 v[224:227], v11, {srd(SWS)}, s63 offen sc1", tag="OS")] * e
            cv.append((c, w))
    for x, y in zip(m4[:42], vrd[12:]):
        p.extend([x, y])
    rest = m4[42:]
    nbar = [0]
    for c, w in cv:
        for x in c:
            if rest and x is not c[0]:
                p.append(rest.pop(0))
            p.append(x)
        if rest:
            p.append(rest.pop(0))
        if not rest and not nbar[0]:
            p("s_barrier")
            nbar[0] = 1
        p.extend(w)
    assert not rest
    stamp(p, "core")
    if OPT["stamp"]:
        p("v_mov_b32 v30, v47")
        cur["vst"] = 30
    if AR[0] >= 0:
        p.extend(flat(poll_load(AR[0], sP1)))
    for k in range(OPT["wosm"], 8 + OPT["npv"]):
        p.extend(dma_wo(k, WG[k]))
    for j in range(4):
        p(f"v_add_u32 v{160 + 2 * j}, 0x10000, v{TB[j]}\nv_add_u32 v{161 + 2 * j}, 0x20000, v{TB[j]}")
    p("s_waitcnt lgkmcnt(0)\nWAITVM OS\ns_barrier")
    p.extend(flat(signal(CO)))
    stamp(p, "osig")
    d89 = [y for k in range(8 + OPT["npv"], 13) for y in dma_wo(k, WG[k])]
    f0 = [y for r in range(AR[0] + 1) for y in f_loads(r, FRA, 66)]
    if AR[0] >= 0:
        p.extend(flat(poll_check("att", AR[0], "F", sP1, False)))
    if not OPT["early"]:
        p.extend(flat(poll_load(CO)) + d89)
        if AR[0] >= 0:
            p("s_barrier")
            p.extend(f0)
        p.extend(flat(poll_check("att", CO, "A")))
        p("s_barrier")
        stamp(p, "ochk")
    of = lambda k, bb: 8 * k + 4 * bb
    old, oq = {}, []
    for k in range(16):
        oq.append(I(f"s_add_u32 s59, s{74 + k // 4}, {(k % 4) * 16384}"))
        for bb in range(2):
            old[k, bb] = [I(f"buffer_load_dwordx4 {vr(of(k, bb), 4, 'a')}, v25, {srd(SWS)}, s59 offen offset:{bb * 1024} sc1")]
            oq += old[k, bb]
    for k in (16, 17):
        for bb in range(2):
            old[k, bb] = [I(f"buffer_load_dwordx2 {vr(of(k, bb) + 2 * h, 2, 'a')}, v29, {srd(SWS)}, s7 offen offset:{bb * 2048 + (k - 16) * 1024 + h * 128} sc1") for h in range(2)]
            oq += old[k, bb]
    NPRE = split_vm(oq, OPT["npo"])
    p.extend(oq[:NPRE])
    if OPT["early"]:
        assert OPT["npo"] == 8
        p.extend(d89 * (not OPT["d89late"]) + flat(poll_load(CO)))
    trW = [Addr([TB[j], 160 + 2 * j, 161 + 2 * j]) for j in range(4)]
    bar = {k: [y for kk in (k + 11, k + 12) if kk < 18 for y in dma_wo(kk, wslot[kk - 13])] for k in range(2, 18, 2)}
    bar[8] += b2_dma(31, wslot[5]) + [g_load("att")]
    RING, DIST = OPT["ring"], OPT["dist"]
    rdc = {}

    KT = 18 - OPT["ktail"]
    order = [(k, j) for k in range(KT) for j in range(9)] + [(k, j) for j in range(9) for k in range(KT, 18)]
    cover = lambda k: min((k - 1) // 2 * 2, (KT - 1) // 2 * 2)
    if OPT["chp"]:
        KT = 14 if OPT["ktail"] > 2 else 16
        order = [(k + h, j) for k in range(0, KT, 2) for j in range(9) for h in range(2)] + [(k, j) for j in range(9) for k in range(KT, 18)]
        cover = lambda k: min(k // 2 * 2, KT) - 2

    def rd(fi):
        if fi not in rdc:
            k, j = order[fi]
            w = 176 + 4 * (fi % RING)
            off = wslot[k] + (j // 4) * 1024
            rdc[fi] = [I(f"ds_read_b64_tr_b16 {vr(w, 2)}, {trW[j % 4].at(off)}"), I(f"ds_read_b64_tr_b16 {vr(w + 2, 2)}, {trW[j % 4].at(off + 512)}", tag=f"w{fi}")]
        return rdc[fi]

    for fi in range(DIST):
        p.extend(rd(fi))
    mf, s_bar, s_rd, s_o, s_ep = [], [], [], [], []
    s_dma, s_f, s_w = [(0, x) for x in d89 * OPT["d89late"]], [], []
    c0, c1, c2, c3 = end_consts("att", wslot[5])
    p.extend(b2_addr(31, 2) + end_setup("att") + c0)
    hooks = []
    g = 0
    if OPT["early"]:
        g = OPT["cogap"]
        cob = I("s_barrier")
        s_bar += [(g - 1, y) for y in poll_check("att", CO, "A")] + [(g, cob, g)]
        if OPT["stamp"]:
            s_bar.append((g, stamp_ins("ochk"), g))
        for x in oq[NPRE:] + f0:
            x.after = [cob]
        g += 1
        s_f += [(g, x) for x in f0]
    n = 0
    for x in oq[NPRE:]:
        s_o.append((g, x))
        n += x.kind in VM
        g += (4 if n <= 6 else OPT["osep"]) if x.kind in VM else 0
    rounds = {6: (AR[0] + 1, AR[1]), 12: (AR[1] + 1, AR[2])}
    bars = {}
    for fi in range(162):
        k, j = order[fi]
        g0 = len(mf)
        for bb in range(2):
            c = 64 + 8 * j + 4 * bb
            mf.append(I(f"{MF} {vr(c, 4)}, {vr(176 + 4 * (fi % RING), 4)}, {vr(of(k, bb), 4, 'a')}, {vr(c, 4) if k else '0'}"))
            mf[-1].deps = rd(fi) + old[k, bb]
        lastw = mf[-2:]
        if OPT["chp"] and fi % 2:
            a0, a1, b0, b1 = mf[-4:]
            mf[-4:] = [a0, b0, a1, b1] if k == 1 else [a0, b0, b1, a1]
            lastw = [b0, mf[-1]]
        if j == 1 and k in bar and k < KT:
            fl = []
            if k in rounds and rounds[k][1] >= rounds[k][0]:
                hooks += [(g0 - OPT["pdist"], y, g0 - 20) for y in poll_load(rounds[k][1])]
                s_bar += [(g0 - 1, y) for y in poll_check("att", rounds[k][1], "F")]
                fl = [y for r in range(rounds[k][0], rounds[k][1] + 1) for y in f_loads(r, FRA, 66)]
            bars[k] = I("s_barrier")
            s_bar.append((g0, [I("WAITVM " + " ".join(f"O{kk}" for kk in range(18) if cover(kk) == k), cost=1), bars[k]], g0 + 1))
            for x in bar[k] + fl:
                x.after = [bars[k]]
                (s_f if x in fl else s_dma).append((g0 + 2, x))
        if fi + DIST < 162:
            r = rd(fi + DIST)
            kk = order[fi + DIST][0]
            if cover(kk) >= 2:
                r[0].after = [bars[cover(kk)]]
            s_rd += [(g0, r[0], g0 + 3), (g0 + 1, r[1], g0 + 4)]
        if fi % 2 == 1 and fi + 2 < 162:
            s_w.append((g0, I(f"WAITLG w{fi + 2}", cost=1), g0 + 1))
        if k == 17:
            t = 32 + 4 * (j % 4)
            for i in range(4):
                s_ep.append((g0 + 5, I(f"v_cvt_pk_bf16_f32 v{t + i}, v{64 + 8 * j + 2 * i}, v{65 + 8 * j + 2 * i}")))
                s_ep[-1][1].deps = lastw
            s_ep.append((g0 + 5, I(f"buffer_store_dwordx4 {vr(t, 4)}, v{vPST}, {srd(SWS)}, s42 offen sc1", tag="PA")))
            if j < 8:
                s_ep.append((g0 + 5, I(f"s_add_u32 s42, s42, s{40 + j % 2}")))
        if j == 8 and k in (5, 11) and OPT["stamp"] >= 2:
            s_bar.append((g0 + 1, stamp_ins(f"k{k + 1}", 2)))
    p.extend(sched2(mf, [s_bar, s_w, s_rd, s_o, s_dma, sorted(hooks, key=lambda h: h[0]), s_ep, s_f]))
    p("KEEP 2")
    stamp(p, "Bend")
    end_phase(p, "att", FRA, AR[2] + 1, AR[2] + 1, OPT["esta"], "PA", CA, c1 + c3 + c2)
    return p


def head():
    p = P()
    p("s_cmp_ge_u32 s2, 256\ns_cbranch_scc1 L_exit")
    p("s_load_dwordx16 s[4:19], s[0:1], 0\ns_load_dwordx8 s[20:27], s[0:1], 64")
    if OPT["stamp"]:
        p("s_memrealtime s[86:87]\ns_memtime s[88:89]")
    if OPT["etouch"]:
        p("s_getpc_b64 s[82:83]\nv_min_u32 v1, 19, v0\nv_lshlrev_b32 v1, 7, v1\nglobal_load_dword a255, v1, s[82:83]")
        p[-1].writes = set()
    ms = [int(x) for x in str(OPT["rg"]).split(",")][::-1]
    rot = bit_of(ms[0], sG)
    for m in ms[1:]:
        rot += "\n" + bit_of(m, 59) + f"\ns_lshl1_add_u32 s{sG}, s{sG}, s59"
    p(f"""
    v_lshrrev_b32 v1, 6, v0
    v_and_b32 v0, 63, v0
    v_readfirstlane_b32 s{sW}, v1
    s_bfe_u32 s59, s2, 0x10002
    s_lshl_b32 s59, s59, 3
    s_bfe_u32 s{sMT}, s2, 0x30003
    s_add_u32 s{sMT}, s{sMT}, s59
    @ROT
    s_and_b32 s59, s2, 3
    s_lshr_b32 s60, s2, 6
    {"s_cbranch_scc1 L_ffn" if OPT["attfirst"] else "s_cbranch_scc0 L_att"}
    """.replace("@ROT", rot))
    return p


def desc(name, nv, acc):
    return f""".amdhsa_kernel {name}
  .amdhsa_next_free_vgpr {nv}
  .amdhsa_next_free_sgpr 102
  .amdhsa_accum_offset {acc}
  .amdhsa_group_segment_fixed_size 0
  .amdhsa_kernarg_size 96
  .amdhsa_user_sgpr_count 2
  .amdhsa_user_sgpr_kernarg_segment_ptr 1
  .amdhsa_system_sgpr_workgroup_id_x 1
.end_amdhsa_kernel"""


def main():
    fin = Finalizer(OPT["age"])
    fin.hoist = bool(OPT["s2"])
    hd = head()
    parts = {}
    for role, fn in (("att", role_att), ("ffn", role_ffn)):
        code = fin.run(hd + fn())
        i0 = next(i for i, x in enumerate(code) if x.text == f"L_{role}:")
        i1 = next(i for i, x in enumerate(code) if x.text == f"L_{role}_body:")
        if OPT["align"] == 2:
            body, npad, nb, st = layout_dp(code[i1:], f"L_{role}_pad" if OPT["warm"] else None, 4, f"L_{role}_ret")
        else:
            body, npad, nb, st = layout(code[i1:], 0, f"L_{role}_pad" if OPT["warm"] else None, 4, f"L_{role}_ret", OPT["align"])
        pro = [I(x.text.replace(f"@LASTPAGE_{role}", str((nb - 1) // 4096))) for x in code[i0:i1]]
        i2 = next(i for i, x in enumerate(pro) if x.text == f"L_{role}_late:")
        i3 = next(i for i, x in enumerate(pro) if x.text == f"L_{role}_mid:") if OPT["split3"] else i2
        parts[role] = (code[:i0], pro[:i3], body, pro[i3:i2], pro[i2:])
        sys.stderr.write(f"{role}: {len(code)} ins {fin.stats} body {nb} B pads {npad} {st} prologue {sum(inst_sizes(pro[:i2]))}+{sum(inst_sizes(pro[i2:]))} B\n")
    ref = open(f"cdna_kernels/{NAME}.s.ref").read().split("\n")
    hdr = [l for l in ref if l.startswith(";") and "@launch" not in l]
    if OPT["stamp"]:
        hdr += [f"; stamps {r} " + " ".join(n) for r, n in stnames.items()]
    rr = ("att", "ffn") if OPT["attfirst"] else ("ffn", "att")
    order = [(r, k) for r in rr for k in (1, 3, 4)] if OPT["lin"] else [(r, k) for k in (1, 3, 4) for r in rr]
    o = hdr + ["; @launch grid=(256,1,1) block=(256,1,1) lds=163840",
               '.amdgcn_target "amdgcn-amd-amdhsa--gfx950"', ".text",
               f".globl {NAME}_kernel", ".p2align 12", ".p2align 8", f".type {NAME}_kernel,@function", f"{NAME}_kernel:",
               text_of(parts["ffn"][0]), *[text_of(parts[r][k]) for r, k in order], "L_exit:", "    s_endpgm",
               ".p2align 12", text_of(parts["ffn"][2]), ".p2align 12", text_of(parts["att"][2]), ".p2align 12",
               '.section .rodata,"a"', ".p2align 6", desc(f"{NAME}_kernel", 512, 256)]
    txt = "\n".join(o)
    if OPT["dflav"]:
        import re
        txt = re.sub(r"(s\[(?:28:31|32:35)\].*) lds$", lambda m: m.group(1) + " " + OPT["dflav"].replace("+", " ") + " lds", txt, flags=re.M)
    print(txt)


main()
```

```python
import sys
import struct
from asmlib import *

NAME = "gated_mix__sliding_local_dilated__dense_activation_squared_relu__prompt"
OPT = dict(stamp=0, warm=1, touch=0, align=2, ctouch=1, tfirst=2, slack=9, look=6, sig=3, pdist=44,
           bg0=20, bg1=8, cap=11, capa=13, npro=4, nproa=3, tdist=4, sleep=0, ar="-1,1,3", stg=14, stga=6, verbose=0, dflav='', bgn=0, bgv=24, rotg=3, w1pre=0, nost=0, stflav='sc1', nochk=0, nosig=0, age=10, ct2=1, vsig=0, pol='probe', pg0=14, pg1=33, pgs=3, nrace=4, prb=0x1a0000, t8=0, b0=104, dbl='1,12', udist=3, s2=1, capd=8, dbla=11, est='A10,F7,F8', esta='F5,F6,A10,F7,F8', achk=-1, ain='25:3', alag=2, b2t=1, wot=13, bperm=1, lastpm=3, rg='5,96', xb=8, xa=16, split3=1, npre=4, nprea=3, fastst=1, attfirst=1, amap=0, rga='', osep=6, npo=8, early=1, cogap=14, ring=8, dist=6, wosm=8, d89late=1, ktail=2, npv=3, last26='F6', sig7=1, stg7=5, pd26=30, etouch=0, wlate=0, lin=0, b8=8, ulate=0, rlate=4, t01=0, b1=-20, keepq=4, u4t=0, slow=0, wgap=3, stg1=22, rpre=6, lazy=1, xvol=0, f6in=0, npost=30, chb=1, cha=1, chs=1, chp=1, bo26=16, outf='', outf4='', dpad=0, dp0=0, dp1=99, dstag=0, cap0=15, capa0=18, nfill=3, early_setup=1, hops='2,3', es='0,1,4', esa=0, hopsa='-1,-1', noout=0, tag8=0, sigu='', chku='', stg6=14, clr=140, f8late=0, cou=22, f8latea=1)
for a in sys.argv[1:]:
    k, v = a.split("=")
    assert k in OPT, k
    OPT[k] = int(v) if v.lstrip("-").isdigit() else v

PG = 0x200000
SRCS = 32768
O_CNT, O_Z, O_PRB = 0x180000, 0x190000, OPT['prb']
O_OM, O_OT, O_A = 0, 0x40000, 0x80000
CO, CA = 9, 10
FST = 256
WS_STAMP = 0x9000000
WS_SIZE = 0xa000000
MF = "v_mfma_f32_16x16x32_bf16"
MF4 = "v_mfma_f32_4x4x4_16b_bf16"
OOB = "0x80000000"

SX, SWA, SWB, SSM, SWS, SOUT, SB2 = 28, 32, 36, 40, 44, 48, 52
SDBG = 4
sW, sMT, sSRC = 56, 57, 58
sCH = 70
sFL, sMB, sSPIN, sMASK = 79, 80, 81, 84
sPG = 0
sG, sWB = 90, 91
vL16, vPST, vFW, vCON = 23, 24, 26, 28
srd = lambda n: f"s[{n}:{n + 3}]"
f2u = lambda x: struct.unpack("<I", struct.pack("<f", x))[0]
VM = ("dma", "vload", "vstore")


class P(list):
    def __call__(self, text, tag=None, cost=None):
        for t in text.split("\n"):
            t = t.strip()
            if t:
                self.append(I(t, tag, cost))
        return self


def flat(items):
    o = []
    for it in items:
        o.extend(it if isinstance(it, list) else [it])
    return o


def srd_const(p, n, size):
    p(f"s_mov_b32 s{n + 2}, {size}\ns_mov_b32 s{n + 3}, 0x20000")


def srd_ptr(p, n, ptr, bias=0):
    if bias:
        p(f"s_sub_u32 s{n}, s{ptr}, {bias}\ns_subb_u32 s{n + 1}, s{ptr + 1}, 0")
    else:
        p(f"s_mov_b64 s[{n}:{n + 1}], s[{ptr}:{ptr + 1}]")


class Addr:
    def __init__(self, regs):
        self.regs = regs

    def at(self, off):
        return f"v{self.regs[off >> 16]} offset:{off & 0xffff}"

    def wr(self, off, data):
        return f"v{self.regs[off >> 16]}, {data} offset:{off & 0xffff}"


nstamp = [0]
stnames = {}
cur = {"role": None, "vst": None}


def stamp_ins(name, lvl=1):
    if not (OPT["stamp"] and (OPT["stamp"] >= lvl or name == "end")):
        return []
    n = nstamp[0]
    nstamp[0] += 1
    assert n < 31
    stnames.setdefault(cur["role"], []).append(name)
    v = cur["vst"]
    return [I("s_memrealtime s[86:87]"), I("s_memtime s[88:89]"), I("s_waitcnt lgkmcnt(0)"),
            I(f"v_writelane_b32 v{v}, s86, {2 * n}"), I(f"v_writelane_b32 v{v}, s88, {2 * n + 1}")]


def stamp(p, name, lvl=1):
    p.extend(stamp_ins(name, lvl))


def stamp_begin(p, role, v):
    cur["role"], cur["vst"] = role, v
    nstamp[0] = 1
    stnames[role] = ["start"]
    if OPT["stamp"]:
        p(f"v_mov_b32 v{v}, 0\ns_waitcnt lgkmcnt(0)\nv_writelane_b32 v{v}, s86, 0\nv_writelane_b32 v{v}, s88, 1")


def stamp_out(p):
    if OPT["stamp"]:
        p("s_waitcnt vmcnt(0)")
        stamp(p, "end")
        p(f"s_lshl_b32 s59, s2, 2\ns_add_u32 s59, s59, s{sW}\ns_lshl_b32 s59, s59, 8\ns_add_u32 s59, s59, {WS_STAMP}")
        p(f"v_lshlrev_b32 v1, 2, v0\nv_writelane_b32 v{cur['vst']}, s{sSPIN}, 63")
        p(f"buffer_store_dword v{cur['vst']}, v1, {srd(SWS)}, s59 offen")


stubs = {}
sCNT, sDB, sINC, sP0, sP1 = 92, 94, 96, 97, 98
sNEED = {"F": "s99", "A": "s100", "FA": "s101", "init": "15"}
PGS = [0, 1, 61, 4]


nskip = [0]
lastpoll, lastchk = {}, {}


def wave0(items):
    nskip[0] += 1
    return [I(f"s_cbranch_vccz L_skip{nskip[0]}")] + items + [I(f"L_skip{nskip[0]}:")]


def poll_load(t, reg=sP0, bare=False):
    if t == "init" and not bare:
        x = I(f"s_load_dword s{reg}, s[{sDB}:{sDB + 1}], 0x0")
        x.kind = "salu"
        lastpoll[reg] = (t, x)
        lastchk.clear()
        return [[x]]
    base, off = (sDB, 0) if t == "init" else (sCNT, t * FST)
    o = [I(f"s_mov_b32 s{reg}, 0", cost=0), I(f"s_atomic_add s{reg}, s[{base}:{base + 1}], {hex(off)} glc")]
    if not bare:
        o[0].after = lastchk.get(reg, [])
        lastpoll[reg] = (t, o[1])
    return [o if bare else wave0(o)]


def poll_check(role, t, what, reg=sP0, wait=True):
    st = stubs.setdefault(role, P())
    n = sum(1 for x in st if x.kind == "label")
    lab = f"L_{role}_spin{n}"
    st(f"{lab}:")
    if OPT["sleep"]:
        st(f"s_sleep {OPT['sleep']}")
    if t == "init":
        tmp = {"ffn": 39, "att": 46}[role]
        st(f"v_mov_b32 v{tmp}, 0\nglobal_load_dword v{tmp}, v{tmp}, s[{sDB}:{sDB + 1}] sc1\ns_waitcnt vmcnt(0)\nv_readfirstlane_b32 s{reg}, v{tmp}")
    else:
        st.extend(flat(poll_load(t, reg, True)))
    st(f"""
    s_sub_u32 s{sSPIN}, s{sSPIN}, 1
    s_waitcnt lgkmcnt(0)
    s_cmp_lt_i32 s{sSPIN}, 0
    s_cbranch_scc1 {lab}r
    s_andn2_b32 s89, {sNEED[what]}, s{reg}
    s_cbranch_scc1 {lab}
    s_branch {lab}r
    """)
    c = I(f"s_andn2_b32 s89, {sNEED[what]}, s{reg}")
    assert lastpoll[reg][0] == t
    c.after = [lastpoll.pop(reg)[1]]
    lastchk[reg] = [c]
    return [[I("s_waitcnt lgkmcnt(0)")][:wait] + [c, I(f"s_cbranch_scc1 {lab}"), I(f"{lab}r:")]]


def signal(t):
    if OPT["vsig"]:
        return vsignal(t)
    return [wave0([I(f"s_atomic_add s{sINC}, s[{sCNT}:{sCNT + 1}], {hex(t * FST)}")])]


def vsignal(t):
    return [I(f"buffer_atomic_add v{vFD}, v{vFW}, {srd(SWS)}, s{sFL} offen offset:{t * FST}")]


def handoff_setup(base_sgpr, inc):
    o = [I(f"s_and_b32 s85, s{sMT}, 7"), I("s_lshl_b32 s85, s85, 7")]
    for t in range(9):
        o.append(I(f"s_add_u32 s{sCH + t}, s85, s{base_sgpr}"))
        if t < 8:
            o.append(I("s_add_u32 s85, s85, 128"))
            o.append([I("s_cmp_eq_u32 s85, 1152"), I("s_cselect_b32 s85, 0, s85")])
    XV = ""
    if OPT["xvol"]:
        XV = f"""v_lshrrev_b32 v{vFW}, 4, v0
        v_subrev_u32 v{vFW}, {OPT["xvol"]}, v{vFW}
        v_and_b32 v{vFW}, 0x80000000, v{vFW}
        v_or_b32 v{vCON}, v{vCON}, v{vFW}
        s_and_b32 s85, s{sSRC}, 3
        s_sub_u32 s85, s85, {OPT["xvol"]}
        s_and_b32 s85, s85, 0x80000000
        v_or_b32 v{vPST}, s85, v{vPST}"""
    o += P()(f"""
    s_sub_u32 s85, 0, s26
    s_and_b32 s85, s85, {PG - 1}
    s_lshl_b32 s{sMB}, s{sMT}, 23
    s_add_u32 s{sMB}, s{sMB}, s85
    s_mov_b32 s{sSPIN}, 0x10000
    s_lshl_b32 s3, s{sMT}, 2
    s_lshr_b32 s{sMASK}, 1, s{sW}
    s_lshl_b32 {sNEED['F']}, s{sMASK}, 4
    s_lshl_b32 {sNEED['A']}, s{sMASK}, 10
    s_mul_i32 {sNEED['FA']}, s{sMASK}, 0x410
    s_mov_b32 s{sINC}, {inc}
    v_bfe_u32 v{vPST}, v0, 2, 2
    v_lshlrev_b32 v{vPST}, 8, v{vPST}
    v_lshrrev_b32 v{vCON}, 4, v0
    v_lshl_add_u32 v{vPST}, v{vCON}, 6, v{vPST}
    v_and_b32 v{vFW}, 3, v0
    v_lshl_add_u32 v{vPST}, v{vFW}, 4, v{vPST}
    v_and_b32 v{vFW}, 15, v0
    v_mul_u32_u24 v{vCON}, {SRCS}, v{vCON}
    v_lshl_add_u32 v{vCON}, v{vFW}, 4, v{vCON}
    s_lshl_b32 s85, s{sSRC}, 8
    v_add_u32 v{vCON}, s85, v{vCON}
    s_mul_i32 s85, s{sSRC}, {SRCS}
    v_add_u32 v{vPST}, s85, v{vPST}
    {XV}
    s_mov_b32 vcc_lo, s{sMASK}
    s_mov_b32 vcc_hi, 0
    """)
    o += [[I(f"s_add_u32 s{sDB}, s24, s3"), I(f"s_addc_u32 s{sDB + 1}, s25, 0")]]
    return o


def page_setup():
    o = P()(f"""
    s_lshr_b32 s85, s{sW}, 1
    s_mul_i32 s85, s85, {16384 - 8192}
    s_lshl_b32 s3, s{sW}, 12
    s_add_u32 s3, s3, s85
    s_add_u32 s3, s3, s{sMB}
    """)
    for k in range(4):
        if OPT["pol"] == "probe":
            o(f"s_bfe_u32 s85, s{sP0}, {hex(0x10004 + k)}")
        elif OPT["pol"] == "inv":
            o(f"s_bfe_u32 s85, s{sP0}, {hex(0x10004 + k)}\ns_xor_b32 s85, s85, 1")
        elif OPT["pol"] in ("fix0", "fix1"):
            o(f"s_lshr_b32 s85, s{sMT}, 3\ns_xor_b32 s85, s85, {(k ^ int(OPT['pol'][3])) & 1}")
        else:
            o(f"s_and_b32 s85, s{sMT}, 1")
        o("s_lshl_b32 s85, s85, 13")
        if k == 0:
            o(f"s_add_u32 s{sFL}, s85, s{sMB}\ns_add_u32 s{sFL}, s{sFL}, {O_CNT}")
        if k == 3:
            o(f"s_add_u32 s4, s85, s{sMB}\ns_add_u32 s4, s4, {k * PG}")
        o(f"s_add_u32 s85, s85, s3")
        o(f"s_add_u32 s{PGS[k] + (k == 3)}, s85, {k * PG + (O_A if k == 3 else 0)}")
    return list(o) + [[I(f"s_add_u32 s{sCNT}, s26, s{sFL}"), I(f"s_addc_u32 s{sCNT + 1}, s27, 0")]]


def counter_init(tmp):
    a = P()(f"""
    s_min_u32 s85, s{sW}, 1
    s_lshl_b32 s85, s85, 31
    v_and_b32 v{tmp}, 15, v0
    v_lshlrev_b32 v{tmp}, 8, v{tmp}
    v_bfe_u32 v{tmp + 1}, v0, 4, 1
    v_lshl_add_u32 v{tmp}, v{tmp + 1}, 13, v{tmp}
    v_lshrrev_b32 v{tmp + 1}, 5, v0
    v_or_b32 v{tmp + 1}, s67, v{tmp + 1}
    v_min_u32 v{tmp + 1}, 1, v{tmp + 1}
    v_lshl_or_b32 v{tmp}, v{tmp + 1}, 31, v{tmp}
    v_or_b32 v{tmp}, s85, v{tmp}
    v_lshrrev_b32 v{tmp + 1}, 3, v0
    v_lshlrev_b32 v{tmp + 1}, 12, v{tmp + 1}
    v_and_b32 v{tmp + 2}, 7, v0
    v_lshl_add_u32 v{tmp + 1}, v{tmp + 2}, 3, v{tmp + 1}
    v_or_b32 v{tmp + 1}, s85, v{tmp + 1}
    v_mov_b32 v{tmp + 2}, 4
    v_mov_b32 v{tmp + 3}, 4
    s_add_u32 s85, s{sMB}, {O_CNT}
    """)
    a(f"buffer_store_dword v{tmp + 2}, v{tmp}, {srd(SWS)}, s85 offen sc1", tag="FI")
    a(f"s_lshl_b32 s85, s67, 21\ns_add_u32 s85, s85, s{sMB}\ns_add_u32 s85, s85, {O_PRB}")
    a(f"buffer_store_dwordx2 {vr(tmp + 2, 2)}, v{tmp + 1}, {srd(SWS)}, s85 offen sc1", tag="FI")
    a = list(a) + [[I("s_add_u32 s16, s26, s85"), I("s_addc_u32 s17, s27, 0")], I("s_mov_b32 s14, 0")]

    def race(n):
        blk = [0x0, 0x1000, 0x4000, 0x5000][n % 4]
        ld = [I(f"s_load_dword s{8 + c}, s[16:17], {hex(blk + 0x2000 * c)} glc", cost=0) for c in ((0, 1) if n % 2 == 0 else (1, 0))]
        for x in ld:
            x.kind = "salu"
        o = [(2, [I("s_mov_b64 s[8:9], 0")] + wave0(ld))]
        smp = ["s_add_u32 s14, s14, s8", "s_sub_u32 s14, s14, s9"]
        for g in range(OPT["pg0"], OPT["pg1"], OPT["pgs"]):
            o.append((2 + g, [I(t) for t in (smp if n % 2 == 0 else smp[::-1])]))
        return o

    pub = [[I("s_cmp_lt_i32 s14, 0"), I("s_cselect_b32 s15, 17, 1")], I("s_lshl_b32 s15, s15, s67"),
           wave0([I(f"s_atomic_or s15, s[{sDB}:{sDB + 1}], 0x0")])]
    if OPT["stamp"]:
        pub += [[I("s_ashr_i32 s15, s14, 2"), I("s_and_b32 s15, s15, 0xff")], [I("s_lshl_b32 s14, s67, 3"), I("s_lshl_b32 s15, s15, s14")],
                wave0([I(f"s_atomic_or s15, s[{sDB}:{sDB + 1}], 0x40")])]
    return a, race, pub


def touch(vreg, sr, base, off, force=False):
    a = I(f"s_add_u32 s60, s{base}, {off}")
    x = I(f"buffer_load_dword a255, v{vreg}, {srd(sr)}, s60 offen", tag="T")
    x.writes = set()
    return [a, x] if OPT["touch"] or force else []


def x_touch_addr(p, reg, tmp):
    p(f"""
    s_lshr_b32 s59, s2, 6
    s_lshl_b32 s59, s59, 2
    s_add_u32 s59, s59, s{sW}
    s_mul_i32 s59, s59, {8 * 1152}
    v_and_b32 v{tmp}, 7, v0
    v_mul_u32_u24 v{reg}, 1152, v{tmp}
    v_bfe_u32 v{tmp}, v0, 3, 1
    v_lshl_add_u32 v{reg}, v{tmp}, 7, v{reg}
    v_lshrrev_b32 v{tmp}, 4, v0
    v_min_u32 v{tmp}, 1, v{tmp}
    v_lshlrev_b32 v{tmp}, 31, v{tmp}
    v_add3_u32 v{reg}, v{reg}, v{tmp}, s59
    """)


def code_touch(p, role, tmp):
    p(f"s_bfe_u32 s68, s2, 0x30003\ns_lshl_b32 s68, s68, 2\ns_add_u32 s68, s68, s{sW}")
    if OPT["ctouch"]:
        p(f"""
        s_getpc_b64 s[82:83]
        L_{role}_pc:
        s_add_u32 s82, s82, L_{role}_body-L_{role}_pc
        s_addc_u32 s83, s83, 0
        s_lshl_b32 s59, s68, 7
        v_min_u32 v{tmp}, @LASTPAGE_{role}, v0
        v_lshl_add_u32 v{tmp}, v{tmp}, 12, s59
        """)
        x = I(f"global_load_dword a255, v{tmp}, s[82:83]")
        x.writes = set()
        p.append(x)


def code_touch2(role, tmp):
    if not OPT["ct2"]:
        return []
    x = I(f"global_load_dword a255, v{tmp}, s[10:11]", tag="T")
    x.writes = set()
    return [[I("s_getpc_b64 s[10:11]"), I(f"L_{role}_pc2:"), I(f"s_sub_u32 s10, s10, L_{role}_pc2-L_{role}_body"), I("s_subb_u32 s11, s11, 0")], x]


ES = [int(x) for x in str(OPT["es"]).split(",")]
HOPS = {r: [int(x) for x in str(OPT[k]).split(",")] for r, k in (("ffn", "hops"), ("att", "hopsa"))}


def warm(p, role, j=-1):
    for h in range(2):
        if OPT["warm"] and HOPS[role][h] == j:
            p("s_mov_b64 exec, 0")
            for w in range(3):
                p(f"s_cmp_eq_u32 s{sW}, {w}\ns_cbranch_scc1 @HOP{1 + 4 * h + w}")
            p(f"s_branch @HOP{4 + 4 * h}\nL_{role}_ret{h}:\ns_mov_b64 exec, -1")


def bit_of(mask, reg):
    if mask == 0:
        return f"s_mov_b32 s{reg}, 0"
    if mask & (mask - 1) == 0:
        return f"s_bfe_u32 s{reg}, s2, {hex(0x10000 + mask.bit_length() - 1)}"
    return f"s_and_b32 s{reg}, s2, {mask}\ns_bcnt1_i32_b32 s{reg}, s{reg}\ns_and_b32 s{reg}, s{reg}, 1"


def split_vm(items, n):
    k = 0
    while n > 0 and k < len(items):
        n -= items[k].kind in VM
        k += 1
    return k


B8 = OPT["b8"]
blk = lambda J: J if J < B8 else J - 1


def x_soff(J, base):
    if J == B8:
        return [I(f"s_add_u32 s60, {base}, 1024")]
    o = [I(f"s_xor_b32 s60, s{sG}, {blk(J)}"), I("s_lshl_b32 s60, s60, 7")]
    return o + [I(f"s_add_u32 s60, s60, {base}")] * (base != "0")


def w_block(j, base, pitch):
    if j % 2:
        return []
    if j // 2 == B8:
        return [I(f"s_add_u32 s{sWB}, s{base}, {512 * pitch}")]
    return [I(f"s_xor_b32 s{sWB}, s{sG}, {blk(j // 2)}"), I(f"s_mul_i32 s{sWB}, s{sWB}, {64 * pitch}"), I(f"s_add_u32 s{sWB}, s{sWB}, s{base}")]


def pace(groups, nsteps, cap, ngap, bgap, npro):
    q = [(e, x) for e, g in groups for x in g]
    res = []
    for j in range(-1, nsteps):
        d, n = [], 0
        lim = npro if j < 0 else 99 if j == nsteps - 1 else cap(j) if callable(cap) else cap
        while q and q[0][0] <= j and n < lim:
            e, x = q.pop(0)
            d.append((e == j, x))
            n += x.kind in VM
        k, o = 0, []
        for dep, it in d:
            vm = it.kind in VM
            g = 1 + (ngap * k) // max(n, 1) + (2 if vm else 0)
            o.append((max(g, bgap(j) + 1) if dep else g, it))
            k += vm
        res.append(o)
    assert not q
    if OPT["verbose"]:
        for j, o in enumerate(res):
            sys.stderr.write(f"  step {j - 1}: " + " ".join((x.tag or "t") for _, x in o if x.kind in VM) + "\n")
    return [x for _, x in res[0]], res[1:]


def first_touches(p, tw, tx, wmask):
    if OPT["tfirst"] == 1:
        p.extend(tw(0) + tx(0))
        return 4, 2
    if OPT["tfirst"] == 2 and OPT["touch"]:
        a, b = tw(0), tx(0)
        p(f"s_mov_b64 exec, {wmask}")
        p.extend(a)
        p("s_mov_b64 exec, 0xff")
        p.extend(b)
        p("s_mov_b64 exec, -1")
        return 2, 1
    return 1, 1


def add_touches(groups_after, j, TW, TX, tw, tx):
    o = []
    for k in range(1, 5):
        if j == max(1, TW + 4 * k - OPT["tdist"]):
            if TW + 4 * k < 18:
                o += tw(TW + 4 * k)
            if TX + 2 * k < 9:
                o += tx(TX + 2 * k)
    if o:
        groups_after.append((-1, o))


BG = lambda j: OPT["bg0"] if j == 0 else OPT["bg1"] if j == 1 else OPT["bgv"] if j < OPT["bgn"] else 0


sstate = {}


def gemm_step(p, j, mf, tags, rds, dma, side, first=(), hi=(), wait_end=True):
    bg = BG(j)
    s_rd = [(bg, [I("WAITLGKM", cost=0), I(f"WAITVM {tags}", cost=1), I("s_barrier")])] + list(first)
    r0 = max([bg] + [g for g, _ in first])
    span = len(mf) - 6 - r0
    for i, x in enumerate(rds):
        s_rd.append((r0 + 2 + min(2 * i, (span * i) // len(rds)), x))
    if wait_end:
        s_rd.append((len(mf) - 1, I("WAITLGKM", cost=1), len(mf) - 1))
    if OPT["dpad"] and OPT["dp0"] <= j < OPT["dp1"]:
        for _ in range(OPT["dpad"]):
            p("s_nop 7")
    if OPT["dstag"] and j == 0:
        nskip[0] += 1
        p(f"s_bfe_u32 s89, s2, 0x30003\nL_stag{nskip[0]}:\ns_sleep {OPT['dstag']}\ns_sub_u32 s89, s89, 1\ns_cbranch_scc0 L_stag{nskip[0]}")
    if OPT["s2"]:
        p.extend(sched2(mf, [s_rd, list(hi), dma, side], state=sstate, rlate=OPT["rlate"],
                        vsep=4 if 4 * sum(x[1].kind in VM for x in dma) <= len(mf) else 3 if 3 * sum(x[1].kind in VM for x in dma) <= len(mf) else 2))
    else:
        p.extend(sched(mf, [list(hi), s_rd, dma, side]))


BO = 8


def phase_b(units, hreg, hdep, trB, mf):
    frags = [(ui, qi, k) for ui, u in enumerate(units) for qi, k in enumerate(u["ks"])]
    rdc = {}

    def rd(fi):
        if fi not in rdc:
            ui, qi, (ks, off, hoff) = frags[fi]
            w = 44 + 4 * (fi % 5)
            rdc[fi] = [I(f"ds_read_b64_tr_b16 {vr(w, 2)}, {trB(qi).at(off)}"),
                       I(f"ds_read_b64_tr_b16 {vr(w + 2, 2)}, {trB(qi).at(off + hoff)}", tag=f"f{fi}")]
        return rdc[fi]

    s_rd, s_dma, s_ep = [], [], []
    seen, need = {}, {}
    for fi in range(0, len(frags), 2):
        ui, qi, _ = frags[fi]
        u = units[ui]
        t = u["tile"]
        first = t not in seen
        seen[t] = seen.get(t, 0) + 2
        g0 = len(mf)
        order = [(b, h ^ (b & 1)) for b in range(8) for h in range(2)] if OPT["chb"] else [(b, h) for h in range(2) for b in range(8)]
        started, lastw = set(), {}
        for b, h in order:
            c, ks = 64 + 32 * (t % 2) + 4 * b, frags[fi + h][2][0]
            mf.append(I(f"{MF} {vr(c, 4)}, {vr(44 + 4 * ((fi + h) % 5), 4)}, {hreg(ks, b)}, {'0' if first and b not in started else vr(c, 4)}"))
            mf[-1].deps = rd(fi + h) + hdep(ks, b)
            started.add(b)
            lastw[b] = (len(mf) - 1, mf[-1])
            need.setdefault((ks, b), len(mf) - 1)
        if fi + 3 < len(frags):
            s_rd += [(g0 + 1, rd(fi + 3)[0]), (g0 + 3, rd(fi + 3)[1])]
        if qi == 0:
            gb = g0 + (BO if ui + 1 < len(units) else OPT["bo26"])
            tags = [x["tag"] for x in units[ui + 1:ui + 2]] + u.get("wtags", [])
            chk = u.get("chk", [])
            for it in chk:
                s_rd.append((gb - 1, it))
            if tags or chk or u.get("pre"):
                bi = I("s_barrier")
                u["bar"] = bi
                s_rd.append((gb, [I("WAITLG none " + u.get("ltag", ""), cost=0), I("WAITVM none " + " ".join(tags), cost=1), bi]))
                for x in flat(u.get("pre", []) + u.get("dma", [])):
                    x.after = [bi]
            for it in u.get("pre", []):
                s_rd.append((gb + 1, it))
            items = u.get("dma", [])
            nv = sum(1 for x in items if x.kind in VM)
            k = 0
            for it in items:
                vm = it.kind in VM
                s_dma.append((gb + u.get("d0", 4) + (32 * k) // nv + (1 if vm else 0), it))
                k += vm
        if fi + 4 < len(frags):
            s_rd += [(g0 + BO + 1, rd(fi + 4)[0]), (g0 + BO + 3, rd(fi + 4)[1])]
            s_rd.append((g0 + 15, I(f"WAITLG f{fi + 3}", cost=1)))
        if seen[t] == 12:
            if t < (8 if OPT["stamp"] == 2 else 2) and OPT["stamp"] >= 2:
                s_rd.append((len(mf) - 1, stamp_ins(f"t{t}", 2)))
            sg = 0 if t == 8 else OPT["stg7"] if t == 7 else OPT["stg6"] if t == 6 else 8 if t == 0 and OPT["t01"] else OPT["stg1"] if t == 1 else OPT["stg"]
            e0 = lastw[1][0] + 4
            s_ep.append((e0 - 2, I(f"s_add_u32 s62, s{PGS[t // 3]}, {(t % 3) * 16 * SRCS}")))
            for pp in range(4):
                c = 64 + 32 * (t % 2) + 8 * pp
                e = max(e0 + pp * sg, lastw[2 * pp + 1][0] + 4)
                for i in range(4):
                    s_ep.append((e, I(f"v_cvt_pk_bf16_f32 v{32 + 4 * ((pp + t) % 3) + i}, v{c + 2 * i}, v{c + 2 * i + 1}")))
                    s_ep[-1][1].deps = [lastw[2 * pp + i // 2][1]]
                if not OPT["nost"]:
                    s_ep.append((e + 2, I(f"buffer_store_dwordx4 {vr(32 + 4 * ((pp + t) % 3), 4)}, v{vPST}, {srd(SWS)}, s62 offen offset:{1024 * pp} {OPT['stflav'].replace('plain', '')}", tag=f"P{t}")))
    return rd(0) + rd(1) + rd(2), s_rd, s_dma, s_ep, need


def f_loads(r, FR, so=60):
    o = []
    for i in range(3):
        o += [I(f"s_add_u32 s{so}, s{PGS[r // 3]}, {((r % 3) * 16 + 4 * i) * SRCS}"),
              I(f"buffer_load_dwordx4 {FR(r, i)}, v{vCON}, {srd(SWS)}, s{so} offen sc1")]
    return o


def b2_touch(tmp):
    o = P()
    srd_ptr(o, SB2, 18); srd_const(o, SB2, 1152)
    if OPT["b2t"]:
        o(f"v_lshlrev_b32 v{tmp}, 7, v0")
        o(f"buffer_load_dword a255, v{tmp}, {srd(SB2)}, 0 offen", tag="T")
        o[-1].writes = set()
    return o


def b2_addr(reg, tmp):
    return P()(f"""
    s_and_b32 s85, s{sMT}, 7
    v_lshrrev_b32 v{reg}, 1, v0
    v_min_u32 v{reg}, 9, v{reg}
    v_add_u32 v{reg}, s85, v{reg}
    v_subrev_u32 v{tmp}, 9, v{reg}
    v_min_u32 v{reg}, v{reg}, v{tmp}
    v_and_b32 v{tmp}, 1, v0
    v_lshlrev_b32 v{tmp}, 4, v{tmp}
    v_lshl_add_u32 v{reg}, v{reg}, 7, v{tmp}
    s_lshl_b32 s85, s{sW}, 5
    v_add_u32 v{reg}, s85, v{reg}
    """)


def b2_dma(reg, lds):
    return [I(f"s_add_u32 m0, s65, {lds}"), I(f"buffer_load_dwordx4 v{reg}, {srd(SB2)}, 0 offen lds", tag="B2")]


ENDREG = dict(ffn=(12, 29), att=(208, 221))
ENDBLK = dict(ffn=(160, 96, 116, 25, 36), att=(222, 136, 48, 58, 0))


def end_setup(role):
    SEL, vZA = ENDREG[role]
    p = P()
    srd_ptr(p, SOUT, 22); srd_const(p, SOUT, 0 if OPT['noout'] == 1 else 2048 * 1152)
    t = SEL
    p(f"""
    s_mul_i32 s68, s{sMT}, 147456
    s_lshl_b32 s82, s{sW}, 5
    s_add_u32 s68, s68, s82
    s_lshr_b32 s82, s{sSRC}, 2
    s_lshl_b32 s82, s82, 5
    s_and_b32 s83, s{sSRC}, 1
    s_lshl_b32 s83, s83, 3
    s_add_u32 s82, s82, s83
    s_bfe_u32 s83, s{sSRC}, 0x10001
    s_add_u32 s82, s82, s83
    v_bfe_u32 v{t}, v0, 4, 1
    v_lshl_add_u32 v{t}, v{t}, 4, s82
    v_and_b32 v{t + 1}, 3, v0
    v_lshl_add_u32 v{t + 1}, v{t + 1}, 1, v{t}
    v_lshlrev_b32 v{vZA}, 2, v{t + 1}
    v_bfe_u32 v{t + 6}, v0, 1, 3
    v_and_b32 v{t + 7}, 1, v0
    v_lshlrev_b32 v{t + 7}, 4, v{t + 7}
    s_movk_i32 s83, 0x3f80
    v_lshlrev_b32 v{t + 7}, v{t + 7}, s83
    s_add_u32 s83, s{sFL}, {O_Z - O_CNT}
    """)
    for i in range(8):
        p(f"v_cmp_eq_u32 s[{8 + 2 * (i % 4)}:{9 + 2 * (i % 4)}], {i}, v{t + 6}")
        if i % 4 == 3:
            for k in range(4):
                p(f"v_cndmask_b32 v{t + i - 3 + k}, 0, v{t + 7}, s[{8 + 2 * k}:{9 + 2 * k}]")
    return p


def g_load(role):
    return I(f"buffer_load_dword v{ENDBLK[role][3]}, v{ENDREG[role][1]}, {srd(SWS)}, s83 offen sc1")


def end_consts(role, b2lds):
    SEL, vZA = ENDREG[role]
    K, DF, B2R = ENDBLK[role][:3]
    T = K + 22
    sc = "s67" if role == "ffn" else "s43"
    c0 = P()
    if role == "ffn":
        c0(f"v_add_u32 v{K}, s65, v{vL16}\nv_add_u32 v{K + 1}, 0x10000, v{K}\nv_add_u32 v{K + 2}, 0x20000, v{K}")
    c0(f"""
    s_add_u32 {sc}, s65, {b2lds}
    v_lshrrev_b32 v{T}, 5, v0
    v_bfe_u32 v{T + 1}, v0, 2, 2
    v_lshl_add_u32 v{K + 3}, v{T + 1}, 3, {sc}
    v_lshl_add_u32 v{K + 3}, v{T}, 5, v{K + 3}
    """)
    c1 = P()("WAITVM B2")
    for q in range(5):
        c1(f"ds_read_b64 {vr(B2R + 2 * q, 2)}, v{K + 3} offset:{64 * q}")
    c2 = P()
    for i in range(10):
        c2(f"v_lshlrev_b32 v{DF + 2 * i}, 16, v{B2R + i}\nv_and_b32 v{DF + 2 * i + 1}, 0xffff0000, v{B2R + i}")
    c3 = P()(f"""
    s_lshl_b32 {sc}, s{sSRC}, 8
    v_and_b32 v{T + 2}, 15, v0
    v_lshl_add_u32 v{T + 2}, v{T + 2}, 4, {sc}
    s_and_b32 {sc}, s{sMT}, 7
    v_lshrrev_b32 v{T + 3}, 4, v0
    v_add_u32 v{T + 4}, {sc}, v{T + 3}
    """)
    for i in range(3):
        if i:
            c3(f"v_add_u32 v{T + 4}, 4, v{T + 4}")
        c3(f"v_subrev_u32 v{T + 5}, 9, v{T + 4}\nv_min_u32 v{T + 4}, v{T + 4}, v{T + 5}\nv_lshl_add_u32 v{K + 5 + i}, v{T + 4}, 15, v{T + 2}")
    c3(f"""
    v_min_u32 v{T + 5}, 1, v{T + 3}
    v_lshl_add_u32 v{K + 7}, v{T + 5}, 31, v{K + 7}
    v_bfe_u32 v{T + 5}, v0, 3, 1
    v_sub_u32 v{T + 5}, v{T + 3}, v{T + 5}
    v_cmp_eq_u32 s[8:9], 0, v{T + 5}
    v_cmp_eq_u32 s[10:11], 2, v{T + 5}
    v_and_b32 v{T + 6}, 3, v0
    v_lshl_add_u32 v{K + 4}, v{T + 6}, 2, v{T + 1}
    v_and_or_b32 v{K + 4}, v0, 48, v{K + 4}
    v_lshlrev_b32 v{K + 4}, 2, v{K + 4}
    """)
    for k in range(4):
        c3(f"v_or_b32 v{T + 5}, v{SEL + k}, v{SEL + 4 + k}\nv_cndmask_b32 v{K + 8 + k}, 0, v{T + 5}, s[8:9]\nv_cndmask_b32 v{K + 12 + k}, 0, v{T + 5}, s[10:11]")
    c3(f"""
    v_mul_u32_u24 v{T + 2}, 288, v{vZA}
    v_lshl_add_u32 v{T + 2}, v{T + 1}, 3, v{T + 2}
    v_sub_u32 v{T + 5}, v{T + 1}, v{T + 6}
    v_mul_i32_i24 v{T + 5}, {2304 - 8}, v{T + 5}
    v_add_u32 v{T + 3}, v{T + 2}, v{T + 5}
    v_lshl_add_u32 v{T + 2}, v{T}, 31, v{T + 2}
    v_add_u32 v{T + 4}, {sc}, v{T}
    """)
    for q in range(5):
        if q:
            c3(f"v_add_u32 v{T + 4}, 2, v{T + 4}\nv_subrev_u32 v{T + 5}, 9, v{T + 4}\nv_min_u32 v{T + 4}, v{T + 4}, v{T + 5}")
        c3(f"v_lshl_add_u32 v{K + 16 + q}, v{T + 4}, 7, v{T + 3 - (q == 4)}")
    return c0, c1, c2, c3


def end_phase(p, role, FR, nin, nchk, spec, last_tag, last_cnt, post=()):
    SEL, vZA = ENDREG[role]
    K, DF0, B2R, vG, AL = ENDBLK[role]
    DF = lambda q: DF0 + 4 * q
    OUT = lambda q: K + 22 + 2 * q
    stages = [[(x[0], int(x[1:])) for x in g.split("+")] for g in spec.split(",")]
    stages = [[(k, t) for k, t in g if t >= nchk] for g in stages]
    if OPT["tag8"]:
        stages = [[(k, t) for k, t in g if t != 8] for g in stages]
        FR0 = FR
        FR = lambda r, i: FR0(r, i) if r < 8 else vr(64 + 4 * i, 4)
    stages = [g for g in stages if g]
    preg = lambda k, i: 70 + 2 * (k % 2) + i
    polls = lambda k: flat([y for i, (kind, t) in enumerate(stages[k]) for y in poll_load(t, preg(k, i))])
    done = dict(f=0, s=0, q=0, a4=False, st=0)

    def stores():
        for q in range(max(done["st"], OPT["noout"]), done["q"]):
            p(f"buffer_store_dwordx2 {vr(OUT(q), 2)}, v{K + 16 + q}, {srd(SOUT)}, s68 offen {OPT['outf' if q < 4 else 'outf4'].replace('+', ' ')}")
        done["st"] = done["q"]

    def work(nf, a):
        for r in range(done["f"], nf):
            for i in range(3):
                p(f"{MF} {vr(DF(r // 2), 4)}, {vr(SEL + 4 * (r % 2), 4)}, {FR(r, i)}, {vr(DF(r // 2), 4)}")
        done["f"] = max(nf, done["f"])
        mfa = lambda q, d, c: p(f"{MF} {vr(d, 4)}, {vr(K + 8 + 4 * (q % 2), 4)}, {vr(AL + 4 * (q // 2), 4, 'a')}, {c}")
        q0 = done["q"]
        if a:
            for q in range(q0, done["s"]):
                mfa(q, DF(q), vr(DF(q), 4))
            if not done["a4"]:
                mfa(4, B2R, "0")
                done["a4"] = True
        s0 = done["s"]
        done["s"] = max(s0, min(4, nf // 2))
        for q in range(s0, done["s"]):
            for i in range(4):
                p(f"v_mul_f32 v{DF(q) + i}, v{vG}, v{DF(q) + i}")
        if a:
            for q in range(s0, done["s"]):
                mfa(q, DF(q), vr(DF(q), 4))
            for q in range(q0, done["s"]):
                p(f"v_cvt_pk_bf16_f32 v{OUT(q)}, v{DF(q)}, v{DF(q) + 1}\nv_cvt_pk_bf16_f32 v{OUT(q) + 1}, v{DF(q) + 2}, v{DF(q) + 3}")
            for q in range(q0, done["s"]):
                p(f"ds_bpermute_b32 v{OUT(q)}, v{K + 4}, v{OUT(q)}\nds_bpermute_b32 v{OUT(q) + 1}, v{K + 4}, v{OUT(q) + 1}")
            done["q"] = done["s"]
            if nf == 9:
                for i in range(4):
                    p(f"v_fma_f32 v{DF(4) + i}, v{DF(4) + i}, v{vG}, v{B2R + i}")
                p(f"v_cvt_pk_bf16_f32 v{OUT(4)}, v{DF(4)}, v{DF(4) + 1}\nv_cvt_pk_bf16_f32 v{OUT(4) + 1}, v{DF(4) + 2}, v{DF(4) + 3}")
                done["q"] = 5

    for r in range(nin, nchk):
        p.extend(f_loads(r, FR))
    assert not any(t == last_cnt for _, t in stages[0])
    p.extend(polls(0))
    p.extend(post[:OPT["npost"]])
    work(min(nin, OPT["rpre"] if role == "ffn" else 0), False)
    stamp(p, "e_setup")
    p("s_waitcnt lgkmcnt(0)")
    if not (OPT["tag8"] and last_cnt == 8):
        p(f"WAITVM {last_tag}\ns_barrier")
        p.extend(flat(signal(last_cnt)))
    nf, na = nchk, False
    for k, g in enumerate(stages):
        for i, (kind, t) in enumerate(g):
            p.extend(flat(poll_check(role, t, kind, preg(k, i), k > 0 and i == 0)))
        if k + 1 < len(stages):
            p.extend(polls(k + 1))
        p("s_barrier")
        if k >= len(stages) - 2 or k == 0:
            stamp(p, "e_" + "".join(f"{kind}{t}" for kind, t in g))
        pf, pa = nf, na
        for kind, t in g:
            if kind == "F":
                for r in range(nf, t + 1):
                    p.extend(f_loads(r, FR))
                nf = t + 1
            else:
                for i in range(3):
                    p(f"buffer_load_dwordx4 {vr(AL + 4 * i, 4, 'a')}, v{K + 5 + i}, {srd(SWS)}, s5 offen sc1")
                na = True
        late8 = OPT["f8late" if role == "ffn" else "f8latea"]
        if OPT["tag8"] and k == len(stages) - 1 and not late8:
            p.extend(f_loads(8, FR))
        if k == 0 and not any(kd == "A" for kd, _ in g):
            p.extend(post[OPT["npost"]:])
        stores()
        work(pf, pa)
    if OPT["tag8"]:
        assert nf == 8 and na
        if late8 == 1:
            p.extend(f_loads(8, FR))
        stores()
        work(8, True)
        if late8 == 2:
            p.extend(f_loads(8, FR))
        stores()
        chk = "\n".join(f"v_max3_u32 v{76 + i}, v{64 + 3 * i}, v{65 + 3 * i}, v{66 + 3 * i}" for i in range(4))
        chk += "\nv_max3_u32 v76, v76, v77, v78\nv_max_u32 v76, v76, v79\nv_cmp_eq_u32 s[8:9], -1, v76\ns_cmp_lg_u64 s[8:9], 0"
        p(chk + f"\ns_cbranch_scc1 L_{role}_again\nL_{role}_full:")
        stamp(p, "e_F8")
        st = stubs[role]
        st(f"L_{role}_again:")
        st.extend(f_loads(8, FR))
        st(f"s_sub_u32 s{sSPIN}, s{sSPIN}, 1\ns_waitcnt vmcnt(0)\ns_cmp_lt_i32 s{sSPIN}, 0\ns_cbranch_scc1 L_{role}_full")
        st(chk + f"\ns_cbranch_scc1 L_{role}_again\ns_branch L_{role}_full")
        nf = 9
    assert nf == 9 and na
    stores()
    work(9, True)
    stores()
    stamp_out(p)
    p("s_endpgm")
    p.extend(stubs[role])


def role_ffn():
    p = P()
    XR = 98304
    p(f"L_ffn:\ns_mul_i32 s{sSRC}, s59, 3\ns_add_u32 s{sSRC}, s{sSRC}, s60\ns_sub_u32 s{sSRC}, s{sSRC}, 1")
    code_touch(p, "ffn", 38)
    p(f"""
    v_lshrrev_b32 v32, 3, v0
    v_and_b32 v33, 7, v0
    s_mul_i32 s59, s{sW}, {32 * 1152}
    v_mul_u32_u24 v34, 1152, v32
    v_add_u32 v34, s59, v34
    v_lshrrev_b32 v35, 1, v32
    v_xor_b32 v35, v33, v35
    v_lshlrev_b32 v35, 4, v35
    v_lshlrev_b32 v36, 1, v34
    v_subrev_u32 v36, s59, v36
    v_add_u32 v1, v36, v35
    v_xor_b32 v35, 64, v35
    v_add_u32 v2, v36, v35
    v_add_u32 v2, 128, v2
    v_add_u32 v3, 16384, v1
    v_add_u32 v4, 16384, v2
    s_and_b32 s69, s{sW}, 1
    s_lshl_b32 s59, s69, 2
    v_and_or_b32 v35, v32, 2, s59
    v_xor_b32 v35, v33, v35
    s_mul_i32 s59, s{sW}, {8 * 9216}
    s_add_u32 s59, s59, 2048
    v_mul_u32_u24 v36, 9216, v32
    v_lshl_add_u32 v36, v35, 4, v36
    v_add_u32 v5, s59, v36
    v_subrev_u32 v6, 896, v5
    v_subrev_u32 v7, 1792, v5
    v_lshlrev_b32 v{vL16}, 4, v0
    s_mul_i32 s62, s{sMT}, 147456
    s_mul_i32 s63, s{sSRC}, 768
    s_lshl_b32 s65, s{sW}, 12
    s_mul_i32 s66, s{sW}, 6144
    {bit_of(OPT["xa"], 59)}
    {bit_of(OPT["xb"], 85)}
    s_mul_i32 s60, s59, 3072
    s_sub_u32 s67, s66, s60
    s_add_u32 s67, s67, 3072
    s_add_u32 s66, s66, s60
    s_mul_i32 s59, s59, 384
    s_mul_i32 s60, s85, {32 * 9216}
    s_add_u32 s48, s60, s59
    s_sub_u32 s49, s60, s59
    s_add_u32 s49, s49, 384
    """)
    srd_const(p, SX, 2048 * 1152)
    srd_const(p, SWA, 576 * 9216 + 2048)
    srd_const(p, SSM, 4608 * 2)
    lt = P()
    srd_const(lt, SWB, 4608 * 1152)
    srd_const(lt, SWS, WS_SIZE)
    lt(f"""
    s_sub_u32 s50, {32 * 9216 + 384}, s49
    s_sub_u32 s51, {32 * 9216 + 384}, s48
    s_mul_i32 s64, s{sSRC}, {384 * 1152}
    v_and_b32 v35, 6, v32
    v_xor_b32 v35, v33, v35
    v_lshl_add_u32 v8, v35, 4, v34
    v_and_b32 v32, 3, v32
    v_and_b32 v33, 3, v0
    v_lshlrev_b32 v33, 3, v33
    v_lshrrev_b32 v34, 4, v0
    v_bfe_u32 v35, v0, 2, 2
    s_lshl_b32 s59, s69, 1
    v_xor_b32 v12, s59, v32
    v_lshl_add_u32 v12, v12, 5, v33
    v_lshl_add_u32 v12, v35, 7, v12
    v_mul_u32_u24 v13, 6144, v34
    s_lshr_b32 s59, s{sW}, 1
    s_lshl_b32 s59, s59, 10
    v_add3_u32 v12, v12, v13, s59
    v_xor_b32 v13, 32, v12
    v_add_u32 v14, 0x10000, v12
    v_add_u32 v15, 0x10000, v13
    v_xor_b32 v22, s{sW}, v32
    v_lshl_add_u32 v22, v22, 5, v33
    v_lshrrev_b32 v35, 2, v0
    v_lshl_add_u32 v22, v35, 7, v22
    v_and_b32 v32, 15, v0
    v_lshrrev_b32 v33, 1, v32
    v_xor_b32 v33, v33, v34
    v_lshlrev_b32 v33, 4, v33
    v_lshl_add_u32 v16, v32, 7, v33
    v_add_u32 v16, {XR}, v16
    s_lshl_b32 s59, s85, 6
    v_xor_b32 v16, s59, v16
    v_xor_b32 v17, 64, v16
    s_mul_i32 s59, s{sW}, {4096 + 64}
    s_add_u32 s59, s59, {XR + 3 * 16384}
    v_lshl_add_u32 v39, v34, 3, s59
    """)
    p("s_branch L_ffn_mid\nL_ffn_mid:" if OPT["split3"] else "L_ffn_mid:")
    p("WAITLGKM")
    stamp_begin(p, "ffn", 20)
    stamp(p, "karg", 2)
    srd_ptr(p, SWA, 12, 2048)
    srd_ptr(p, SX, 4)

    UO = [(n // 3, n % 3) for n in range(27)]
    if OPT["t01"]:
        UO[:6] = [(0, 0), (0, 1), (1, 0), (1, 1), (0, 2), (1, 2)]
    N2 = UO.index((0, 2))

    def dma4(base, soff, regs, sr, tag, half=None):
        o = [I(f"s_add_u32 m0, s65, {base}")] + soff
        for q in (range(4) if half is None else (2 * half, 2 * half + 1)):
            o.append(I(f"buffer_load_dwordx4 v{regs[q]}, {srd(sr)}, s60 offen offset:{1024 * q} lds", tag=tag))
        return o

    dma_x = lambda J, half=None: dma4(XR + (J % 4) * 16384, x_soff(J, "s62"), [1, 2, 3, 4], SX, f"R{J}", half)
    dma_w2 = lambda n, base: dma4(base, [I(f"s_add_u32 s60, s{sCH + UO[n][0]}, {UO[n][1] * 147456}")], [8, 9, 10, 11], SWB, f"U{n}")

    def dma_w1(j):
        o = w_block(j, 63, 9216)
        for h in range(2):
            o.append(I(f"s_add_u32 m0, s{66 + h}, {(j % 4) * 24576}"))
            o.append(I(f"s_add_u32 s60, s{sWB}, s{48 + 2 * (j % 2) + h}"))
            for q in range(3):
                o.append(I(f"buffer_load_dwordx4 v{5 + q}, {srd(SWA)}, s60 offen offset:{1024 * q} lds", tag=f"W{j}"))
        return o

    p.extend(dma_x(0) + dma_w1(0))
    srd_ptr(p, SSM, 14)
    p(f"s_add_u32 m0, s65, {XR + 3 * 16384}")
    srd_ptr(p, SWB, 16)
    p(f"buffer_load_dwordx4 v{vL16}, {srd(SSM)}, s63 offen lds", tag="W0")
    stamp(p, "d0", 2)
    p("s_branch L_ffn_late\nL_ffn_late:")
    srd_ptr(p, SWS, 26)
    if OPT["wlate"]:
        p.extend(lt[4:6] + dma_w1(1) + lt[:4] + lt[6:])
    else:
        p.extend(lt)
    stamp(p, "late", 4)
    warm(p, "ffn")
    stamp(p, "warm", 2)
    p("s_branch L_ffn_body\nL_ffn_body:")
    if not OPT["wlate"]:
        p.extend(dma_w1(1))
    stamp(p, "d1", 2)
    dbl = [int(x) for x in OPT["dbl"].split(",")]
    rho, st = {0: -1}, 1
    for j in range(15):
        for _ in range(2 if j in dbl else 1):
            rho[st] = j
            st += 1
    assert rho[17] == 14
    free_at = lambda sg: rho[sg] + 1 if sg >= 0 else -1
    groups = []
    for j in range(2, 18):
        if j == 2:
            groups.append((-1, dma_x(1)))
        elif j < 17:
            J = (j + 1) // 2
            groups.append((max(free_at(2 * J - 7), 0 if J == 3 else -1), dma_x(J, (j + 1) % 2)))
        groups.append((free_at(j - 4), dma_w1(j)))
    UL = OPT["ulate"]
    if UL < 2:
        groups.append((12, touch(31, SWB, 64, 1024, True)))
    xslot = lambda st: XR + (st % 4) * 16384
    uslot = {n: xslot(9 + n) for n in range(4)}
    groups += [(free_at(2 * n + 11), dma_w2(n, uslot[n])) for n in range(2 - UL)]

    trA = [Addr([12, 14]), Addr([13, 15])]
    xr = [Addr([16]), Addr([17])]
    hw = Addr([18, 19])
    hr = {i: Addr([30 + 2 * i, 31 + 2 * i]) for i in (1, 2, 3)}
    trBs = [Addr([22, 21, 26]), Addr([1, 2, 3]), Addr([4, 5, 6]), Addr([7, 27, 30])]
    xf = lambda j, b: 32 * (j % 4) + 4 * b
    wf = lambda j, t: 128 + 32 * (t // 2) + 8 * (j % 4) + 4 * (t % 2)
    acc = lambda t, b: [160, 64, 192, 96, 224, 128][t] + 4 * b
    rdc = {}

    def reads(j):
        o = []
        for t in range(6):
            off = (j % 4) * 24576 + (t // 2) * 2048
            w = wf(j, t)
            o.append([I(f"ds_read_b64_tr_b16 {vr(w, 2, 'a')}, {trA[t % 2].at(off)}"),
                      I(f"ds_read_b64_tr_b16 {vr(w + 2, 2, 'a')}, {trA[t % 2].at(off + 512)}")])
        xs = [I(f"ds_read_b128 {vr(xf(j, b), 4, 'a')}, {xr[j % 2].at(((j // 2) % 4) * 16384 + b * 2048)}") for b in range(8)]
        rdc[j] = (o, xs)
        if j == 17:
            return o[0] + o[1] + xs + [y for x in o[2:] for y in x]
        return o[0] + xs + [y for x in o[1:] for y in x]

    def mfa(j, t, b):
        x = I(f"{MF} {vr(acc(t, b), 4)}, {vr(wf(j, t), 4, 'a')}, {vr(xf(j, b), 4, 'a')}, {vr(40 + 4 * t if j == 0 else acc(t, b), 4)}")
        x.deps = rdc[j][0][t] + [rdc[j][1][b]]
        return x

    pro, paced = pace(groups, 14, lambda j: OPT["cap0"] if j < OPT["nfill"] else OPT["capd"] if j in dbl else OPT["cap"], 44, BG, OPT["npro"])
    k = split_vm(pro, OPT["npre"])
    p.extend(pro[:k])
    p("WAITVM R0 W0")
    for t in range(6):
        p(f"ds_read_b64 {vr(244 + 2 * t, 2)}, v39 offset:{(t // 2) * 256 + (t % 2) * 32}")
    stamp(p, "land", 2)
    p("s_barrier")
    p.extend(reads(0))
    p.extend(pro[k:])
    for t in range(6):
        for i in range(2):
            p(f"v_lshlrev_b32 v{40 + 4 * t + 2 * i}, 16, v{244 + 2 * t + i}")
            p(f"v_and_b32 v{41 + 4 * t + 2 * i}, 0xffff0000, v{244 + 2 * t + i}")
    if not OPT["fastst"]:
        p("WAITLGKM")
    stamp(p, "A0")

    hs = handoff_setup(64, 1)
    addr13 = P()
    for i in (1, 2, 3, 0):
        r = trBs[i].regs
        addr13(f"s_xor_b32 s85, s{sW}, {i}\ns_lshl_b32 s85, s85, 12\nv_add_u32 v{r[0]}, s85, v22")
        addr13(f"v_add_u32 v{r[1]}, 0x10000, v{r[0]}\nv_add_u32 v{r[2]}, 0x20000, v{r[0]}")
    addr13(f"s_mul_i32 s85, s{sW}, {32 * 1152}\nv_and_b32 v31, 31, v0\nv_mul_u32_u24 v31, 1152, v31\nv_add_u32 v31, s85, v31")
    addr11 = P()
    for i in (1, 2, 3):
        addr11(f"s_xor_b32 s85, s{sW}, {i}\ns_lshl_b32 s85, s85, 13\nv_add_u32 v{30 + 2 * i}, s85, v{vL16}\nv_add_u32 v{31 + 2 * i}, 0x10000, v{30 + 2 * i}")
    late = {5: hs[:27], 6: hs[27:46], 7: hs[46:],
            9: P()(f"""
            v_add_u32 v9, 8192, v8
            v_add_u32 v10, 16384, v8
            v_add_u32 v11, 24576, v8
            s_lshl_b32 s85, s{sW}, 13
            v_add_u32 v18, s85, v{vL16}
            v_add_u32 v19, 0x10000, v18
            """),
            10: code_touch2("ffn", 38) + P()(f"""
            s_mul_i32 s85, s68, {12 * 1152}
            v_min_u32 v31, 11, v0
            v_mul_u32_u24 v31, 1152, v31
            v_add_u32 v31, s85, v31
            """),
            11: b2_touch(39) + addr11, 13: addr13}
    inline = {}
    if OPT["early_setup"]:
        inline = dict(zip(ES, [late.pop(5), late.pop(6) + late.pop(7), late.pop(9) + addr11]))
        late[11] = b2_touch(39)
    assert not any(("v", r) in x.reads for r in (1, 2, 3, 4, 5, 6, 7, 30, 31) for _, x in paced[13])
    assert not any(("v", 31) in x.reads for j in (10, 11) for _, x in paced[j])
    snake = [(t, b if t % 2 == 0 else 7 - b) for t in range(6) for b in range(8)]
    for j in range(14):
        j0 = j & ~1
        if OPT["cha"] and dbl[0] < j0 and j0 + 1 < dbl[1]:
            mf = [mfa(j0 + (h ^ (n & 1)), t, b) for n, (t, b) in enumerate(snake[24 * (j & 1):24 * (j & 1) + 24]) for h in range(2)]
        else:
            mf = [mfa(j, t, b) for t, b in (snake if OPT["cha"] else sorted(snake))]
        sts = [k for k in rho if rho[k] == j]
        tags = " ".join(f"W{k} R{k // 2}" for k in sts)
        gemm_step(p, j, mf, tags, [x for k in sts for x in reads(k)], paced[j], [(4, x) for x in late.get(j, [])])
        p.extend(flat(inline.get(j, [])))
        warm(p, "ffn", j)
        p("WAITLGKM")
        if j in (0, 1, 3, 8):
            stamp(p, f"A{j + 1}", 2)
    stamp(p, "A14")

    r17 = reads(17)
    uns = [(u, b) for u in range(3) for b in range(8)]
    mf, done = [], {}
    if OPT["chs"]:
        mf += [mfa(j, e, b) for b in range(3) for e in range(2) for j in ((14, 15, 16), (16, 15, 14))[e]]
    else:
        mf += [mfa(j, e, b) for j in (14, 15, 16) for b in range(3) for e in range(2)]
    for u, b in uns:
        js = (17,) if u == 0 and b < 3 else (14, 15, 16, 17)
        if OPT["chs"]:
            mf += [mfa(j, 2 * u + e, b) for e in range(2) for j in (js, js[::-1])[e]]
            done[u, b] = (len(mf) - 1, [mf[-1], mf[-1 - len(js)]])
        else:
            mf += [mfa(j, 2 * u + e, b) for j in js for e in range(2)]
            done[u, b] = (len(mf) - 1, mf[-2:])
    G = len(mf)
    B0, B1, B2 = OPT["b0"], G + OPT["b1"], G + 32 * (N2 - 1) + BO
    bar_b, bar_0, bar_1 = I("s_barrier"), I("s_barrier"), I("s_barrier")
    t_rd = [(0, [I("WAITVM W17 R8 T", cost=1), I("s_barrier")])] + [(1 + (3 * i) // 4, x) for i, x in enumerate(r17)]
    t_rd.append((21, [I("WAITLGKM", cost=1), bar_b]))
    if OPT["stamp"] >= 3:
        t_rd += [(g, stamp_ins(f"g{g}"), g) for g in (2, 22, 44, 100, 112)]
    d2, d3 = dma_w2(2, uslot[2]), dma_w2(3, uslot[3])
    for x in d3:
        x.after = [bar_b]
    if OPT["u4t"] and OPT["t01"]:
        tt = touch(31, SWB, sCH, 2 * 147456, True)
        tt[-1].tag = "T2"
        d2 = d2 + tt
    t_dma = [(1 + OPT["udist"] * k, x) for k, x in enumerate(d2)] + [(22 + OPT["udist"] * k, x) for k, x in enumerate(d3)]
    own, s_h2, s_hw = {}, [], []
    dead = {0: B0 - 5, 1: B1 - 5, 2: B2 - 5}
    items = []
    for u, b in uns:
        c, d = acc(2 * u, b), acc(2 * u + 1, b)
        o = [I(f"v_mul_f32 v{r + i}, v{r + i}, |v{r + i}|") for r in (c, d) for i in range(4)]
        for x in o:
            x.deps = done[u, b][1]
        o += [I(f"v_cvt_pk_bf16_f32 v{c + i}, v{r}, v{r + 1}") for i, r in enumerate((c, c + 2, d, d + 2))]
        own[u, b] = [I(f"v_pk_max_i16 v{c + i}, v{c + i}, 0") for i in range(4)]
        items += [(done[u, b][0] + 4, x, u, b) for x in o + own[u, b]]
    lo = items[0][0] + 2
    for u in range(3):
        sub = [it for it in items if it[2] == u]
        for n, (e, x, _, b) in enumerate(sub):
            dl = max(e, lo + ((n + 1) * (dead[u] - lo)) // len(sub))
            s_h2.append((e, x, dl))
            if x is own[u, b][-1]:
                w = I(f"ds_write_b128 {hw.wr(u * 32768 + b * 1024, vr(acc(2 * u, b), 4))}", tag=f"H{u}")
                w.after, w.deps = [bar_b], own[u, b]
                s_hw.append((dl + 1, w, dl + 2))
        lo = dead[u]
    land = {(0, 1): "a224", (0, 2): "a128", (0, 3): "a160", (1, 1): "a0", (1, 2): "a32", (1, 3): "a192",
            (2, 1): "a64", (2, 2): "a96", (2, 3): "v128"}

    def hreg(ks, b):
        u, i = divmod(ks, 4)
        if i == 0:
            return vr(acc(2 * u, b), 4)
        return vr(int(land[u, i][1:]) + 4 * b, 4, land[u, i][0])

    hrd = {(4 * u + i, b): I(f"ds_read_b128 {hreg(4 * u + i, b)}, {hr[i].at(u * 32768 + b * 1024)}") for u, i in land for b in range(8)}
    hdep = lambda ks, b: own[ks // 4, b] if ks % 4 == 0 else [hrd[ks, b]]
    t_hook = [(B0 + 2, x) for x in poll_load("init")]
    t_rd.append((B0, [I("WAITLG H0", cost=1), I("WAITVM U0 T2", cost=1), bar_0]))
    assert B1 < G
    t_rd += [(B1 - 1, x) for x in poll_check("ffn", "init", "init")]
    t_rd.append((B1, [I("WAITLG H1", cost=0), bar_1]))
    if OPT["stamp"] >= 1:
        t_rd.append((G - 17, stamp_ins("A18m"), G - 17))
    t_hook += [(B1 + 2 + 2 * i, x, G + 76) for i, x in enumerate(page_setup())] + [(G + 230, x) for x in b2_addr(31, 16)]
    SL = OPT["slack"]
    chk_at = {UO.index((r, 2)) - 2 + SL: r for r in range(9) if 3 * r + SL <= 26}
    assert SL > 3 + OPT["sig"]
    if OPT["chku"]:
        chk_at = {int(n): r for r, n in enumerate(OPT["chku"].split(","))}
    nchk = len(chk_at)
    nlds = sum(1 for n in chk_at if n < 24)
    assert nlds <= 6
    FRF = lambda r, i: vr((128 + 12 * r if r < 5 else 224 + 12 * (r - 5) if r < 7 else 12 * (r - 6)) + 4 * i, 4, "a")
    nin = sum(1 for n in chk_at if n < 26)
    sig_at = {min(UO.index((t, 2)) + 1 + OPT["sig"], 26): t for t in range(8 if OPT["sig7"] == 1 else 7)}
    if OPT["sigu"]:
        sig_at = {int(n): t for t, n in enumerate(OPT["sigu"].split(","))}
    inv = {t: n for n, t in sig_at.items()}
    assert all(inv[r] < n for n, r in chk_at.items())
    l26 = [(x[0], int(x[1:])) for x in OPT["last26"].split("+") if x]
    if l26:
        assert 26 not in chk_at and all(inv[t] < 26 for k, t in l26 if k == "F")
        nchk = max([nchk] + [t + 1 for k, t in l26 if k == "F"])
    units, hooks, free, fslot = [], [], [], {}
    issued = 4
    for n in range(27):
        u = dict(tile=UO[n][0], tag=f"U{n}", wtags=[], pre=[], dma=[])
        if n >= 1:
            free.append(uslot[n - 1])
            if UO[n - 1][0] == 0:
                free += [32768 * UO[n - 1][1], 32768 * UO[n - 1][1] + 16384]
        fd = []
        if n in sig_at:
            if not OPT["nosig"]:
                u["wtags"].append(f"P{sig_at[n]}")
            u["pre"] += signal(sig_at[n])
        if n in chk_at:
            r = chk_at[n]
            if not OPT["nochk"]:
                hooks += [(G + 32 * n + BO - min(OPT["pdist"], 32 * (n - inv[r]) - 8), y) for y in poll_load(r, [sP0, sP1][r % 2])]
                u["chk"] = poll_check("ffn", r, "F", [sP0, sP1][r % 2])
            if nlds <= r < nin:
                fd = f_loads(r, FRF)
                u["d0"] = 9
            if r < nlds:
                fslot[r] = free.pop(0)
                fd = [I(f"s_add_u32 m0, s65, {fslot[r]}")]
                for i in range(3):
                    fd += [I(f"s_add_u32 s60, s{PGS[r // 3]}, {((r % 3) * 16 + 4 * i) * SRCS - 1024 * i}"),
                           I(f"buffer_load_dwordx4 v{vCON}, {srd(SWS)}, s60 offen offset:{1024 * i} sc1 lds", tag="FD")]
        if n == 26 and l26:
            c = []
            for i, (kind, t) in enumerate(l26):
                hooks += [(G + 32 * n + OPT["bo26"] - OPT["pd26"] + 2 * i, y) for y in poll_load(t, [66, 69][i])]
                c += poll_check("ffn", t, kind, [66, 69][i], i == 0)
            u["chk"] = [flat(c)]
            if OPT["f6in"]:
                fd = [y for r in range(nin, nchk) for y in f_loads(r, FRF)]
                nin = nchk
        if n == min(k for k in (20, 21, 22, 23) if k not in chk_at and k >= OPT['cou']):
            hooks += [(G + 32 * n + BO - 28, y) for y in poll_load(CO, 66)]
            u["chk"] = poll_check("ffn", CO, "A", 66)
            b2lds = fslot[0] + 3072
            fd += b2_dma(31, b2lds) + [g_load("ffn")]
        k = 0
        while issued < 27 and issued <= n + OPT["look"] and free and k < (1 if fd or n < OPT["slow"] else 2):
            uslot[issued] = free.pop(0)
            u["dma"] += dma_w2(issued, uslot[issued])
            issued += 1
            k += 1
        assert issued >= min(27, n + 3)
        u["dma"] += fd
        units.append(u)
    for n, u in enumerate(units):
        u["ks"] = [(4 * UO[n][1] + q, uslot[n], 2048) for q in range(4)]
    units[N2 - 1]["ltag"] = "H2"
    r0, s_rd, s_dma, s_ep, hneed = phase_b(units, hreg, hdep, lambda qi: trBs[qi], mf)
    t_rd += [(G - 26 + 4 * k, x) for k, x in enumerate(r0)]
    t_rd.sort(key=lambda h: h[0])
    if OPT["stamp"] >= 3:
        s_rd += [(G + g, stamp_ins(f"G{g}"), G + g) for g in (14, 46, 78, 110, 118)]
        s_rd.sort(key=lambda h: h[0])
    s_end = [(G + 32 * 16 + i, x) for i, x in enumerate(end_setup("ffn"))]
    if OPT["tag8"]:
        g = G + OPT["clr"]
        fill = [(g - 8, x) for x in P()(f"s_add_u32 s67, s{PGS[2]}, {2 * 16 * SRCS}\n" + "\n".join(f"v_mov_b32 v{12 + i}, -1" for i in range(4)))]
        fill += [(g + 14 * i, I(f"buffer_store_dwordx4 v[12:15], v{vPST}, {srd(SWS)}, s67 offen offset:{1024 * i} sc1", tag="P2")) for i in range(4)]
        for h in fill[5:]:
            h[1].deps = [x[1] for x in fill[:5]]
        s_end = fill + s_end
    T8 = G + 32 * 24
    c0, c1, c2, c3 = end_consts("ffn", b2lds)
    fa = Addr([160, 161, 162])
    frd = [I("WAITVM FD", cost=1)] + [I(f"ds_read_b128 {FRF(r, i)}, {fa.at(fslot[r] + i * 1024)}") for r in range(nlds) for i in range(3)]
    frd[1].after = c1[1].after = [c0[-1]]
    c2[0].after = [c1[-1]]
    s_lds = [(T8 + 33 + 2 * i, x) for i, x in enumerate(c1 + frd)]
    s_end += [(T8 + 17, x) for x in c0 + c3] + [(T8 + 52, x) for x in c2]
    s_h = []
    for u in range(3):
        bar = [bar_0, bar_1, units[N2 - 1]["bar"]][u]
        g0 = [B0, B1, B2][u] + 1
        need = G + 32 * [0, 1, N2][u]
        keys = sorted(((4 * u + i, b) for i in (1, 2, 3) for b in range(8)), key=lambda k: hneed[k])
        for n, key in enumerate(keys):
            x = hrd[key]
            x.after = [bar]
            a0 = land[u, key[0] % 4]
            fr = {"a160": 128, "a192": G}.get(a0, done[2, key[1]][0] + 1 if a0 in ("a0", "a32", "a64", "a96") else 0)
            e = max(fr, g0 + (n * min(60, need + 16 - g0)) // 24, s_h[-1][0] if s_h else 0)
            s_h.append((e, x, max(e, hneed[key] - 8)))
    p.extend(sched2(mf, [t_rd + s_rd, s_hw, s_h + s_lds, s_ep, t_dma + s_dma, t_hook + sorted(hooks, key=lambda h: h[0]), s_h2 + s_end], state=sstate, rlate=2, wgap=OPT["wgap"]))
    stamp(p, "Bend")
    if OPT["sig7"] == 2:
        p("WAITVM P7\ns_barrier")
        p.extend(flat(signal(7)))
    end_phase(p, "ffn", FRF, nin, nchk, OPT["est"], "P8", 8)
    return p


def role_att():
    p = P()
    WSL, XR, XSL, GT, ZT = 28672, 114688, 20480, 155648, 162304
    EO, RO, OB = 64512, 20736, 4736
    WO = [129024, 64512, 84992, 41472, 105984]
    if OPT["amap"]:
        p(f"""L_att:
        s_bfe_u32 s{sSRC}, s2, 0x20004
        s_add_u32 s{sSRC}, s{sSRC}, 12
        s_and_b32 s{sMT}, s{sMT}, 9
        s_lshl1_add_u32 s{sMT}, s59, s{sMT}
        """)
    else:
        p(f"L_att:\ns_add_u32 s{sSRC}, s59, 12")
    if OPT["rga"]:
        ms = [int(x) for x in str(OPT["rga"]).split(",")][::-1]
        p(bit_of(ms[0], sG))
        for m in ms[1:]:
            p(bit_of(m, 59) + f"\ns_lshl1_add_u32 s{sG}, s{sG}, s59")
    code_touch(p, "att", 39)
    p(f"""
    s_sub_u32 s67, s{sSRC}, 12
    v_lshrrev_b32 v32, 3, v0
    v_and_b32 v33, 7, v0
    s_mul_i32 s63, s{sMT}, 147456
    s_and_b32 s69, s{sW}, 1
    s_lshr_b32 s60, s{sW}, 1
    s_mul_i32 s59, s69, 64
    s_add_u32 s59, s59, s60
    s_mul_i32 s59, s59, 1152
    s_add_u32 s59, s59, s63
    v_lshrrev_b32 v35, 1, v32
    v_xor_b32 v35, v33, v35
    v_lshlrev_b32 v35, 4, v35
    v_mul_u32_u24 v34, 2304, v32
    v_add3_u32 v1, v34, v35, s59
    v_xor_b32 v36, 64, v35
    s_add_u32 s59, s59, {16 * 1152 - 1024}
    v_add3_u32 v2, v34, v36, s59
    v_add_u32 v3, {32 * 1152 - 2048}, v1
    v_add_u32 v4, {32 * 1152 - 2048}, v2
    s_sub_u32 s59, s{sW}, 16
    s_mul_i32 s59, s59, 1152
    s_add_u32 s59, s59, s63
    s_cmp_eq_u32 s{sMT}, 0
    s_cselect_b32 s62, 0, 2
    s_cmp_ge_u32 s{sW}, s62
    s_cselect_b32 s59, {OOB}, s59
    s_lshl_b32 s62, s69, 6
    v_xor_b32 v36, s62, v35
    v_add3_u32 v5, v34, v36, s59
    s_lshl_b32 s59, s69, 2
    v_and_or_b32 v38, v32, 2, s59
    v_xor_b32 v38, v33, v38
    s_mul_i32 s59, s{sW}, {8 * 3456}
    s_add_u32 s59, s59, 2048
    v_mul_u32_u24 v36, 3456, v32
    v_add_u32 v36, s59, v36
    v_lshl_add_u32 v6, v38, 4, v36
    v_subrev_u32 v7, 896, v6
    v_subrev_u32 v8, 1792, v6
    v_lshrrev_b32 v35, 1, v38
    v_subrev_u32 v37, s67, v35
    v_and_b32 v37, 256, v37
    v_add_u32 v6, v6, v37
    v_subrev_u32 v27, 896, v6
    v_mul_u32_u24 v37, 1152, v35
    v_add_u32 v35, 1, v35
    v_lshrrev_b32 v35, 2, v35
    v_lshl_add_u32 v36, v35, 31, v36
    v_and_b32 v35, 1, v38
    v_lshl_add_u32 v37, v35, 4, v37
    s_lshl_b32 s59, s67, 5
    s_sub_u32 s59, s59, {2048 - 256}
    v_add3_u32 v9, v37, v36, s59
    s_lshl_b32 s64, s67, 8
    s_lshl_b32 s65, s{sW}, 12
    s_mul_i32 s66, s{sW}, 7168
    s_lshl_b32 s82, s{sW}, 10
    {bit_of(OPT["xb"], 85)}
    s_mul_i32 s48, s85, {32 * 3456}
    """)
    srd_const(p, SX, 2048 * 1152)
    srd_const(p, SWA, 576 * 3456 + 2048)
    p("s_branch L_att_mid\nL_att_mid:" if OPT["split3"] else "L_att_mid:")
    p("WAITLGKM")
    stamp_begin(p, "att", 47)
    stamp(p, "karg", 2)
    srd_ptr(p, SWA, 6, 2048)
    srd_ptr(p, SX, 4)

    def dma5(base, regs, sr, soff, tag):
        o = [I(f"s_add_u32 m0, s65, {base}")] + soff
        for q in range(4):
            o.append(I(f"buffer_load_dwordx4 v{regs[q]}, {srd(sr)}, s60 offen offset:{1024 * q} lds", tag=tag))
        o.append(I(f"s_add_u32 m0, s82, {base + 16384}"))
        o.append(I(f"buffer_load_dwordx4 v{regs[4]}, {srd(sr)}, s60 offen lds", tag=tag))
        return o

    dma_x = lambda J: dma5(XR + (J % 2) * XSL, [1, 2, 3, 4, 5], SX, x_soff(J, "0"), f"R{J}")
    wslot = {}
    WG = [768 + 12288 * i for i in (11, 12, 0, 1, 2, 5, 6, 7, 3, 4, 8, 9, 10)]

    def dma_wo(k, slot):
        wslot[k] = slot
        o = [I(f"s_add_u32 m0, s69, {slot}"), I(f"s_add_u32 s60, s{70 + k // 4}, {36 * (k % 4) * 1152}" if k < 16 else f"s_add_u32 s60, s64, {288 * (k - 16) * 1152}")]
        for q in range(3):
            o.append(I(f"buffer_load_dwordx4 v{(15 if k < 16 else 18) + q}, {srd(SWB)}, s60 offen offset:{1024 * q} lds", tag=f"O{k}"))
        return o

    def dma_w(j):
        tg = f"W{j}"
        o = w_block(j, 64, 3456) + [I(f"s_add_u32 m0, s66, {(j % 4) * WSL}"), I(f"s_add_u32 s60, s{sWB}, s{48 + j % 2}")]
        for q, r in ((1, 7), (3, 8), (0, 6), (2, 27)):
            o.append(I(f"buffer_load_dwordx4 v{r}, {srd(SWA)}, s60 offen offset:{1024 * q} lds", tag=tg))
        o.append(I(f"s_add_u32 m0, s66, {(j % 4) * WSL + 4096}"))
        o.append(I("s_add_u32 s59, s60, 2304"))
        o.append(I(f"buffer_load_dwordx4 v9, {srd(SWA)}, s60 offen offset:2048 lds", tag=tg))
        o.append(I(f"buffer_load_dwordx4 v6, {srd(SWA)}, s59 offen lds", tag=tg))
        o.append(I(f"buffer_load_dwordx4 v7, {srd(SWA)}, s59 offen offset:1024 lds", tag=tg))
        return o

    p.extend(dma_x(0) + dma_w(0))
    stamp(p, "d0", 2)
    p("s_branch L_att_late\nL_att_late:")
    p(f"""
    s_lshl_b32 s59, s{sW}, 6
    v_add_u32 v42, s59, v0
    v_lshlrev_b32 v43, 1, v0
    s_lshl_b32 s59, s85, 6
    v_xor_b32 v43, s59, v43
    s_sub_u32 s49, {32 * 3456}, s48
    """)
    srd_ptr(p, SSM, 20); srd_const(p, SSM, 576 * 2)
    for i in range(3):
        p(f"""
        s_add_u32 s59, s{sW}, {4 * i}
        s_cmp_gt_u32 s59, {B8}
        s_subb_u32 s60, s59, 0
        s_xor_b32 s60, s60, s{sG}
        s_cmp_eq_u32 s59, {B8}
        s_cselect_b32 s60, 8, s60
        s_lshl_b32 s60, s60, 7
        buffer_load_ushort v{48 + 2 * i}, v43, {srd(SSM)}, s60 offen
        """)
    srd_ptr(p, SWB, 8, 2048); srd_const(p, SWB, 576 * 1152 + 2048)
    srd_ptr(p, SWS, 26); srd_const(p, SWS, WS_SIZE)
    p(f"""
    v_and_b32 v34, 3, v42
    v_lshlrev_b32 v34, 3, v34
    v_bfe_u32 v35, v42, 2, 1
    v_lshl_add_u32 v34, v35, 9, v34
    v_bfe_u32 v35, v42, 3, 4
    v_lshl_add_u32 v34, v35, 5, v34
    v_lshrrev_b32 v35, 7, v42
    v_lshl_add_u32 v34, v35, 10, v34
    v_add_u32 v43, {GT}, v34
    v_and_b32 v36, 3, v32
    v_and_b32 v37, 3, v0
    v_lshlrev_b32 v37, 3, v37
    v_lshrrev_b32 v34, 4, v0
    v_bfe_u32 v35, v0, 2, 2
    v_xor_b32 v36, s{sW}, v36
    v_lshl_add_u32 v36, v36, 5, v37
    v_lshl_add_u32 v36, v35, 7, v36
    v_mul_u32_u24 v10, 7168, v34
    v_add_u32 v10, v10, v36
    v_add_u32 v12, 6144, v10
    s_cmp_lt_u32 s{sW}, s67
    s_cselect_b32 s59, 1024, 0
    s_sub_u32 s60, 1024, s59
    v_add_u32 v25, s60, v10
    v_add_u32 v10, s59, v10
    v_add_u32 v11, 0x10000, v10
    v_add_u32 v29, 0x10000, v25
    v_lshlrev_b32 v37, 5, v34
    v_lshl_add_u32 v37, v35, 3, v37
    v_add_u32 v37, {GT}, v37
    s_cmp_eq_u32 s{sW}, 3
    s_cselect_b64 vcc, -1, 0
    s_mov_b32 s62, {WSL}
    s_mov_b32 s83, {-3 * WSL}
    s_cselect_b32 s62, 128, s62
    s_cselect_b32 s83, 640, s83
    v_cndmask_b32 v12, v12, v37, vcc
    v_and_b32 v36, 15, v0
    v_lshrrev_b32 v37, 1, v36
    v_xor_b32 v37, v37, v34
    v_lshlrev_b32 v37, 4, v37
    v_lshl_add_u32 v13, v36, 7, v37
    v_add_u32 v13, {XR}, v13
    s_lshl_b32 s59, s85, 6
    v_xor_b32 v13, s59, v13
    v_xor_b32 v14, 64, v13
    s_mul_i32 s69, s{sW}, 3072
    """)
    if OPT["wlate"]:
        p.extend(dma_w(1))
    stamp(p, "late", 4)
    warm(p, "att")
    stamp(p, "warm", 2)
    p("s_branch L_att_body\nL_att_body:")
    if not OPT["wlate"]:
        p.extend(dma_w(1))
    rho, st = {0: -1}, 1
    for j in range(16):
        for _ in range(2 if j == OPT["dbla"] else 1):
            rho[st] = j
            st += 1
    assert rho[17] == 15
    free_at = lambda sg: rho[sg] + 1 if sg >= 0 else -1
    groups = [(-1, dma_x(1)), (-1, dma_w(2)), (-1, dma_w(3))]
    rest = [(free_at(2 * J - 3), 0, dma_x, J) for J in range(2, 9)] + [(max(free_at(j - 4), 1), 1, dma_w, j) for j in range(4, 18)]
    groups += [(e, f(k)) for e, _, f, k in sorted(rest, key=lambda r: (r[0], r[1], r[3]))]
    trA = [Addr([10, 11]), Addr([25, 29])]
    xr = [Addr([13]), Addr([14])]
    xf = lambda j, b: vr(36 * (j % 3) + 4 * b, 4, "a")
    wf = lambda j, t: 108 + 28 * (j % 3) + 4 * t
    nb = [8, 8, 9, 9, 9, 9, 9]
    accbase = [48, 80, 112, 148, 184, 220]
    A6 = 192
    acc = lambda t, b: vr(accbase[t] + 4 * b, 4) if t < 6 else vr(A6 + 4 * b, 4, "a")
    rdc = {}

    def reads(j):
        o = []
        for t in range(7):
            w = wf(j, t)
            if t < 6:
                off = (j % 4) * WSL + (t // 2) * 2048
                a0, a1 = trA[t % 2].at(off), trA[t % 2].at(off + 512)
            else:
                a0, a1 = "v12", "v12 offset:512"
            o.append([I(f"ds_read_b64_tr_b16 {vr(w, 2, 'a')}, {a0}"), I(f"ds_read_b64_tr_b16 {vr(w + 2, 2, 'a')}, {a1}")])
        xs = [I(f"ds_read_b128 {xf(j, b)}, {xr[j % 2].at(((j // 2) % 2) * XSL + b * 2048)}") for b in range(9)]
        rdc[j] = (o, xs)
        return o[0] + xs + [y for x in o[1:] for y in x] + [I(f"v_add_u32 v12, s{83 if j % 4 == 3 else 62}, v12")]

    def mfa(j, t, b):
        x = I(f"{MF} {acc(t, b)}, {vr(wf(j, t), 4, 'a')}, {xf(j, b)}, {'0' if j == 0 else acc(t, b)}")
        x.deps = rdc[j][0][t] + [rdc[j][1][b]]
        return x

    pro, paced = pace(groups, 15, lambda j: OPT["capa0"] if j < OPT["nfill"] else OPT["capa"], 56, BG, OPT["nproa"])
    k = split_vm(pro, OPT["nprea"])
    p.extend(pro[:k])
    for i in range(3):
        p(f"v_lshl_or_b32 v{48 + 2 * i}, v{48 + 2 * i}, 16, v{48 + 2 * i}\nv_mov_b32 v{49 + 2 * i}, v{48 + 2 * i}")
        p(f"ds_write_b64 v43, {vr(48 + 2 * i, 2)} offset:{2048 * i}")
    p("WAITVM R0 W0\nWAITLGKM")
    stamp(p, "land", 2)
    p("s_barrier")
    p.extend(reads(0))
    p.extend(pro[k:])
    if not OPT["fastst"]:
        p("WAITLGKM")
    stamp(p, "A0")

    hs = handoff_setup(68, 0x100)
    ci_a, race, pub = counter_init(42)
    wo_addr = P()(f"""
    s_mul_i32 s85, s{sW}, {8 * 1152}
    s_add_u32 s85, s85, 2048
    v_mul_u32_u24 v34, 1152, v32
    v_lshl_add_u32 v34, v38, 4, v34
    v_add_u32 v15, s85, v34
    v_subrev_u32 v16, 896, v15
    v_subrev_u32 v17, 1792, v15
    v_lshrrev_b32 v35, 2, v32
    v_mul_u32_u24 v35, {32 * 1152}, v35
    s_mul_i32 s85, s{sW}, {72 * 1152}
    s_add_u32 s85, s85, {32 * 1152 + 2048}
    v_add3_u32 v18, v34, v35, s85
    v_subrev_u32 v19, 896, v18
    v_subrev_u32 v20, 1792, v18
    """)
    ep_addr = P()(f"""
    v_and_b32 v40, 15, v0
    v_lshrrev_b32 v41, 4, v0
    v_mul_u32_u24 v30, 576, v41
    v_lshl_add_u32 v30, v40, 3, v30
    s_sub_u32 s17, s{sW}, s67
    s_and_b32 s17, s17, 3
    s_mul_i32 s85, s17, 2304
    v_add_u32 v30, s85, v30
    v_add_u32 v31, {EO}, v30
    v_lshrrev_b32 v42, 3, v40
    v_mul_u32_u24 v42, {EO - 64}, v42
    v_add_u32 v32, v30, v42
    s_mul_i32 s85, s{sW}, 9
    s_add_u32 s85, s85, 8
    s_min_u32 s85, s85, 27
    s_sub_u32 s85, s85, s17
    s_mul_i32 s85, s85, 2304
    v_add_u32 v33, s85, v30
    v_add_u32 v34, s85, v31
    v_add_u32 v35, s85, v32
    s_mul_i32 s85, s{sW}, {9 * 576}
    v_lshl_add_u32 v36, v0, 3, s85
    v_add_u32 v37, {EO}, v36
    v_and_b32 v42, 3, v0
    v_lshl_add_u32 v42, v41, 2, v42
    v_bfe_u32 v43, v0, 2, 2
    v_lshl_add_u32 v42, v42, 2, v43
    v_lshl_add_u32 v38, v42, 3, s85
    v_add_u32 v39, {EO}, v38
    s_add_u32 s85, s{sW}, 1
    s_and_b32 s85, s85, 4
    s_lshl_b32 s85, s85, 7
    s_sub_u32 s85, {ZT + 512}, s85
    v_lshl_add_u32 v46, v40, 3, s85
    s_lshl_b32 s85, s{sMT}, 6
    v_add_u32 v42, s85, v0
    v_mov_b32 v43, {hex(f2u(-2.0 ** 100))}
    v_cmp_gt_u32 s[8:9], 8, v42
    v_cmp_gt_u32 s[10:11], 4, v42
    """)
    for i in range(8):
        ep_addr(f"v_cndmask_b32 v{2 + i}, 0, v43, s[{8 + 2 * (i // 4)}:{9 + 2 * (i // 4)}]")

    def epi(t, b, n):
        tmp = 40 + 2 * (n % 3)
        o = []
        if t < 6:
            c = accbase[t] + 4 * b
            base, off = 30, (9 * (t // 2) + 4 * (t % 2)) * 2304
        else:
            c = 48 + 4 * b
            base, off = 33, 0
            if 4 <= b < 8:
                o.append(I(f"ds_write2_b32 v46, a{A6 + 4 * b - 16}, a{A6 + 4 * b} offset0:{32 * (b - 4)} offset1:{32 * (b - 4) + 1}"))
            o += [I(f"v_accvgpr_read_b32 v{c + i}, a{A6 + 4 * b + i}") for i in range(4)]
        o += [I(f"v_cvt_pk_bf16_f32 v{tmp}, v{c}, v{c + 1}"), I(f"v_cvt_pk_bf16_f32 v{tmp + 1}, v{c + 2}, v{c + 3}")]
        o.append(I(f"ds_write_b64 v{base + b // 4}, {vr(tmp, 2)} offset:{off + (128 * (b % 4) + 64 if b < 8 else 0)}"))
        return o

    late = {1: hs[27:46], 2: ci_a, 3: hs[46:], 10: wo_addr,
            12: code_touch2("att", 39) + b2_touch(46), 14: page_setup() + ep_addr}
    for q in range(4):
        wo_addr(f"s_xor_b32 s85, s67, {q}\ns_mul_i32 s85, s85, {144 * 1152}\ns_add_u32 s{70 + q}, s85, s64")
    if OPT["amap"]:
        wo_t = P()(f"""
        s_mul_i32 s85, s68, {162 * 128}
        s_add_u32 s85, s85, 2048
        v_min_u32 v21, 53, v0
        v_lshl_add_u32 v21, v21, 7, s85
        s_movk_i32 s6, {54 * 128}
        s_movk_i32 s7, {108 * 128}
        """)
        wt = [I(f"buffer_load_dword a255, v21, {srd(SWB)}, {o} offen") for o in ("0", "s6", "s7")]
    else:
        wo_t = P()(f"""
        s_mul_i32 s85, s68, {18 * 1152}
        s_add_u32 s85, s85, 2048
        v_min_u32 v22, 53, v0
        v_mul_u32_u24 v21, 43, v22
        v_lshrrev_b32 v21, 7, v21
        v_mul_u32_u24 v21, {1152 - 384}, v21
        v_lshl_add_u32 v21, v22, 7, v21
        v_add_u32 v21, s85, v21
        """)
        wt = [I(f"buffer_load_dword a255, v21, {srd(SWB)}, s64 offen")]
    for x in wt:
        x.writes = set()
    TB = [1, 22, 23, 27]
    tb_addr = P()(f"""
    v_lshrrev_b32 v44, 4, v0
    v_mul_u32_u24 v44, 3072, v44
    v_and_b32 v45, 3, v0
    v_lshl_add_u32 v44, v45, 3, v44
    v_bfe_u32 v45, v0, 2, 2
    v_lshl_add_u32 v44, v45, 7, v44
    v_bfe_u32 v45, v0, 3, 2
    """)
    for j in range(4):
        tb_addr(f"""
        s_add_u32 s85, s67, {j}
        s_and_b32 s40, s85, 3
        v_xor_b32 v{TB[j]}, s40, v45
        s_lshr_b32 s85, s85, 2
        s_lshl_b32 s85, s85, 10
        v_lshl_add_u32 v{TB[j]}, v{TB[j]}, 5, v44
        v_add_u32 v{TB[j]}, s85, v{TB[j]}
        """)
    late[14] += tb_addr
    assert not paced[14]
    inline = {}
    if OPT["esa"]:
        inline = {0: late.pop(1) + late.pop(3), 1: late.pop(2), max(2, ES[2]): late.pop(10)}
    tbs = [(t, b) for t in range(7) for b in range(nb[t])]
    for j in range(15):
        mf = [mfa(j, t, b if t % 2 == 0 or not OPT["cha"] else nb[t] - 1 - b) for t, b in tbs]
        sts = [k for k in rho if rho[k] == j]
        tags = " ".join(f"W{k} R{k // 2}" for k in sts)
        if j == 4:
            tags += " FI"
        side = [(4, x) for x in late.get(j, [])]
        hi = []
        if j == 4:
            hi = race(1)[:1]
        if 5 <= j < 5 + OPT["nrace"]:
            hi = race(j - 5)
        if j == 5 + OPT["nrace"]:
            side = [(2, x) for x in pub] + side
        if j == 13:
            side += [(1, x) for x in poll_load("init")]
        if j == 13:
            side += [(4, x) for x in wo_t]
        gemm_step(p, j, mf, tags, [x for k in sts for x in reads(k)], paced[j], side, (), hi)
        p.extend(flat(inline.get(j, [])))
        warm(p, "att", j)
        if j == 13:
            p.extend(flat(poll_check("att", "init", "init")))
        p("WAITLGKM")
        if j in (0, 1, 3, 8):
            stamp(p, f"A{j + 1}", 2)
    stamp(p, "A15")
    r17 = reads(17)[:-1]
    rest, six = [tb for tb in tbs if tb[0] < 6], [tb for tb in tbs if tb[0] == 6]
    tbs = rest[:22]
    for n, tb in enumerate(rest[22:]):
        tbs += six[n // 3:n // 3 + 1] * (n % 3 == 0) + [tb]
    assert len(tbs) == 61
    N0 = 12
    done = {}
    if OPT["chs"]:
        mf = [mfa(j, t, b) for n, (t, b) in enumerate(tbs[:N0]) for j in ((15, 16), (16, 15))[n & 1]]
        for n, tb in enumerate(tbs):
            mf += [mfa(j, *tb) for j in ((17,) if n < N0 else ((15, 16, 17), (17, 16, 15))[n & 1])]
            done[tb] = len(mf) - 1
    else:
        mf = [mfa(j, t, b) for j in (15, 16) for t, b in tbs[:N0]]
        for n in range(0, len(tbs), 2):
            for j in ((17,) if n < N0 else (15, 16, 17)):
                for tb in tbs[n:n + 2]:
                    mf.append(mfa(j, *tb))
                    done[tb] = len(mf) - 1
    bar_b = I("s_barrier")
    t_rd = [(0, [I("WAITVM W17 R8", cost=1), I("s_barrier")])] + [(1 + min(i, 5 + i // 2), x) for i, x in enumerate(r17)]
    t_rd.append((24, [I("WAITLGKM", cost=1), bar_b]))
    misc = P()(f"""
    s_min_u32 s17, s{sW}, 1
    s_lshl_b32 s17, s17, 31
    s_lshl_b32 s16, s67, 9
    s_add_u32 s16, s16, s{sFL}
    s_add_u32 s16, s16, {O_Z - O_CNT}
    s_mov_b32 s8, 0x11111111
    s_mov_b32 s9, s8
    s_mov_b32 s10, 0x33333333
    s_mov_b32 s11, s10
    s_mov_b32 s12, 0x77777777
    s_mov_b32 s13, s12
    v_mov_b32 v40, 0xffff0000
    v_mov_b32 v41, 0xffff
    v_cndmask_b32 v43, 0, v40, s[8:9]
    v_cndmask_b32 v26, 0, v41, s[10:11]
    v_cndmask_b32 v40, 0, v40, s[12:13]
    v_or_b32 v26, v26, v40
    s_mov_b32 s14, {hex(f2u((18 ** -0.5) * 1.4426950408889634))}
    s_mov_b32 s15, s14
    v_lshrrev_b32 v40, 3, v0
    v_and_b32 v41, 7, v0
    v_lshlrev_b32 v41, 4, v41
    v_lshrrev_b32 v42, 5, v0
    v_lshl_add_u32 v42, v42, 13, v41
    s_lshl_b32 s59, s67, 2
    s_add_u32 s59, s59, s{sW}
    s_lshl_b32 s63, s59, 7
    s_add_u32 s63, s63, s4
    s_add_u32 s63, s63, {O_OT}
    s_lshl_b32 s62, s59, 14
    s_add_u32 s62, s62, s4
    """)
    misc2 = P()(f"""
    v_lshl_add_u32 v10, v40, 10, v41
    v_lshl_add_u32 v11, v40, 11, v42
    v_and_or_b32 v29, v0, 8, v41
    v_lshrrev_b32 v40, 4, v0
    v_lshl_add_u32 v29, v40, 8, v29
    v_lshlrev_b32 v25, 4, v0
    v_and_b32 v{vPST}, 0x3ff, v{vPST}
    v_lshlrev_b32 v13, 3, v0
    v_add_u32 v12, {ZT}, v13
    v_add_u32 v13, s17, v13
    v_mov_b32 v14, v43
    """)
    misc3 = P()
    misc3(f"""
    s_lshl_b32 s6, s{sW}, 11
    s_add_u32 s6, s6, s4
    s_sub_u32 s7, s5, {O_A - O_OT}
    s_and_b32 s85, s67, 1
    s_lshl_b32 s40, s85, 13
    s_sub_u32 s41, 12288, s40
    s_add_u32 s40, s40, 4096
    s_mul_i32 s42, s67, {9 * 8192}
    s_lshl_b32 s85, s85, 12
    s_sub_u32 s42, s42, s85
    s_lshl_b32 s85, s{sW}, 10
    s_add_u32 s42, s42, s85
    s_add_u32 s42, s42, s4
    s_add_u32 s42, s42, {O_A}
    """)
    for q in range(4):
        misc3(f"s_xor_b32 s85, s67, {q}\ns_lshl_b32 s85, s85, 16\ns_add_u32 s{74 + q}, s85, s6")
    misc3[0].after = [misc2[-1], wt[-1]][:1 + bool(OPT["wot"])]
    for x in misc2:
        x.after = [r17[-1]]
    t_ep = [(1, x) for x in misc] + [(19, x) for x in misc2]
    for n, tb in enumerate(tbs):
        for x in epi(*tb, n):
            if x.kind == "dsw":
                x.after = [bar_b]
            if x.reads & mf[done[tb]].writes:
                x.deps = [mf[done[tb]]]
            t_ep.append((max(done[tb] + 4, 25), x))
    t_dma = [(2 + 12 * k, x) for k, x in enumerate(wt * bool(OPT["wot"]))]
    for k, x in enumerate(dma_wo(0, WG[0]) + dma_wo(1, WG[1])):
        x.after = [bar_b]
        t_dma.append((90 + 6 * k, x))
    p.extend(sched2(mf, [t_rd, t_dma, t_ep, [(40, x) for x in misc3]], state=sstate, rlate=2))
    stamp(p, "Aend")
    p("v_mov_b32 v145, 0\nv_mov_b32 v146, 0\nv_mov_b32 v149, 0\nv_mov_b32 v150, 0")
    AR = [int(x) for x in str(OPT["ar"]).split(",")]
    FRA = lambda r, i: vr(144 + 12 * r + 4 * i, 4, "a")
    p("WAITLGKM\ns_barrier")
    stamp(p, "join", 2)

    S = lambda u, z: 48 + 12 * u + 4 * z
    grp = [(e, lq) for e in range(2) for lq in range(9)]

    def kq_rd(gi):
        e, lq = grp[gi]
        kb = 112 + 8 * (gi % 4)
        o = [I(f"ds_read_b64 {vr(kb + 2 * z, 2)}, v{36 + e} offset:{RO + lq * 576 + 32 * z}") for z in range(3)]
        if lq == 4:
            o += [I(f"ds_read_b32 v{144 + 4 * e}, v{36 + e} offset:{lq * 576 + 64}"),
                  I(f"ds_read_b32 v{147 + 4 * e}, v{36 + e} offset:{lq * 576 + 68}")]
        else:
            o.append(I(f"ds_read_b64 {vr(kb + 6, 2)}, v{36 + e} offset:{lq * 576 + 64}"))
        return o

    p(f"KEEP {OPT['keepq']}")
    p.extend(kq_rd(0) + kq_rd(1) + kq_rd(2))
    VA = lambda lq, z, e: 12 * lq + 4 * z + 2 * e
    vrd = [I(f"ds_read_b64_tr_b16 {vr(VA(lq, z, e), 2, 'a')}, v{38 + e} offset:{2 * RO + lq * 576 + 32 * z}")
           for lq in range(9) for z in range(3) for e in range(2)]
    tail_rd = [I("ds_read_b64 v[96:97], v12")] + vrd[:12]
    for gi, (e, lq) in enumerate(grp):
        kb = 112 + 8 * (gi % 4)
        nx = kq_rd(gi + 3) if gi + 3 < 18 else []
        for hh in ([0] if lq < 4 else [0, 1] if lq == 4 else [1]):
            u = 2 * e + hh
            q = vr(144 + 4 * e + 2 * hh, 2) if lq == 4 else vr(kb + 6, 2)
            for z in range(3):
                c = vr(S(u, z), 4) if lq != 4 * hh else ["v[2:5]", "v[6:9]", "0"][z]
                p(f"{MF4} {vr(S(u, z), 4)}, {vr(kb + 2 * z, 2)}, {q}, {c}")
                if nx:
                    p.append(nx.pop(0))
                elif gi >= 15:
                    p.append(tail_rd.pop(0))
        p.extend(nx)
    p.extend(tail_rd)
    stamp(p, "qk", 2)
    p("s_barrier")

    sm = P()
    B = lambda u: S(u, 0)
    U4 = range(4)
    sm("v_mul_f32 v96, 0xbfb8aa3b, v96\nv_mul_f32 v97, 0xbfb8aa3b, v97\nv_exp_f32 v96, v96\nv_exp_f32 v97, v97")
    for r in (1, 2, 3):
        if r == 2:
            sm("v_add_f32 v96, 1.0, v96\nv_add_f32 v97, 1.0, v97\nv_rcp_f32 v98, v96\nv_rcp_f32 v99, v97")
        if r == 3:
            sm("v_sub_f32 v96, 1.0, v98\nv_sub_f32 v97, 1.0, v99")
        for u in U4:
            sm(f"v_cndmask_b32 v{B(u) + 8 + r}, v{B(u) + 8 + r}, v{B(u) + r}, s[{6 + 2 * r}:{7 + 2 * r}]")
    for u in U4:
        sm(f"v_max3_f32 v{B(u)}, v{B(u) + 4}, v{B(u) + 5}, v{B(u) + 6}")
    for k in (7, 9):
        for u in U4:
            sm(f"v_max3_f32 v{B(u)}, v{B(u)}, v{B(u) + k}, v{B(u) + k + 1}")
    for u in U4:
        sm(f"v_max_f32 v{B(u)}, v{B(u)}, v{B(u) + 11}")
    for u in U4:
        sm(f"v_mul_f32 v{B(u)}, s14, v{B(u)}")
    for u in U4:
        for k in (4, 6, 8, 10):
            sm(f"v_pk_fma_f32 {vr(B(u) + k, 2)}, {vr(B(u) + k, 2)}, s[14:15], {vr(B(u), 2)} op_sel_hi:[1,1,0] neg_lo:[0,0,1] neg_hi:[0,0,1]")
    for u in U4:
        for k in range(4, 12):
            sm(f"v_exp_f32 v{B(u) + k}, v{B(u) + k}")
    for u in U4:
        sm(f"v_pk_add_f32 {vr(B(u), 2)}, {vr(B(u) + 4, 2)}, {vr(B(u) + 6, 2)}")
        sm(f"v_pk_add_f32 {vr(B(u) + 2, 2)}, {vr(B(u) + 8, 2)}, {vr(B(u) + 10, 2)}")
    for u in U4:
        sm(f"v_pk_add_f32 {vr(B(u), 2)}, {vr(B(u), 2)}, {vr(B(u) + 2, 2)}")
    for u in U4:
        sm(f"v_add_f32 v{B(u)}, v{B(u)}, v{B(u) + 1}")
    for u in U4:
        sm(f"v_rcp_f32 v{B(u)}, v{B(u)}")
    for u in U4:
        sm(f"v_mul_f32 v{B(u)}, v{B(u)}, v{98 + u // 2}")
    for u in U4:
        for k in (4, 6, 8, 10):
            sm(f"v_pk_mul_f32 {vr(B(u) + k, 2)}, {vr(B(u) + k, 2)}, {vr(B(u), 2)} op_sel_hi:[1,0]")
    for u in U4:
        for k in (4, 8):
            sm(f"v_cvt_pk_bf16_f32 v{B(u) + k}, v{B(u) + k}, v{B(u) + k + 1}")
            sm(f"v_cvt_pk_bf16_f32 v{B(u) + k + 1}, v{B(u) + k + 2}, v{B(u) + k + 3}")
    for u in U4:
        for i in range(2):
            sm(f"v_and_b32 v{B(u) + i}, v{[14, 26][i]}, v{B(u) + 8 + i}")
            sm(f"v_bfi_b32 v{B(u) + 8 + i}, v{[14, 26][i]}, 0, v{B(u) + 8 + i}")
    vmq = [y for k in range(2, OPT["wosm"]) for y in dma_wo(k, WG[k])] + [I(f"buffer_store_dwordx2 v[96:97], v13, {srd(SWS)}, s16 offen sc1")]
    nv = sum(1 for x in vmq if x.kind in VM)
    step = max(1, len(sm) // (nv + 1))
    for i, x in enumerate(sm):
        p.append(x)
        if i % step == step - 1:
            while vmq:
                y = vmq.pop(0)
                p.append(y)
                if y.kind in VM:
                    break
    p.extend(vmq)
    stamp(p, "smax", 2)
    po = lambda e, d: 192 + 16 * e + d if d < 16 else 224 + 2 * e + d - 16
    D = lambda lq, hh, e: 100 + 8 * (lq + hh) + 4 * e
    m4, cv = [], []
    for lq in range(9):
        hhs = [0] if lq < 4 else [0, 1] if lq == 4 else [1]
        for z in range(3):
            for hh in hhs:
                for e in range(2):
                    d = vr(D(lq, hh, e), 4)
                    m4.append(I(f"{MF4} {d}, {vr(VA(lq, z, e), 2, 'a')}, {vr(S(2 * e + hh, z), 2)}, {d if z else '0'}"))
                    m4[-1].deps = [vrd[6 * lq + 2 * z + e]]
    for g in range(5):
        for e in range(2):
            c = []
            for lq in ((2 * g, 2 * g + 1) if g < 4 else (8,)):
                lo, hi_ = D(lq, int(lq > 4), e), D(lq, int(lq >= 4), e)
                c += [I(f"v_cvt_pk_bf16_f32 v{po(e, 2 * lq)}, v{lo}, v{lo + 1}"), I(f"v_cvt_pk_bf16_f32 v{po(e, 2 * lq + 1)}, v{hi_ + 2}, v{hi_ + 3}")]
            w = [I(f"buffer_store_dwordx4 {vr(po(e, 4 * g), 4)}, v10, {srd(SWS)}, s62 offen offset:{g * 256 + e * 128} sc1", tag="OS")] if g < 4 else \
                [I(f"buffer_store_dwordx4 v[224:227], v11, {srd(SWS)}, s63 offen sc1", tag="OS")] * e
            cv.append((c, w))
    for x, y in zip(m4[:42], vrd[12:]):
        p.extend([x, y])
    rest = m4[42:]
    nbar = [0]
    for c, w in cv:
        for x in c:
            if rest and x is not c[0]:
                p.append(rest.pop(0))
            p.append(x)
        if rest:
            p.append(rest.pop(0))
        if not rest and not nbar[0]:
            p("s_barrier")
            nbar[0] = 1
        p.extend(w)
    assert not rest
    stamp(p, "core")
    if OPT["stamp"]:
        p("v_mov_b32 v30, v47")
        cur["vst"] = 30
    if AR[0] >= 0:
        p.extend(flat(poll_load(AR[0], sP1)))
    for k in range(OPT["wosm"], 8 + OPT["npv"]):
        p.extend(dma_wo(k, WG[k]))
    for j in range(4):
        p(f"v_add_u32 v{160 + 2 * j}, 0x10000, v{TB[j]}\nv_add_u32 v{161 + 2 * j}, 0x20000, v{TB[j]}")
    p("s_waitcnt lgkmcnt(0)\nWAITVM OS\ns_barrier")
    p.extend(flat(signal(CO)))
    stamp(p, "osig")
    d89 = [y for k in range(8 + OPT["npv"], 13) for y in dma_wo(k, WG[k])]
    f0 = [y for r in range(AR[0] + 1) for y in f_loads(r, FRA, 66)]
    if AR[0] >= 0:
        p.extend(flat(poll_check("att", AR[0], "F", sP1, False)))
    if not OPT["early"]:
        p.extend(flat(poll_load(CO)) + d89)
        if AR[0] >= 0:
            p("s_barrier")
            p.extend(f0)
        p.extend(flat(poll_check("att", CO, "A")))
        p("s_barrier")
        stamp(p, "ochk")
    of = lambda k, bb: 8 * k + 4 * bb
    old, oq = {}, []
    for k in range(16):
        oq.append(I(f"s_add_u32 s59, s{74 + k // 4}, {(k % 4) * 16384}"))
        for bb in range(2):
            old[k, bb] = [I(f"buffer_load_dwordx4 {vr(of(k, bb), 4, 'a')}, v25, {srd(SWS)}, s59 offen offset:{bb * 1024} sc1")]
            oq += old[k, bb]
    for k in (16, 17):
        for bb in range(2):
            old[k, bb] = [I(f"buffer_load_dwordx2 {vr(of(k, bb) + 2 * h, 2, 'a')}, v29, {srd(SWS)}, s7 offen offset:{bb * 2048 + (k - 16) * 1024 + h * 128} sc1") for h in range(2)]
            oq += old[k, bb]
    NPRE = split_vm(oq, OPT["npo"])
    p.extend(oq[:NPRE])
    if OPT["early"]:
        assert OPT["npo"] == 8
        p.extend(d89 * (not OPT["d89late"]) + flat(poll_load(CO)))
    trW = [Addr([TB[j], 160 + 2 * j, 161 + 2 * j]) for j in range(4)]
    bar = {k: [y for kk in (k + 11, k + 12) if kk < 18 for y in dma_wo(kk, wslot[kk - 13])] for k in range(2, 18, 2)}
    bar[8] += b2_dma(31, wslot[5]) + [g_load("att")]
    RING, DIST = OPT["ring"], OPT["dist"]
    rdc = {}

    KT = 18 - OPT["ktail"]
    order = [(k, j) for k in range(KT) for j in range(9)] + [(k, j) for j in range(9) for k in range(KT, 18)]
    cover = lambda k: min((k - 1) // 2 * 2, (KT - 1) // 2 * 2)
    if OPT["chp"]:
        KT = 14 if OPT["ktail"] > 2 else 16
        order = [(k + h, j) for k in range(0, KT, 2) for j in range(9) for h in range(2)] + [(k, j) for j in range(9) for k in range(KT, 18)]
        cover = lambda k: min(k // 2 * 2, KT) - 2

    def rd(fi):
        if fi not in rdc:
            k, j = order[fi]
            w = 176 + 4 * (fi % RING)
            off = wslot[k] + (j // 4) * 1024
            rdc[fi] = [I(f"ds_read_b64_tr_b16 {vr(w, 2)}, {trW[j % 4].at(off)}"), I(f"ds_read_b64_tr_b16 {vr(w + 2, 2)}, {trW[j % 4].at(off + 512)}", tag=f"w{fi}")]
        return rdc[fi]

    for fi in range(DIST):
        p.extend(rd(fi))
    mf, s_bar, s_rd, s_o, s_ep = [], [], [], [], []
    s_dma, s_f, s_w = [(0, x) for x in d89 * OPT["d89late"]], [], []
    c0, c1, c2, c3 = end_consts("att", wslot[5])
    p.extend(b2_addr(31, 2) + end_setup("att") + c0)
    hooks = []
    g = 0
    if OPT["early"]:
        g = OPT["cogap"]
        cob = I("s_barrier")
        s_bar += [(g - 1, y) for y in poll_check("att", CO, "A")] + [(g, cob, g)]
        if OPT["stamp"]:
            s_bar.append((g, stamp_ins("ochk"), g))
        for x in oq[NPRE:] + f0:
            x.after = [cob]
        g += 1
        s_f += [(g, x) for x in f0]
    n = 0
    for x in oq[NPRE:]:
        s_o.append((g, x))
        n += x.kind in VM
        g += (4 if n <= 6 else OPT["osep"]) if x.kind in VM else 0
    rounds = {6: (AR[0] + 1, AR[1]), 12: (AR[1] + 1, AR[2])}
    bars = {}
    for fi in range(162):
        k, j = order[fi]
        g0 = len(mf)
        for bb in range(2):
            c = 64 + 8 * j + 4 * bb
            mf.append(I(f"{MF} {vr(c, 4)}, {vr(176 + 4 * (fi % RING), 4)}, {vr(of(k, bb), 4, 'a')}, {vr(c, 4) if k else '0'}"))
            mf[-1].deps = rd(fi) + old[k, bb]
        lastw = mf[-2:]
        if OPT["chp"] and fi % 2:
            a0, a1, b0, b1 = mf[-4:]
            mf[-4:] = [a0, b0, a1, b1] if k == 1 else [a0, b0, b1, a1]
            lastw = [b0, mf[-1]]
        if j == 1 and k in bar and k < KT:
            fl = []
            if k in rounds and rounds[k][1] >= rounds[k][0]:
                hooks += [(g0 - OPT["pdist"], y, g0 - 20) for y in poll_load(rounds[k][1])]
                s_bar += [(g0 - 1, y) for y in poll_check("att", rounds[k][1], "F")]
                fl = [y for r in range(rounds[k][0], rounds[k][1] + 1) for y in f_loads(r, FRA, 66)]
            bars[k] = I("s_barrier")
            s_bar.append((g0, [I("WAITVM " + " ".join(f"O{kk}" for kk in range(18) if cover(kk) == k), cost=1), bars[k]], g0 + 1))
            for x in bar[k] + fl:
                x.after = [bars[k]]
                (s_f if x in fl else s_dma).append((g0 + 2, x))
        if fi + DIST < 162:
            r = rd(fi + DIST)
            kk = order[fi + DIST][0]
            if cover(kk) >= 2:
                r[0].after = [bars[cover(kk)]]
            s_rd += [(g0, r[0], g0 + 3), (g0 + 1, r[1], g0 + 4)]
        if fi % 2 == 1 and fi + 2 < 162:
            s_w.append((g0, I(f"WAITLG w{fi + 2}", cost=1), g0 + 1))
        if k == 17:
            t = 32 + 4 * (j % 4)
            for i in range(4):
                s_ep.append((g0 + 5, I(f"v_cvt_pk_bf16_f32 v{t + i}, v{64 + 8 * j + 2 * i}, v{65 + 8 * j + 2 * i}")))
                s_ep[-1][1].deps = lastw
            s_ep.append((g0 + 5, I(f"buffer_store_dwordx4 {vr(t, 4)}, v{vPST}, {srd(SWS)}, s42 offen sc1", tag="PA")))
            if j < 8:
                s_ep.append((g0 + 5, I(f"s_add_u32 s42, s42, s{40 + j % 2}")))
        if j == 8 and k in (5, 11) and OPT["stamp"] >= 2:
            s_bar.append((g0 + 1, stamp_ins(f"k{k + 1}", 2)))
    p.extend(sched2(mf, [s_bar, s_w, s_rd, s_o, s_dma, sorted(hooks, key=lambda h: h[0]), s_ep, s_f]))
    p("KEEP 2")
    stamp(p, "Bend")
    end_phase(p, "att", FRA, AR[2] + 1, AR[2] + 1, OPT["esta"], "PA", CA, c1 + c3 + c2)
    return p


def head():
    p = P()
    p("s_cmp_ge_u32 s2, 256\ns_cbranch_scc1 L_exit")
    p("s_load_dwordx16 s[4:19], s[0:1], 0\ns_load_dwordx8 s[20:27], s[0:1], 64")
    if OPT["stamp"]:
        p("s_memrealtime s[86:87]\ns_memtime s[88:89]")
    if OPT["etouch"]:
        p("s_getpc_b64 s[82:83]\nv_min_u32 v1, 19, v0\nv_lshlrev_b32 v1, 7, v1\nglobal_load_dword a255, v1, s[82:83]")
        p[-1].writes = set()
    ms = [int(x) for x in str(OPT["rg"]).split(",")][::-1]
    rot = bit_of(ms[0], sG)
    for m in ms[1:]:
        rot += "\n" + bit_of(m, 59) + f"\ns_lshl1_add_u32 s{sG}, s{sG}, s59"
    p(f"""
    v_lshrrev_b32 v1, 6, v0
    v_and_b32 v0, 63, v0
    v_readfirstlane_b32 s{sW}, v1
    s_bfe_u32 s59, s2, 0x10002
    s_lshl_b32 s59, s59, 3
    s_bfe_u32 s{sMT}, s2, 0x30003
    s_add_u32 s{sMT}, s{sMT}, s59
    @ROT
    s_and_b32 s59, s2, 3
    s_lshr_b32 s60, s2, 6
    {"s_cbranch_scc1 L_ffn" if OPT["attfirst"] else "s_cbranch_scc0 L_att"}
    """.replace("@ROT", rot))
    return p


def desc(name, nv, acc):
    return f""".amdhsa_kernel {name}
  .amdhsa_next_free_vgpr {nv}
  .amdhsa_next_free_sgpr 102
  .amdhsa_accum_offset {acc}
  .amdhsa_group_segment_fixed_size 0
  .amdhsa_kernarg_size 96
  .amdhsa_user_sgpr_count 2
  .amdhsa_user_sgpr_kernarg_segment_ptr 1
  .amdhsa_system_sgpr_workgroup_id_x 1
.end_amdhsa_kernel"""


def main():
    fin = Finalizer(OPT["age"])
    fin.hoist = bool(OPT["s2"])
    hd = head()
    parts = {}
    for role, fn in (("att", role_att), ("ffn", role_ffn)):
        code = fin.run(hd + fn())
        i0 = next(i for i, x in enumerate(code) if x.text == f"L_{role}:")
        i1 = next(i for i, x in enumerate(code) if x.text == f"L_{role}_body:")
        body, npad, nb, st = layout_dp(code[i1:], f"L_{role}_pad" if OPT["warm"] else None, 99, "@RET")
        assert npad <= 9

        def fix(ins):
            o, k = [], 0
            for x in ins:
                t = x.text.replace(f"@LASTPAGE_{role}", str((nb - 1) // 4096))
                if "@RET" in t:
                    t = t.replace("@RET", f"L_{role}_ret{max(k - 1, 0) // 4}")
                    k += 1
                if "@HOP" in t:
                    n = int(t.split("@HOP")[1])
                    t = t.split("@HOP")[0] + (f"L_{role}_pad{n}" if n < npad else f"L_{role}_ret{(n - 1) // 4}")
                o.append(I(t))
            return o

        body, pro = fix(body), fix(code[i0:i1])
        off = False
        for x in body:
            off = x.text == "s_mov_b64 exec, 0" or (off and x.text != "s_mov_b64 exec, -1")
            assert not (off and x.op == "s_cbranch_execz"), "pad inside a warm-up hop"
        i2 = next(i for i, x in enumerate(pro) if x.text == f"L_{role}_late:")
        i3 = next(i for i, x in enumerate(pro) if x.text == f"L_{role}_mid:") if OPT["split3"] else i2
        parts[role] = (code[:i0], pro[:i3], body, pro[i3:i2], pro[i2:])
        sys.stderr.write(f"{role}: {len(code)} ins {fin.stats} body {nb} B pads {npad} {st} prologue {sum(inst_sizes(pro[:i2]))}+{sum(inst_sizes(pro[i2:]))} B\n")
    ref = open(f"cdna_kernels/{NAME}.s.ref").read().split("\n")
    hdr = [l for l in ref if l.startswith(";") and "@launch" not in l]
    if OPT["stamp"]:
        hdr += [f"; stamps {r} " + " ".join(n) for r, n in stnames.items()]
    rr = ("att", "ffn") if OPT["attfirst"] else ("ffn", "att")
    order = [(r, k) for r in rr for k in (1, 3, 4)] if OPT["lin"] else [(r, k) for k in (1, 3, 4) for r in rr]
    o = hdr + ["; @launch grid=(256,1,1) block=(256,1,1) lds=163840",
               '.amdgcn_target "amdgcn-amd-amdhsa--gfx950"', ".text",
               f".globl {NAME}_kernel", ".p2align 12", ".p2align 8", f".type {NAME}_kernel,@function", f"{NAME}_kernel:",
               text_of(parts["ffn"][0]), *[text_of(parts[r][k]) for r, k in order], "L_exit:", "    s_endpgm",
               ".p2align 12", text_of(parts["ffn"][2]), ".p2align 12", text_of(parts["att"][2]), ".p2align 12",
               '.section .rodata,"a"', ".p2align 6", desc(f"{NAME}_kernel", 512, 256)]
    txt = "\n".join(o)
    if OPT["dflav"]:
        import re
        txt = re.sub(r"(s\[(?:28:31|32:35)\].*) lds$", lambda m: m.group(1) + " " + OPT["dflav"].replace("+", " ") + " lds", txt, flags=re.M)
    print(txt)


main()
```
